```python
import torch

def _softmax(x, axis=-1):
    return torch.softmax(x, dim=axis)

def _gelu(x):
    return torch.nn.functional.gelu(x, approximate='tanh')

def _silu(x):
    return torch.nn.functional.silu(x)

def _sigmoid(x):
    return torch.sigmoid(x)

def _layernorm(x, axis=-1, eps=1e-05):
    m = x.mean(dim=axis, keepdim=True)
    v = x.var(dim=axis, keepdim=True, unbiased=False)
    return (x - m) / torch.sqrt(v + eps)

def _scatter_add(tgt, idx, src, axis=0):
    return tgt.clone().index_add_(axis, idx, src)

def _segment_sum(src, seg, n):
    out = torch.zeros((n,) + src.shape[1:], dtype=src.dtype)
    return out.index_add_(0, seg, src)

def _pad(x, pw):
    flat = tuple((v for pair in reversed(pw) for v in pair))
    return torch.nn.functional.pad(x, flat)
kernel_name = 'adaLN_cond__sliding_block_cached__swiglu_ffn__decode'

def setup_inputs():

    _w = lambda a: (lambda t: t.to(torch.bfloat16) if t.is_floating_point() else t)(torch.as_tensor(a))

    def _A_setup():
        B, Sq, D = (1, 1, 512)
        Hq, Hkv, Sk, Dh = (32, 8, 65536, 128)
        assert Hq % Hkv == 0, (Hq, Hkv)
        return {'x': _w((lambda *s: torch.randn(*s, dtype=torch.bfloat16) * 0.05)(B, Sq, D)), 'k_cache': _w((lambda *s: torch.randn(*s, dtype=torch.bfloat16) * 3.2)(B, Hkv, Sk, Dh)), 'v_cache': _w((lambda *s: torch.randn(*s, dtype=torch.bfloat16) * 0.4)(B, Hkv, Sk, Dh)), 'wq': _w((lambda *s: torch.randn(*s, dtype=torch.bfloat16) * 3.2)(D, Hq * Dh) * D ** (-0.5)), 'wo': _w((lambda *s: torch.randn(*s, dtype=torch.bfloat16) * 0.4)(Hq * Dh, D) * (Hq * Dh) ** (-0.5))}
    _A_in = _A_setup()

    def _B_setup():
        B, S, D, F = (1, 1, 512, 1792)
        return {'x': _w((lambda *s: torch.randn(*s, dtype=torch.bfloat16) * 0.05)(B, S, D)), 'w_gate': _w((lambda *s: torch.randn(*s, dtype=torch.bfloat16) * 0.05)(D, F)), 'w_up': _w((lambda *s: torch.randn(*s, dtype=torch.bfloat16) * 0.05)(D, F)), 'w_down': _w((lambda *s: torch.randn(*s, dtype=torch.bfloat16) * 0.05)(F, D))}
    _B_in = _B_setup()
    return {'A_x': _A_in['x'], 'A_k_cache': _A_in['k_cache'], 'A_v_cache': _A_in['v_cache'], 'A_wq': _A_in['wq'], 'A_wo': _A_in['wo'], 'B_x': _B_in['x'], 'B_w_gate': _B_in['w_gate'], 'B_w_up': _B_in['w_up'], 'B_w_down': _B_in['w_down'], 'c': _w((lambda *s: torch.randn(*s, dtype=torch.bfloat16) * 0.1)(1, 512) * 8.0), 'w_mod': _w((lambda *s: torch.randn(*s, dtype=torch.bfloat16) * 0.1)(512, 6 * 512) * 512 ** (-0.5) * 8.0)}

def reference(A_x, A_k_cache, A_v_cache, A_wq, A_wo, B_x, B_w_gate, B_w_up, B_w_down, c, w_mod):

    def _A_ref(x, k_cache, v_cache, wq, wo):
        B, Sq, D = x.shape
        Hq, Dh = (32, 128)
        Hkv, Sk = (k_cache.shape[1], k_cache.shape[2])
        W = min(4096, max(256, Sk // 4))
        rep = Hq // Hkv
        q = (lambda x, *d: x.permute(*d))((x @ wq).reshape(B, Sq, Hq, Dh), 0, 2, 1, 3)
        k = (lambda x, n, axis: torch.repeat_interleave(x, n, dim=axis))(k_cache[:, :, Sk - W:, :], rep, axis=1)
        v = (lambda x, n, axis: torch.repeat_interleave(x, n, dim=axis))(v_cache[:, :, Sk - W:, :], rep, axis=1)
        scores = torch.einsum('bhqd,bhkd->bhqk', q, k) * Dh ** (-0.5)
        p = _softmax(scores, axis=-1)
        o = torch.einsum('bhqk,bhkd->bhqd', p, v)
        return (lambda x, *d: x.permute(*d))(o, 0, 2, 1, 3).reshape(B, Sq, Hq * Dh) @ wo

    def _B_ref(x, w_gate, w_up, w_down):
        g = _silu(x @ w_gate)
        u = x @ w_up
        return g * u @ w_down
    x = A_x
    mod = (_silu(c) @ w_mod).reshape(c.shape[0], 6, 1, -1)
    sa, ca, ga, sb, cb, gb = (mod[:, 0].clone(), mod[:, 1].clone(), mod[:, 2].clone(), mod[:, 3].clone(), mod[:, 4].clone(), mod[:, 5].clone())
    h = _layernorm(x, axis=-1) * (1 + ca) + sa
    x = x + ga * _A_ref(h, A_k_cache, A_v_cache, A_wq, A_wo)
    h = _layernorm(x, axis=-1) * (1 + cb) + sb
    x = x + gb * _B_ref(h, B_w_gate, B_w_up, B_w_down)
    return x
```

```python
import sys

NAME = 'adaLN_cond__sliding_block_cached__swiglu_ffn__decode'
K = NAME + '_kernel'

H1 = 0x01000
H1_REP = 0x2100
HR = 0x12000
HR_REP = 0x2100
H2 = 0x23000
H2_G = 0x900
LSE = 0x28000
LSE_G = 0x900
H3A = 0x30000
H3A_G = 0x8100
H3B = 0x71000
H3B_G = 0x900
H4 = 0x76000
H4_REP = 0x4100
H5 = 0x97000
H5_REP = 0x1d00
STAMP_OFF = 0x1000000

L_FLAG = 0
L_Q = 64
L_ST = 1152
L_O = 1536
L_D = L_O + 16384
L_M = 0
L_XS = 128
L_QP = 256
L_RP = 768
L_WP = 1024
L_GS = 2048
LDS_BYTES = L_D + 256

sX, sK, sV, sWQ, sWO, sGATE, sUP, sDOWN, sC, sWM, sOUT, sDBG, sWS = 4, 6, 8, 10, 12, 16, 18, 20, 22, 24, 26, 28, 30
sWAVE = 3
sTAG, sG, sJ, sTO, sSLO, sSHI, sXCC, sLOC, sEXP = 32, 33, 34, 35, 36, 37, 38, 39, 40
sT = 42
sSTAMP = 64

LOG2E = 0x3fb8aa3b
SCALE = 0x3db504f3
EPS = 0x3727c5ac
INV512 = 0x3b000000


def p(r): return f's[{r}:{r+1}]'
def v2(r): return f'v[{r}:{r+1}]'
def v4(r): return f'v[{r}:{r+3}]'


class G:
    def __init__(self, opt):
        self.L = []
        self.o = opt
        self.nlab = 0

    def __call__(self, s):
        for line in s.strip('\n').split('\n'):
            line = line.strip()
            if line:
                self.L.append(line if line.endswith(':') or line.startswith('.') else '    ' + line)

    def lab(self, n):
        self.nlab += 1
        return f'L{n}{self.nlab}'

    def stamp(self, i):
        if self.o.get('stamps'):
            self(f's_memrealtime {p(sSTAMP + 2 * i)}')

    def dpp(self, op, d, s0, s1, ctrl, bank=0xf):
        if s1 is None:
            self(f'{op}_dpp v{d}, v{s0} {ctrl} row_mask:0xf bank_mask:{bank:#x}')
        else:
            self(f'{op}_dpp v{d}, v{s0}, v{s1} {ctrl} row_mask:0xf bank_mask:{bank:#x}')

    def poll(self, loads, tags, tmp):
        r, l = self.lab('retry'), self.lab('poll')
        self(f's_branch {l}\n{r}:\ns_sub_u32 s{sTO}, s{sTO}, 1\ns_cbranch_scc1 Lexit\n{l}:')
        loads()
        self('s_waitcnt vmcnt(0)')
        if len(tags) == 1:
            self(f'v_cmp_ne_u32 vcc, s{sTAG}, v{tags[0]}')
        else:
            self(f'v_bitop3_b32 v{tmp}, v{tags[0]}, s{sTAG}, v{tags[1]} bitop3:0x7e')
            for t in tags[2:]:
                self(f'v_bitop3_b32 v{tmp}, v{t}, s{sTAG}, v{tmp} bitop3:0xbe')
            self(f'v_cmp_ne_u32 vcc, 0, v{tmp}')
        self(f's_cbranch_vccnz {r}')

    def pair(self, dst, a, b, W):
        for c in range(2 * W):
            self(f'v_perm_b32 v{dst + c}, v{b + c // 2}, v{a + c // 2}, s{sSHI if c & 1 else sSLO}')

    def red8(self, a, lpr):
        self('s_nop 1')
        for i in range(4): self(f'v_permlane32_swap_b32 v{a+i}, v{a+4+i}')
        for i in (0, 2, 1, 3): self(f'v_add_f32 v{a+i}, v{a+i}, v{a+4+i}')
        self(f'v_permlane16_swap_b32 v{a}, v{a+2}')
        self('s_nop 0')
        self(f'v_permlane16_swap_b32 v{a+1}, v{a+3}')
        self(f'v_add_f32 v{a}, v{a}, v{a+2}\nv_add_f32 v{a+1}, v{a+1}, v{a+3}')
        steps = ['row_ror:8', 'row_ror:4']
        if lpr <= 2: steps.append('quad_perm:[2,3,0,1]')
        if lpr == 1: steps.append('quad_perm:[1,0,3,2]')
        for s in steps:
            self('s_nop 0')
            self.dpp('v_add_f32', a, a, a, s)
            self.dpp('v_add_f32', a + 1, a + 1, a + 1, s)

    def red4(self, a):
        self('s_nop 1')
        self(f'v_permlane32_swap_b32 v{a}, v{a+2}\nv_permlane32_swap_b32 v{a+1}, v{a+3}')
        self(f'v_add_f32 v{a}, v{a}, v{a+2}\nv_add_f32 v{a+1}, v{a+1}, v{a+3}')
        self('s_nop 1')
        self(f'v_permlane16_swap_b32 v{a}, v{a+1}')
        self(f'v_add_f32 v{a}, v{a}, v{a+1}')

    def sum4(self, r):
        self(f'v_pk_add_f32 {v2(r)}, {v2(r)}, {v2(r+2)}\nv_pk_add_f32 {v2(r+4)}, {v2(r+4)}, {v2(r+6)}\nv_pk_add_f32 {v2(r)}, {v2(r)}, {v2(r+4)}')

    def unpack(self, d, s):
        self(f'v_and_b32 v{d+1}, 0xffff0000, v{s}\nv_lshlrev_b32 v{d}, 16, v{s}')

    def rb2(self, d):
        self(f'v_cvt_pk_bf16_f32 v{d}, v{d}, v{d+1}')
        self.unpack(d, d)

    def rb1(self, d):
        self(f'v_cvt_pk_bf16_f32 v{d}, v{d}, v{d}\nv_lshlrev_b32 v{d}, 16, v{d}')

    def silu2(self, x, t):
        self(f'v_mul_f32 v{t}, 0xbfb8aa3b, v{x}\nv_mul_f32 v{t+1}, 0xbfb8aa3b, v{x+1}')
        self(f'v_exp_f32 v{t}, v{t}\nv_exp_f32 v{t+1}, v{t+1}')
        self(f'v_add_f32 v{t}, 1.0, v{t}\nv_add_f32 v{t+1}, 1.0, v{t+1}' if False else f'v_add_f32 v{t}, 1.0, v{t}')
        self(f'v_add_f32 v{t+1}, 1.0, v{t+1}')
        self(f'v_rcp_f32 v{t}, v{t}\nv_rcp_f32 v{t+1}, v{t+1}')
        self(f'v_mul_f32 v{x}, v{x}, v{t}\nv_mul_f32 v{x+1}, v{x+1}, v{t+1}')

    def stats_wave(self, x, t):
        self(f'v_mul_f32 v{t+1}, v{x}, v{x}\nv_add_f32 v{t}, v{x}, v{x+1}\nv_fmac_f32 v{t+1}, v{x+1}, v{x+1}')
        self('s_nop 1')
        self(f'v_permlane32_swap_b32 v{t}, v{t+1}\nv_add_f32 v{t}, v{t}, v{t+1}')
        for s in ('row_ror:8', 'row_ror:4', 'row_ror:2', 'row_ror:1'):
            self('s_nop 1')
            self.dpp('v_add_f32', t, t, t, s)

    def stats_fin(self, r):
        for i in (0, 8):
            self(f'v_pk_add_f32 {v2(r+i)}, {v2(r+i)}, {v2(r+i+2)}\nv_pk_add_f32 {v2(r+i+4)}, {v2(r+i+4)}, {v2(r+i+6)}')
        self(f'v_pk_add_f32 {v2(r)}, {v2(r)}, {v2(r+4)}\nv_pk_add_f32 {v2(r+8)}, {v2(r+8)}, {v2(r+12)}')
        self(f'v_add_f32 v{r}, v{r}, v{r+1}\nv_add_f32 v{r+1}, v{r+8}, v{r+9}')
        self(f'v_mul_f32 v{r}, {INV512:#x}, v{r}\nv_mul_f32 v{r+1}, {INV512:#x}, v{r+1}')
        self(f'v_fma_f32 v{r+1}, -v{r}, v{r}, v{r+1}\nv_max_f32 v{r+1}, 0, v{r+1}')
        self.rb2(r)
        self(f'v_add_f32 v{r+1}, {EPS:#x}, v{r+1}')
        self.rb1(r + 1)
        self(f'v_sqrt_f32 v{r+1}, v{r+1}\ns_nop 0')
        self.rb1(r + 1)
        self(f'v_rcp_f32 v{r+1}, v{r+1}')

    def ln_apply(self, x, m):
        self(f'v_sub_f32 v{x}, v{x}, v{m}\nv_sub_f32 v{x+1}, v{x+1}, v{m}')
        self.rb2(x)
        self(f'v_mul_f32 v{x}, v{x}, v{m+1}\nv_mul_f32 v{x+1}, v{x+1}, v{m+1}')
        self.rb2(x)

    def store_local(self, insts):
        a, b = self.lab('far'), self.lab('sd')
        if self.o.get('nolocal'):
            for i in insts: self(i + ' sc1')
            return
        self(f's_cmp_eq_u32 s{sLOC}, s{sEXP}\ns_cbranch_scc0 {a}')
        for i in insts: self(i)
        self(f'{b}:')
        self.tail.append((a, [i + ' sc1' for i in insts], b))

    def load_local(self):
        if not self.o.get('nolocal'):
            self(f's_load_dword s{sLOC}, {p(sDBG)}, s{sXCC} glc')

    def flush_tail(self):
        for a, insts, b in self.tail:
            self(f'{a}:')
            for i in insts: self(i)
            self(f's_branch {b}')
        self.tail = []

    def end(self):
        self('s_branch Lfin' if self.o.get('stamps') else 's_endpgm')


def gen(opt):
    g = G(opt)
    g.tail = []
    NT = opt.get('nt', 'nt')
    hdr = open('cdna_kernels/' + NAME + '.s.ref').read().split('; Override launch')[0] if opt.get('hdr', True) else ''
    g.L.append(hdr.rstrip('\n'))
    g.L.append(f'; @launch grid=(256,1,1) block=(512,1,1) lds={LDS_BYTES}')
    g(f'.amdgcn_target "amdgcn-amd-amdhsa--gfx950"\n.text\n.globl {K}\n.p2align 8\n.type {K},@function\n{K}:')
    g.stamp(0)
    g(f'''
    s_load_dwordx16 s[4:19], s[0:1], 0
    s_load_dwordx8 s[20:27], s[0:1], 64
    s_load_dwordx4 s[28:31], s[0:1], 96
    s_cmpk_ge_u32 s2, 256
    s_cbranch_scc1 Lexit0
    v_readfirstlane_b32 s{sWAVE}, v0
    s_and_b32 s{sG}, s2, 7
    s_lshr_b32 s{sJ}, s2, 3
    v_and_b32 v1, 63, v0
    s_lshr_b32 s{sWAVE}, s{sWAVE}, 6
    s_cmp_ge_u32 s{sJ}, 16
    s_cbranch_scc1 LF
    ''')
    vK, vV, vVT = 8, 40, 72
    g(f'''
    v_mov_b32 v2, 0
    ds_write_b32 v2, v2 offset:{L_FLAG}
    s_lshl_b32 s{sT}, s{sG}, 24
    s_lshl_b32 s{sT+1}, s{sJ}, 16
    s_add_u32 s{sT}, s{sT}, s{sT+1}
    s_add_u32 s{sT}, s{sT}, {(15 << 20) + 4096}
    v_and_b32 v4, 0xff, v0
    v_and_b32 v5, 0x100, v0
    v_lshlrev_b32 v4, 4, v4
    v_lshl_add_u32 v4, v5, 7, v4
    v_add_u32 v4, s{sT}, v4
    v_and_b32 v5, 12, v0
    v_and_b32 v6, 48, v0
    v_mul_u32_u24 v5, 48, v5
    v_mul_u32_u24 v6, 12, v6
    v_add_u32 v3, v4, v5
    v_sub_u32 v3, v3, v6
    s_movk_i32 s{sT+2}, 0x2000
    s_waitcnt lgkmcnt(0)
    s_barrier
    ''')
    g.stamp(1)
    g(f's_load_dword s{sTAG}, {p(sWS)}, 0')
    for base, va, vd in ((sK, 3, vK), (sV, 4, vV)):
        for n in range(8):
            g(f'global_load_dwordx4 {v4(vd + 4 * n)}, v{va}, {p(base)} offset:{-4096 if n % 2 == 0 else 0} {NT}')
            if n % 2 == 1 and n != 7: g(f'v_add_u32 v{va}, s{sT+2}, v{va}')
    g('s_branch LA2')
    vC, vXP, vMW, vQW = 6, 7, 8, 16
    g(f'''
    LF:
    s_cmp_ge_u32 s{sWAVE}, 4
    s_cbranch_scc1 LFH
    s_and_b32 s{sJ}, s{sJ}, 15
    s_and_b32 s{sT}, s{sJ}, 3
    s_and_b32 s{sT+1}, s{sJ}, 1
    s_lshl_b32 s{sT}, s{sT}, 6
    s_or_b32 s{sT}, s{sT}, s{sT+1}
    v_xor_b32 v2, s{sT}, v0
    s_lshl4_add_u32 s{sT+2}, s{sG}, s{sJ}
    s_bfe_u32 s{sT+3}, s{sJ}, 0x10002
    s_mul_i32 s{sT+4}, s{sT+3}, 6144
    s_lshl4_add_u32 s{sT+5}, s{sT+2}, s{sT+4}
    v_mul_u32_u24 v3, 12288, v2
    v_add_u32 v3, s{sT+5}, v3
    s_mul_i32 s{sT+4}, s{sT+3}, -12288
    s_addk_i32 s{sT+4}, 6144
    v_add_u32 v4, s{sT+4}, v3
    v_lshlrev_b32 v5, 2, v2
    s_waitcnt lgkmcnt(0)
    ''')
    g.stamp(1)
    g(f'''
    global_load_dword v{vC}, v5, {p(sC)}
    global_load_dwordx4 {v4(vMW)}, v3, {p(sWM)} {NT}
    global_load_dwordx4 {v4(vMW+4)}, v4, {p(sWM)} {NT}
    s_load_dword s{sTAG}, {p(sWS)}, 0
    s_lshl_b32 s{sT+1}, s{sT+1}, 1
    v_xor_b32 v3, s{sT+1}, v0
    v_lshlrev_b32 v5, 2, v3
    global_load_dword v{vXP}, v5, {p(sX)}
    v_lshrrev_b32 v4, 2, v0
    v_and_b32 v5, 3, v0
    v_lshlrev_b32 v4, 16, v4
    v_lshl_add_u32 v4, v5, 4, v4
    s_lshl_b32 s{sT+4}, s{sT+2}, 6
    s_lshl_b32 s{sT+5}, s{sT+1}, 14
    s_add_u32 s{sT+4}, s{sT+4}, s{sT+5}
    v_add_u32 v4, s{sT+4}, v4
    s_movk_i32 s{sT+6}, 0x2000
    ''')
    for n in range(4):
        g(f'global_load_dwordx4 {v4(vQW + 4 * n)}, v4, {p(sWQ)} {NT}')
        g(f'v_add_u32 v4, s{sT+6}, v4')
    g('LF2:')

    def common_consts():
        g(f's_mov_b32 s{sTO}, 0x100000')
        g(f's_mov_b32 s{sSLO}, 0x05040100\ns_mov_b32 s{sSHI}, 0x07060302')

    def xcc_setup(add):
        g(f'''
        s_getreg_b32 s{sXCC}, hwreg(HW_REG_XCC_ID, 0, 4)
        s_cmp_lt_u32 s{sXCC}, 8
        s_cselect_b32 s{sEXP}, 32, -1
        s_cselect_b32 s{sLOC}, 1, 0
        s_and_b32 s{sXCC}, s{sXCC}, 7
        s_lshl3_add_u32 s{sXCC}, s{sG}, s{sXCC}
        s_lshl_b32 s{sXCC}, s{sXCC}, 2
        ''')
        if add and not opt.get('nolocal'):
            l = g.lab('nx')
            g(f'''
            s_cmp_lg_u32 s{sWAVE}, {add[0]}
            s_cbranch_scc1 {l}
            v_mov_b32 v{add[1]}, s{sXCC}
            v_mov_b32 v{add[1]+1}, s{sLOC}
            s_mov_b64 exec, 1
            global_atomic_add v{add[1]}, v{add[1]+1}, {p(sDBG)} sc1
            s_mov_b64 exec, -1
            {l}:
            ''')

    def mk_tag():
        g(f's_mul_i32 s{sTAG}, s{sTAG}, 0x9e3779b1\ns_add_u32 s{sTAG}, s{sTAG}, 0x7f4a7c15')

    common_consts()
    xcc_setup(None)
    g(f'''
    s_cmp_eq_u32 s{sT+3}, 0
    s_cselect_b32 s{sSLO}, s{sSLO}, 0x01000504
    s_cselect_b32 s{sSHI}, s{sSHI}, 0x03020706
    ''')
    vA, vT, vS, vN = 48, 56, 72, 74
    vLW, vLR, vPA = 76, 77, 78
    g('s_waitcnt vmcnt(7)')
    g.unpack(vT, vC)
    g.silu2(vT, vT + 2)
    g(f'v_cvt_pk_bf16_f32 v{vS}, v{vT}, v{vT+1}')
    for i in range(8): g(f'v_mov_b32 v{vA+i}, 0')
    g(f'''
    v_lshrrev_b32 v5, 4, v1
    s_lshl_b32 s{sT+7}, s{sWAVE}, 3
    v_lshl_add_u32 v{vLW}, v5, 5, s{sT+7}
    ''')
    g(f'''
    v_and_b32 v{vT}, 3, v1
    v_bfe_u32 v{vT+1}, v1, 2, 3
    v_lshlrev_b32 v{vLR}, 5, v{vT}
    v_mul_u32_u24 v{vT+1}, {H1_REP}, v{vT+1}
    v_lshl_add_u32 v{vPA}, v{vT}, 3, v{vT+1}
    s_lshl_b32 s{sT+4}, s{sT+2}, 6
    s_add_u32 s{sT+4}, s{sT+4}, {H1}
    v_add_u32 v{vPA}, s{sT+4}, v{vPA}
    ''')
    g('s_waitcnt vmcnt(5)')
    g.stamp(2)
    g.pair(vT, vMW, vMW + 4, 4)
    for c in range(8): g(f'v_dot2c_f32_bf16 v{vA+c}, v{vS}, v{vT+c}')
    g.red8(vA, 1)
    g(f'ds_write_b64 v{vLW}, {v2(vA)} offset:{L_M}')
    g('s_waitcnt vmcnt(4)')
    g.unpack(vN, vXP)
    g.stats_wave(vN, vT)
    g(f'''
    v_lshrrev_b32 v{vT+2}, 5, v1
    v_and_b32 v{vT+3}, 1, v5
    v_lshlrev_b32 v{vT+2}, 5, v{vT+2}
    v_lshl_add_u32 v{vT+2}, v{vT+3}, 2, v{vT+2}
    v_add_u32 v79, s{sT+7}, v{vT+2}
    ds_write_b32 v79, v{vT} offset:{L_XS}
    s_waitcnt lgkmcnt(0)
    s_barrier
    ''')
    mk_tag()
    l = g.lab('nm')
    g(f'''
    s_cmp_lg_u32 s{sWAVE}, 0
    s_cbranch_scc1 {l}
    ds_read_b128 {v4(vT)}, v{vLR} offset:{L_M}
    ds_read_b128 {v4(vT+4)}, v{vLR} offset:{L_M+16}
    s_waitcnt lgkmcnt(0)
    ''')
    g.sum4(vT)
    g(f'''
    v_cvt_pk_bf16_f32 v{vT}, v{vT}, v{vT+1}
    v_mov_b32 v{vT+1}, s{sTAG}
    s_mov_b32 exec_hi, 0
    global_store_dwordx2 v{vPA}, {v2(vT)}, {p(sWS)} sc1
    s_mov_b32 exec_hi, -1
    {l}:
    ''')
    g.stamp(3)
    g(f'''
    s_lshl_b32 s{sT+5}, s{sT+1}, 15
    v_subrev_u32 v4, s{sT+5}, v4
    ''')
    for n in range(4, 8):
        g(f'global_load_dwordx4 {v4(vQW + 4 * n)}, v4, {p(sWQ)} {NT}')
        if n != 7: g(f'v_add_u32 v4, s{sT+6}, v4')
    g('v_mov_b32 v5, 0')
    for i in range(4): g(f'ds_read_b128 {v4(vT + 4 * i)}, v5 offset:{L_XS + 16 * i}')
    g(f's_mov_b32 s{sSLO}, 0x05040100\ns_mov_b32 s{sSHI}, 0x07060302')
    g('s_waitcnt lgkmcnt(0)')
    g.stats_fin(vT)
    g.ln_apply(vN, vT)
    for i in range(8): g(f'v_mov_b32 v{vA+i}, 0')
    g(f'''
    v_lshrrev_b32 v{vT}, 2, v3
    v_and_b32 v{vT+1}, 3, v3
    v_lshlrev_b32 v{vT}, 6, v{vT}
    v_lshl_add_u32 v5, v{vT+1}, 3, v{vT}
    s_mul_i32 s{sT+4}, s{sG}, {H1_REP}
    s_add_u32 s{sT+4}, s{sT+4}, {H1 + 4096}
    v_add_u32 v5, s{sT+4}, v5
    ''')
    g(f'''
    v_lshrrev_b32 v{vT}, 4, v1
    v_and_b32 v{vT+1}, 3, v1
    v_lshl_add_u32 v{vT}, v{vT}, 2, v{vT+1}
    v_lshl_add_u32 v{vLW}, v{vT}, 5, s{sT+7}
    v_bfe_u32 v{vT}, v1, 2, 2
    v_lshl_add_u32 v{vT}, v{vT+1}, 2, v{vT}
    v_lshlrev_b32 v{vLR}, 5, v{vT}
    s_mul_i32 s{sT+4}, s{sG}, {H2_G}
    s_lshl_b32 s{sT+5}, s{sJ}, 7
    s_add_u32 s{sT+4}, s{sT+4}, s{sT+5}
    s_add_u32 s{sT+4}, s{sT+4}, {H2}
    v_lshl_add_u32 v{vPA}, v1, 3, s{sT+4}
    ''')
    vQP = 80
    g('s_waitcnt vmcnt(4)')
    for k in range(2): g.pair(vQP + 8 * k, vQW + 8 * k, vQW + 8 * k + 4, 4)
    g('s_waitcnt vmcnt(0)')
    g.stamp(4)
    for k in range(2, 4): g.pair(vQP + 8 * k, vQW + 8 * k, vQW + 8 * k + 4, 4)
    g.load_local()
    g.poll(lambda: g(f'global_load_dwordx2 {v2(vT)}, v5, {p(sWS)} offset:-4096 sc1\nglobal_load_dwordx2 {v2(vT+2)}, v5, {p(sWS)} sc1'),
           [vT + 1, vT + 3], vT + 4)
    g.stamp(5)
    g.unpack(vT + 2, vT + 2)
    g(f'v_add_f32 v{vT+2}, 1.0, v{vT+2}\nv_add_f32 v{vT+3}, 1.0, v{vT+3}')
    g.rb2(vT + 2)
    g(f'v_pk_mul_f32 {v2(vN)}, {v2(vN)}, {v2(vT+2)}')
    g.rb2(vN)
    g.unpack(vT, vT)
    g(f'v_pk_add_f32 {v2(vN)}, {v2(vN)}, {v2(vT)}\nv_cvt_pk_bf16_f32 v{vN}, v{vN}, v{vN+1}\ns_nop 1')
    for k in range(4):
        for c in range(8): g.dpp('v_dot2c_f32_bf16', vA + c, vN, vQP + 8 * k + c, f'quad_perm:[{k},{k},{k},{k}]')
    g.red8(vA, 4)
    l = g.lab('nq')
    g(f'''
    ds_write_b64 v{vLW}, {v2(vA)} offset:{L_QP}
    s_waitcnt lgkmcnt(0)
    s_barrier
    s_cmp_lg_u32 s{sWAVE}, 0
    s_cbranch_scc1 {l}
    ds_read_b128 {v4(vT)}, v{vLR} offset:{L_QP}
    ds_read_b128 {v4(vT+4)}, v{vLR} offset:{L_QP+16}
    s_waitcnt lgkmcnt(0)
    ''')
    g.sum4(vT)
    g(f'v_cvt_pk_bf16_f32 v{vT}, v{vT}, v{vT+1}\nv_mov_b32 v{vT+1}, s{sTAG}\ns_mov_b64 exec, 0xffff')
    g.store_local([f'global_store_dwordx2 v{vPA}, {v2(vT)}, {p(sWS)}'])
    g(f's_mov_b64 exec, -1\n{l}:\ns_barrier')
    g.stamp(6)
    vRW = 8
    g(f'''
    v_lshrrev_b32 v4, 1, v2
    v_and_b32 v5, 1, v0
    v_mul_u32_u24 v4, {4*6144}, v4
    v_lshl_add_u32 v4, v5, 4, v4
    s_mul_i32 s{sT+4}, s{sT+1}, 6144
    s_lshl_b32 s{sT+5}, s{sT+2}, 5
    s_add_u32 s{sT+4}, s{sT+4}, s{sT+5}
    s_add_u32 s{sT+4}, s{sT+4}, {2048 + 3072}
    v_add_u32 v4, s{sT+4}, v4
    s_mul_i32 s{sT+5}, s{sT+1}, -12288
    s_addk_i32 s{sT+5}, 12288
    global_load_dwordx4 {v4(vRW)}, v4, {p(sWM)} offset:-3072 {NT}
    global_load_dwordx4 {v4(vRW+4)}, v4, {p(sWM)} offset:3072 {NT}
    v_add_u32 v4, s{sT+5}, v4
    global_load_dwordx4 {v4(vRW+8)}, v4, {p(sWM)} offset:-3072 {NT}
    global_load_dwordx4 {v4(vRW+12)}, v4, {p(sWM)} offset:3072 {NT}
    ''')
    for i in range(8): g(f'v_mov_b32 v{vA+i}, 0')
    g(f'''
    v_lshrrev_b32 v{vT}, 4, v1
    v_lshl_add_u32 v{vT}, v{vT}, 1, v5
    v_lshl_add_u32 v{vLW}, v{vT}, 5, s{sT+7}
    v_and_b32 v{vT}, 3, v1
    v_bfe_u32 v{vT+1}, v1, 2, 1
    v_lshl_add_u32 v{vT}, v{vT}, 1, v{vT+1}
    v_lshlrev_b32 v{vLR}, 5, v{vT}
    v_and_b32 v{vT}, 7, v1
    v_lshrrev_b32 v{vT+1}, 3, v1
    v_mul_u32_u24 v{vT+1}, {HR_REP}, v{vT+1}
    v_lshl_add_u32 v{vPA}, v{vT}, 3, v{vT+1}
    s_lshl_b32 s{sT+4}, s{sT+2}, 6
    s_add_u32 s{sT+4}, s{sT+4}, {HR}
    v_add_u32 v{vPA}, s{sT+4}, v{vPA}
    s_waitcnt vmcnt(0)
    ''')
    g.stamp(7)
    for k in range(2): g.pair(vT + 8 * k, vRW + 8 * k, vRW + 8 * k + 4, 4)
    for k in range(2):
        for c in range(8): g.dpp('v_dot2c_f32_bf16', vA + c, vS, vT + 8 * k + c, f'quad_perm:[{k},{k},{k+2},{k+2}]')
    g.red8(vA, 2)
    l = g.lab('nr')
    g(f'''
    ds_write_b64 v{vLW}, {v2(vA)} offset:{L_RP}
    s_waitcnt lgkmcnt(0)
    s_barrier
    s_cmp_lg_u32 s{sWAVE}, 0
    s_cbranch_scc1 {l}
    ds_read_b128 {v4(vT)}, v{vLR} offset:{L_RP}
    ds_read_b128 {v4(vT+4)}, v{vLR} offset:{L_RP+16}
    s_waitcnt lgkmcnt(0)
    ''')
    g.sum4(vT)
    g(f'''
    v_cvt_pk_bf16_f32 v{vT}, v{vT}, v{vT+1}
    v_mov_b32 v{vT+1}, s{sTAG}
    global_store_dwordx2 v{vPA}, {v2(vT)}, {p(sWS)} sc1
    {l}:
    s_barrier
    ''')
    g.stamp(8)
    vW, vA, vT = 12, 80, 84
    vWP = 8
    g(f'''
    v_lshrrev_b32 v{vT}, 5, v1
    v_and_b32 v{vT+1}, 15, v1
    v_lshl_add_u32 v{vT}, v{vT}, 4, v{vT+1}
    v_bfe_u32 v{vT+2}, v1, 4, 1
    v_lshlrev_b32 v{vT}, 5, v{vT}
    v_lshl_add_u32 v{vT}, v{vT+2}, 2, v{vT}
    v_add_u32 v{vLW}, s{sT+7}, v{vT}
    ''')
    for i in range(4): g(f'v_mov_b32 v{vA+i}, 0')
    g(f's_cmp_ge_u32 s{sJ}, 8\ns_cbranch_scc1 LG')

    def pair_all():
        for q in range(4):
            g(f's_waitcnt vmcnt({24 - 8 * q})')
            for k in range(4 * q, 4 * q + 4): g.pair(vWP + 4 * k, vW + 4 * k, vW + 4 * k + 2, 2)

    def gemv16(x):
        for k in range(16):
            for c in range(4): g.dpp('v_dot2c_f32_bf16', vA + c, x, vWP + 4 * k + c, f'row_newbcast:{k}')
        g.red4(vA)
        g(f'ds_write_b32 v{vLW}, v{vA} offset:{L_WP}\ns_waitcnt lgkmcnt(0)\ns_barrier')

    g(f'''
    v_lshrrev_b32 v{vT}, 5, v1
    v_lshl_add_u32 v{vT}, v{vT+2}, 6, v{vT}
    s_lshl_b32 s{sT+4}, s{sWAVE}, 1
    s_lshl_b32 s{sT+5}, s{sG}, 9
    s_add_u32 s{sT+4}, s{sT+4}, s{sT+5}
    s_lshl_b32 s{sT+4}, s{sT+4}, 10
    s_lshl_b32 s{sT+5}, s{sJ}, 7
    s_add_u32 s{sT+4}, s{sT+4}, s{sT+5}
    v_lshlrev_b32 v{vT}, 10, v{vT}
    v_lshl_add_u32 v{vT}, v{vT+1}, 3, v{vT}
    v_add_u32 v4, s{sT+4}, v{vT}
    ''')
    sB = sT + 8
    for h in range(1, 4):
        g(f's_add_u32 s{sB+2*h}, s{sWO}, {h << 17}\ns_addc_u32 s{sB+2*h+1}, s{sWO+1}, 0')
    for n in range(32):
        b = sWO if n % 4 == 0 else sB + 2 * (n % 4)
        g(f'global_load_dwordx2 {v2(vW + 2 * n)}, v4, {p(b)} {NT}')
        if n % 4 == 3 and n != 31: g(f'v_add_u32 v4, s{sT+6}, v4')
    g(f'''
    v_and_b32 v{vT}, 1, v1
    v_bfe_u32 v{vT+1}, v1, 1, 4
    v_lshl_add_u32 v{vT}, v{vT}, 4, v{vT+1}
    v_lshlrev_b32 v{vLR}, 5, v{vT}
    v_lshrrev_b32 v{vT}, 5, v0
    v_and_b32 v{vT+1}, 31, v0
    v_mul_u32_u24 v{vT}, {H4_REP}, v{vT}
    v_lshl_add_u32 v{vPA}, v{vT+1}, 3, v{vT}
    s_lshl3_add_u32 s{sT+4}, s{sG}, s{sJ}
    s_lshl_b32 s{sT+4}, s{sT+4}, 8
    s_add_u32 s{sT+4}, s{sT+4}, {H4}
    v_add_u32 v{vPA}, s{sT+4}, v{vPA}
    s_mul_i32 s{sT+4}, s{sG}, {H3B_G}
    s_add_u32 s{sT+4}, s{sT+4}, {H3B}
    v_lshl_add_u32 v5, v0, 3, s{sT+4}
    v_mov_b32 v{vT+9}, s{sTAG}
    ''')
    pair_all()
    g.stamp(9)
    g.poll(lambda: g(f'global_load_dwordx2 {v2(vT)}, v5, {p(sWS)} sc1'), [vT + 1], None)
    g.stamp(10)
    gemv16(vT)
    g(f'ds_read_b128 {v4(vT)}, v{vLR} offset:{L_WP}\nds_read_b128 {v4(vT+4)}, v{vLR} offset:{L_WP+16}\ns_waitcnt lgkmcnt(0)')
    g.sum4(vT)
    g(f'v_cvt_pk_bf16_f32 v{vT+8}, v{vT}, v{vT+1}\nglobal_store_dwordx2 v{vPA}, {v2(vT+8)}, {p(sWS)} sc1')
    g.stamp(11)
    g.end()
    g.flush_tail()
    g(f'''
    LG:
    s_cmp_eq_u32 s{sG}, 7
    s_cbranch_scc1 Lexit
    s_and_b32 s{sJ}, s{sJ}, 7
    s_lshl3_add_u32 s{sT+2}, s{sG}, s{sJ}
    s_lshl_b32 s{sT+3}, s{sT+1}, 2
    v_xor_b32 v3, s{sT+3}, v0
    v_lshrrev_b32 v{vT}, 4, v0
    v_mul_u32_u24 v{vT}, {32*3584}, v{vT}
    v_and_b32 v{vT+2}, 7, v1
    v_lshl_add_u32 v{vT}, v{vT+2}, 3, v{vT}
    s_mul_i32 s{sT+4}, s{sT+1}, {8*3584}
    s_lshl_b32 s{sT+5}, s{sT+2}, 6
    s_add_u32 s{sT+4}, s{sT+4}, s{sT+5}
    v_add_u32 v{vT}, s{sT+4}, v{vT}
    v_mov_b32 v{vT+2}, s{sGATE}
    v_mov_b32 v{vT+3}, s{sGATE+1}
    v_mov_b32 v{vT+4}, s{sUP}
    v_mov_b32 v{vT+5}, s{sUP+1}
    v_cmp_lt_u32 vcc, 7, v{vT+1}
    v_mov_b32 v{vT+1}, 0
    s_movk_i32 s{sB}, {2*3584}
    s_mov_b32 s{sB+1}, 0
    v_cndmask_b32 v4, v{vT+2}, v{vT+4}, vcc
    v_cndmask_b32 v5, v{vT+3}, v{vT+5}, vcc
    v_lshl_add_u64 v[4:5], {v2(vT)}, 0, v[4:5]
    s_mul_i32 s{sB+2}, s{sT+1}, {-16*3584}
    s_add_i32 s{sB+2}, s{sB+2}, s{sB}
    s_ashr_i32 s{sB+3}, s{sB+2}, 31
    ''')
    for n in range(32):
        g(f'global_load_dwordx2 {v2(vW + 2 * n)}, v[4:5], off offset:{3584 * (n & 1)} {NT}')
        if n % 2 == 1 and n != 31: g(f'v_lshl_add_u64 v[4:5], {p(sB + 2 if n == 15 else sB)}, 0, v[4:5]')
    vX, vGA, vSB, vCB = 104, 106, 108, 110
    g(f'''
    v_and_b32 v{vT}, 1, v1
    v_bfe_u32 v{vT+1}, v1, 1, 3
    v_lshl_add_u32 v{vT}, v{vT}, 4, v{vT+1}
    v_lshlrev_b32 v{vLR}, 5, v{vT}
    v_bfe_u32 v{vT}, v0, 4, 3
    v_and_b32 v{vT+1}, 15, v0
    v_mul_u32_u24 v{vT}, {H5_REP}, v{vT}
    v_lshl_add_u32 v{vPA}, v{vT+1}, 3, v{vT}
    s_lshl_b32 s{sT+4}, s{sT+2}, 7
    s_add_u32 s{sT+4}, s{sT+4}, {H5}
    v_add_u32 v{vPA}, s{sT+4}, v{vPA}
    s_mul_i32 s{sT+4}, s{sG}, {HR_REP}
    s_add_u32 s{sT+4}, s{sT+4}, {HR + 2048}
    v_lshl_add_u32 v2, v3, 3, s{sT+4}
    s_mul_i32 s{sT+4}, s{sG}, {H4_REP}
    s_add_u32 s{sT+4}, s{sT+4}, {H4 + 4096}
    v_lshl_add_u32 v6, v3, 3, s{sT+4}
    v_add_u32 v7, s{sT+6}, v6
    v_lshlrev_b32 v3, 2, v3
    ''')
    pair_all()
    g.stamp(9)
    g(f'global_load_dword v{vX}, v3, {p(sX)}')
    g.poll(lambda: g(f'''
        global_load_dwordx2 {v2(vGA)}, v2, {p(sWS)} offset:-2048 sc1
        global_load_dwordx2 {v2(vSB)}, v2, {p(sWS)} sc1
        global_load_dwordx2 {v2(vCB)}, v2, {p(sWS)} offset:2048 sc1'''), [vGA + 1, vSB + 1, vCB + 1], vT)
    for r in (vX, vGA, vSB, vCB): g.unpack(r, r)
    g(f'v_add_f32 v{vCB}, 1.0, v{vCB}\nv_add_f32 v{vCB+1}, 1.0, v{vCB+1}')
    g.rb2(vCB)
    vY = 112
    g(f'v_mov_b32 v{vY}, 0\nv_mov_b32 v{vY+1}, 0\nv_mov_b32 v3, 0')
    g(f's_movk_i32 s{sT+4}, 0x3f80\ns_mov_b32 s{sT+5}, 0x3f800000')
    g.stamp(10)

    def h4loads():
        for i in range(8):
            g(f'global_load_dwordx2 {v2(vT + 2 * i)}, v{6 if i < 4 else 7}, {p(sWS)} offset:{(i % 4) * 2048 - 4096} sc1')
    g.poll(h4loads, [vT + 2 * i + 1 for i in range(8)], vT + 16)
    g.stamp(11)
    for i in range(8):
        g(f'v_dot2c_f32_bf16 v{vY}, s{sT+4}, v{vT+2*i}\nv_dot2c_f32_bf16 v{vY+1}, s{sT+5}, v{vT+2*i}')
    g('s_nop 2')
    g.rb2(vY)
    g(f'v_pk_mul_f32 {v2(vY)}, {v2(vY)}, {v2(vGA)}')
    g.rb2(vY)
    g(f'v_pk_add_f32 {v2(vY)}, {v2(vY)}, {v2(vX)}')
    g.rb2(vY)
    g.stats_wave(vY, vT)
    g(f'ds_write_b32 v79, v{vT} offset:{L_GS}\ns_waitcnt lgkmcnt(0)\ns_barrier')
    for i in range(4): g(f'ds_read_b128 {v4(vT + 4 * i)}, v3 offset:{L_GS + 16 * i}')
    g('s_waitcnt lgkmcnt(0)')
    g.stats_fin(vT)
    g.ln_apply(vY, vT)
    g(f'v_pk_mul_f32 {v2(vY)}, {v2(vY)}, {v2(vCB)}')
    g.rb2(vY)
    g(f'v_pk_add_f32 {v2(vY)}, {v2(vY)}, {v2(vSB)}\nv_cvt_pk_bf16_f32 v{vY}, v{vY}, v{vY+1}\ns_nop 1')
    g.stamp(12)
    gemv16(vY)
    g(f's_cmp_ge_u32 s{sWAVE}, 2\ns_cbranch_scc1 Lexit')
    for i in range(4): g(f'ds_read_b128 {v4(vT + 4 * i)}, v{vLR} offset:{L_WP + 16 * (i & 1) + 256 * (i >> 1)}')
    g('s_waitcnt lgkmcnt(2)' if not opt.get('stamps') else 's_waitcnt lgkmcnt(0)')
    g.sum4(vT)
    g.rb2(vT)
    g.silu2(vT, vT + 2)
    g.rb2(vT)
    g('s_waitcnt lgkmcnt(0)')
    g.sum4(vT + 8)
    g.rb2(vT + 8)
    g(f'''
    v_pk_mul_f32 {v2(vT)}, {v2(vT)}, {v2(vT+8)}
    v_cvt_pk_bf16_f32 v{vT}, v{vT}, v{vT+1}
    v_mov_b32 v{vT+1}, s{sTAG}
    global_store_dwordx2 v{vPA}, {v2(vT)}, {p(sWS)} sc1
    ''')
    g.stamp(13)
    g.end()
    g(f'''
    LFH:
    s_and_b32 s{sJ}, s{sJ}, 15
    s_waitcnt lgkmcnt(0)
    s_load_dword s{sTAG}, {p(sWS)}, 0
    ''')
    xcc_setup((4, 2))
    g(f's_cmp_ge_u32 s{sJ}, 8\ns_cbranch_scc1 Lexit')
    common_consts()
    g(f'''
    v_and_b32 v4, 15, v1
    v_lshrrev_b32 v5, 4, v0
    s_lshl_b32 s{sT}, s{sJ}, 4
    s_sub_u32 s{sT}, s{sT}, 16
    v_add_u32 v5, s{sT}, v5
    s_mul_i32 s{sT+1}, s{sG}, {LSE_G}
    s_add_u32 s{sT+1}, s{sT+1}, {LSE}
    v_lshl_add_u32 v6, v4, 7, s{sT+1}
    s_mul_i32 s{sT+1}, s{sG}, {H3A_G}
    s_add_u32 s{sT+1}, s{sT+1}, {H3A}
    v_lshl_add_u32 v7, v4, 11, s{sT+1}
    v_lshl_add_u32 v7, v5, 4, v7
    s_mul_i32 s{sT+1}, s{sG}, {H3B_G}
    s_add_u32 s{sT+1}, s{sT+1}, {H3B}
    v_lshl_add_u32 v5, v5, 4, s{sT+1}
    s_mov_b32 s{sT+2}, 0x0c04000c
    s_mov_b32 s{sT+3}, 0x0402010c
    s_waitcnt lgkmcnt(0)
    ''')
    mk_tag()
    g('s_barrier\n' * 5)
    g.stamp(8)
    g.poll(lambda: g(f'global_load_dwordx4 v[8:11], v6, {p(sWS)} sc1\nglobal_load_dwordx4 v[12:15], v6, {p(sWS)} offset:16 sc1'), [9, 11, 13, 15], 16)
    g.stamp(9)
    g.load_local()
    ROT = ('row_ror:8', 'row_ror:4', 'row_ror:2', 'row_ror:1')
    for i, s in enumerate(ROT):
        for h in range(4): g.dpp('v_max_f32', 9 + 2 * h, (8 if i == 0 else 9) + 2 * h, (8 if i == 0 else 9) + 2 * h, s)
    for h in range(4): g(f'v_sub_f32 v{8+2*h}, v{8+2*h}, v{9+2*h}')
    for h in range(4): g(f'v_exp_f32 v{8+2*h}, v{8+2*h}')
    g('s_nop 1')
    for i, s in enumerate(ROT):
        for h in range(4): g.dpp('v_add_f32', 9 + 2 * h, (8 if i == 0 else 9) + 2 * h, (8 if i == 0 else 9) + 2 * h, s)
    for h in range(4): g(f'v_rcp_f32 v{9+2*h}, v{9+2*h}')
    g('s_nop 0')
    for h in range(4): g(f'v_mul_f32 v{16+h}, v{8+2*h}, v{9+2*h}')
    g(f'v_mov_b32 v21, s{sTAG}\nv_mov_b32 v23, s{sTAG}\ns_mov_b32 s{sT+4}, 0x00010001\ns_mov_b32 s{sT+5}, 0x00010001\ns_waitcnt lgkmcnt(0)')
    g.poll(lambda: g(f'global_load_dwordx4 v[8:11], v7, {p(sWS)} sc1'), [11], None)
    g.stamp(10)
    g(f'''
    v_perm_b32 v11, v9, v8, s{sT+2}
    v_pk_mul_f32 v[8:9], v[8:9], v[16:17]
    v_perm_b32 v11, v10, v11, s{sT+3}
    v_pk_mul_f32 v[10:11], v[10:11], v[18:19]
    ''')
    for s in ROT:
        for h in range(4): g.dpp('v_add_f32', 8 + h, 8 + h, 8 + h, s)
    g(f'v_cvt_pk_bf16_f32 v20, v8, v9\nv_cvt_pk_bf16_f32 v22, v10, v11\ns_mov_b64 exec, {p(sT+4)}')
    g.store_local([f'global_store_dwordx4 v5, v[20:23], {p(sWS)}'])
    g('s_mov_b64 exec, -1')
    g.stamp(11)
    g.end()
    g.flush_tail()
    g('LA2:')
    g.stamp(2)
    common_consts()
    xcc_setup((0, 2))
    vQ, vP, vT = 104, 108, 4
    for i in range(16): g(f'v_mov_b32 v{vP+i}, 0')
    g('s_waitcnt lgkmcnt(0)')
    mk_tag()
    l = g.lab('nq')
    g(f'''
    v_lshlrev_b32 v124, 4, v1
    s_cmp_lg_u32 s{sWAVE}, 0
    s_cbranch_scc1 {l}
    v_and_b32 v4, 3, v1
    v_lshrrev_b32 v5, 2, v1
    v_lshlrev_b32 v4, 9, v4
    v_lshl_add_u32 v4, v5, 5, v4
    s_mul_i32 s{sT}, s{sG}, {H2_G}
    s_add_u32 s{sT}, s{sT}, {H2}
    v_add_u32 v4, s{sT}, v4
    ''')
    g.poll(lambda: g(f'global_load_dwordx4 {v4(vVT)}, v4, {p(sWS)} sc1\nglobal_load_dwordx4 {v4(vVT+4)}, v4, {p(sWS)} offset:16 sc1'),
           [vVT + 1, vVT + 3, vVT + 5, vVT + 7], 5)
    g(f'''
    v_mov_b32 v{vVT+1}, v{vVT+2}
    v_mov_b32 v{vVT+2}, v{vVT+4}
    v_mov_b32 v{vVT+3}, v{vVT+6}
    v_mov_b32 v4, 0
    v_mov_b32 v5, 1
    ds_write_b128 v124, {v4(vVT)} offset:{L_Q}
    ds_write_b32 v4, v5 offset:{L_FLAG}
    {l}:
    v_mov_b32 v4, 0
    ''')
    r, l = g.lab('retry'), g.lab('spin')
    g(f'''
    s_branch {l}
    {r}:
    s_sub_u32 s{sTO}, s{sTO}, 1
    s_cbranch_scc1 Lexit
    {l}:
    ds_read_b32 v5, v4 offset:{L_FLAG}
    ds_read_b128 {v4(vQ)}, v124 offset:{L_Q}
    s_waitcnt lgkmcnt(0)
    v_cmp_eq_u32 vcc, 0, v5
    s_cbranch_vccnz {r}
    ''')
    g.stamp(3)
    g.load_local()
    g('s_waitcnt vmcnt(8)')
    g.stamp(4)
    for n in range(8):
        g(f'v_mfma_f32_16x16x32_bf16 {v4(vK - 4 + 4 * n)}, {v4(vK + 4 * n)}, {v4(vQ)}, 0')
    vS0 = 36
    g('s_nop 0')
    for half in range(2):
        for t in range(3):
            for beta in (2 * half, 2 * half + 1):
                for m in range(2):
                    n = 2 * beta + m
                    D = vK - 4 + 4 * n
                    pi = (beta + 1 + t) % 4
                    T = vS0 + m + 2 * (beta & 1)
                    g.dpp('v_add_f32', T, D + pi, D + beta if t == 0 else T, f'row_ror:{4 * ((beta - pi) % 4)}', 1 << beta)
    g('s_nop 0')
    g.dpp('v_mov_b32', vS0, vS0 + 2, None, 'quad_perm:[0,1,2,3]', 0xa)
    g.dpp('v_mov_b32', vS0 + 1, vS0 + 3, None, 'quad_perm:[0,1,2,3]', 0xa)
    g.rb2(vS0)
    g(f'v_mul_f32 v{vS0}, {SCALE:#x}, v{vS0}\nv_mul_f32 v{vS0+1}, {SCALE:#x}, v{vS0+1}')
    g.rb2(vS0)

    def allred(op, r, t, bits):
        for b in bits:
            if b in (2, 3):
                g('s_nop 1')
                g.dpp(op, r, r, r, f'row_ror:{1 << b}')
            else:
                g(f'v_mov_b32 v{t}, v{r}\ns_nop 1\nv_permlane{16 if b == 4 else 32}_swap_b32 v{r}, v{t}\n{op} v{r}, v{r}, v{t}')
    g(f'v_max_f32 v4, v{vS0}, v{vS0+1}')
    allred('v_max_f32', 4, 6, (3, 2, 4, 5))
    g(f'''
    v_sub_f32 v{vS0}, v{vS0}, v4
    v_sub_f32 v{vS0+1}, v{vS0+1}, v4
    v_mul_f32 v{vS0}, {LOG2E:#x}, v{vS0}
    v_mul_f32 v{vS0+1}, {LOG2E:#x}, v{vS0+1}
    v_exp_f32 v{vS0}, v{vS0}
    v_exp_f32 v{vS0+1}, v{vS0+1}
    v_and_b32 v7, 3, v1
    v_add_f32 v5, v{vS0}, v{vS0+1}
    ''')
    allred('v_add_f32', 5, 6, (3, 2, 4, 5))
    g(f'''
    s_lshl_b32 s{sT}, s{sWAVE}, 5
    v_lshl_add_u32 v6, v7, 3, s{sT}
    ds_write_b64 v6, v[4:5] offset:{L_ST}
    v_and_b32 v6, 31, v1
    v_lshlrev_b32 v6, 3, v6
    s_waitcnt lgkmcnt(0)
    s_barrier
    ds_read_b64 v[8:9], v6 offset:{L_ST}
    s_mul_i32 s{sT}, s{sG}, {LSE_G}
    s_lshl_b32 s{sT+1}, s{sJ}, 7
    s_add_u32 s{sT}, s{sT}, s{sT+1}
    s_add_u32 s{sT}, s{sT}, {LSE}
    v_lshl_add_u32 v7, v7, 3, s{sT}
    s_waitcnt lgkmcnt(0)
    v_mov_b32 v10, v8
    ''')
    g.stamp(5)
    allred('v_max_f32', 10, 6, (3, 2, 4))
    g(f'''
    v_sub_f32 v8, v8, v10
    v_sub_f32 v4, v4, v10
    v_mul_f32 v8, {LOG2E:#x}, v8
    v_mul_f32 v4, {LOG2E:#x}, v4
    v_exp_f32 v8, v8
    v_exp_f32 v4, v4
    v_mul_f32 v9, v9, v8
    ''')
    allred('v_add_f32', 9, 6, (3, 2, 4))
    l = g.lab('nl')
    g(f'''
    v_rcp_f32 v8, v9
    v_log_f32 v12, v9
    v_mov_b32 v13, s{sTAG}
    v_mul_f32 v4, v4, v8
    v_fmac_f32 v12, {LOG2E:#x}, v10
    v_mul_f32 v{vS0}, v{vS0}, v4
    v_mul_f32 v{vS0+1}, v{vS0+1}, v4
    v_cvt_pk_bf16_f32 v{vS0}, v{vS0}, v{vS0+1}
    s_cmp_lg_u32 s{sWAVE}, 0
    s_cbranch_scc1 {l}
    s_mov_b64 exec, 15
    ''')
    g.store_local([f'global_store_dwordx2 v7, v[12:13], {p(sWS)}'])
    g(f's_mov_b64 exec, -1\n{l}:')
    for c in range(4):
        for m in range(4):
            rot = 4 * ((c - m) % 4)
            g.dpp('v_mov_b32', vP + 4 * c + m, vS0, None, f'row_ror:{rot}' if rot else 'quad_perm:[0,1,2,3]', 1 << c)
    g(f'''
    s_lshl_b32 s{sT}, s{sWAVE}, 11
    v_add_u32 v124, s{sT}, v124
    v_lshlrev_b32 v125, 4, v0
    s_mul_i32 s{sT}, s{sG}, {H3A_G}
    s_lshl_b32 s{sT+1}, s{sJ}, 11
    s_add_u32 s{sT}, s{sT}, s{sT+1}
    s_add_u32 s{sT}, s{sT}, {H3A}
    v_add_u32 v126, s{sT}, v125
    s_mov_b32 s{sT+2}, 0x07060501
    s_mov_b32 s{sT+3}, 0x07060502
    s_mov_b32 s{sT+4}, 0x07060503
    ''')
    for m in range(4):
        g(f's_waitcnt vmcnt({6 - 2 * m})')
        if m == 3: g.stamp(6)
        order = (0, 4, 1, 5, 2, 6, 3, 7)
        for c in order:
            g(f'v_perm_b32 v{vVT + 4 * c + m}, v{vV + 8 * m + 4 + c // 2}, v{vV + 8 * m + c // 2}, s{sSHI if c & 1 else sSLO}')
    for c in range(4):
        for a in range(2):
            g(f'v_mfma_f32_16x16x32_bf16 {v4(8 + 4 * a)}, {v4(vP + 4 * c)}, {v4(vVT + 16 * a + 4 * c)}, {v4(8 + 4 * a) if c else 0}')
    l = g.lab('np')
    g(f'''
    s_nop 6
    ds_write_b128 v124, v[8:11] offset:{L_O}
    ds_write_b128 v124, v[12:15] offset:{L_O + 1024}
    s_waitcnt lgkmcnt(0)
    s_barrier
    s_cmp_ge_u32 s{sWAVE}, 2
    s_cbranch_scc1 {l}
    ''')
    for w in range(8): g(f'ds_read_b128 {v4(8 + 4 * w)}, v125 offset:{L_O + 2048 * w}')
    for a, b, wt in ((0, 1, 6), (2, 3, 4), (0, 2, None), (4, 5, 2), (0, 4, None), (6, 7, 0), (0, 6, None)):
        if wt is not None: g(f's_waitcnt lgkmcnt({0 if opt.get("stamps") else wt})')
        g(f'v_pk_add_f32 {v2(8+4*a)}, {v2(8+4*a)}, {v2(8+4*b)}\nv_pk_add_f32 {v2(10+4*a)}, {v2(10+4*a)}, {v2(10+4*b)}')
    for i in range(3): g(f'v_perm_b32 v{8+i}, v{8+i}, v11, s{sT+2+i}')
    g(f'v_mov_b32 v11, s{sTAG}')
    g.store_local([f'global_store_dwordx4 v126, v[8:11], {p(sWS)}'])
    g(f'{l}:')
    g.stamp(7)
    g(f'''
    s_cmp_ge_u32 s{sJ}, 8
    s_cbranch_scc1 Lexit
    s_cmp_ge_u32 s{sWAVE}, 5
    s_cbranch_scc1 Lexit
    s_barrier
    s_cmp_eq_u32 s{sWAVE}, 4
    s_cbranch_scc1 LDH
    ''')
    vW, vWP, vA, vT = 16, 48, 80, 88
    g(f'''
    s_bfe_u32 s{sT}, s{sJ}, 0x10002
    s_mul_i32 s{sT}, s{sT}, 224
    v_add_u32 v2, s{sT}, v0
    v_subrev_u32 v3, 448, v2
    v_min_u32 v2, v2, v3
    v_add_u32 v3, 256, v2
    v_subrev_u32 v4, 448, v3
    v_min_u32 v3, v3, v4
    s_lshl3_add_u32 s{sT+1}, s{sG}, s{sJ}
    s_lshl_b32 s{sT+1}, s{sT+1}, 4
    v_lshl_add_u32 v4, v2, 12, s{sT+1}
    v_lshl_add_u32 v5, v3, 12, s{sT+1}
    s_and_b32 s{sT+2}, s{sJ}, 3
    ''')
    sB = sT + 8
    for n in range(4):
        g(f's_xor_b32 s{sT+3}, s{sT+2}, {n}\ns_lshl_b32 s{sT+3}, s{sT+3}, 10\ns_add_u32 s{sB+2*n}, s{sDOWN}, s{sT+3}\ns_addc_u32 s{sB+2*n+1}, s{sDOWN+1}, 0')
    for n in range(4): g(f'global_load_dwordx4 {v4(vW + 4 * n)}, v4, {p(sB + 2 * n)} {NT}')
    l = g.lab('d1')
    for i in range(16): g(f'v_mov_b32 v{vW+16+i}, 0')
    g(f's_cmp_eq_u32 s{sWAVE}, 3\ns_cbranch_scc1 {l}')
    for n in range(4): g(f'global_load_dwordx4 {v4(vW + 16 + 4 * n)}, v5, {p(sB + 2 * n)} {NT}')
    g(f'''
    {l}:
    s_bitcmp0_b32 s{sJ}, 0
    s_cselect_b32 s{sSLO}, s{sSLO}, 0x01000504
    s_cselect_b32 s{sSHI}, s{sSHI}, 0x03020706
    s_mul_i32 s{sT}, s{sG}, {H5_REP}
    s_add_u32 s{sT}, s{sT}, {H5}
    v_lshl_add_u32 v2, v2, 4, s{sT}
    v_lshl_add_u32 v3, v3, 4, s{sT}
    v_lshrrev_b32 v6, 4, v1
    s_lshl_b32 s{sT+7}, s{sWAVE}, 3
    v_lshl_add_u32 v6, v6, 5, s{sT+7}
    ''')
    for i in range(8): g(f'v_mov_b32 v{vA+i}, 0')
    l1, l2 = g.lab('dsw'), g.lab('dj')
    g(f's_waitcnt vmcnt(0)\ns_bitcmp1_b32 s{sJ}, 1\ns_cbranch_scc1 {l1}')
    for k in range(4): g.pair(vWP + 8 * k, vW + 8 * k, vW + 8 * k + 4, 4)
    g(f's_branch {l2}\n{l1}:')
    for k in range(4): g.pair(vWP + 8 * (k ^ 1), vW + 8 * k, vW + 8 * k + 4, 4)
    g(f'{l2}:')
    g.stamp(8)
    g.poll(lambda: g(f'global_load_dwordx4 {v4(vT)}, v2, {p(sWS)} sc1\nglobal_load_dwordx4 {v4(vT+4)}, v3, {p(sWS)} sc1'),
           [vT + 1, vT + 3, vT + 5, vT + 7], vT + 8)
    g.stamp(9)
    for k in range(4):
        for c in range(8): g(f'v_dot2c_f32_bf16 v{vA+c}, v{vT+2*k}, v{vWP+8*k+c}')
    g.red8(vA, 1)
    g(f'ds_write_b64 v6, {v2(vA)} offset:{L_D}\ns_waitcnt lgkmcnt(0)\ns_barrier')
    g.stamp(10)
    g.end()
    g.flush_tail()
    g(f'''
    LDH:
    s_lshl3_add_u32 s{sT+1}, s{sG}, s{sJ}
    s_lshl_b32 s{sT+1}, s{sT+1}, 2
    v_and_b32 v2, 3, v1
    v_lshlrev_b32 v6, 5, v2
    v_add_u32 v2, s{sT+1}, v2
    v_lshlrev_b32 v7, 2, v2
    global_load_dword v8, v7, {p(sX)}
    s_mul_i32 s{sT}, s{sG}, {HR_REP}
    s_add_u32 s{sT}, s{sT}, {HR + 3072}
    v_lshl_add_u32 v3, v2, 3, s{sT}
    s_mul_i32 s{sT}, s{sG}, {H4_REP}
    s_add_u32 s{sT}, s{sT}, {H4}
    v_lshl_add_u32 v4, v2, 3, s{sT}
    v_bfe_u32 v5, v1, 2, 3
    v_lshl_add_u32 v4, v5, 11, v4
    ''')
    g.poll(lambda: g(f'''
        global_load_dwordx2 v[10:11], v3, {p(sWS)} offset:-3072 sc1
        global_load_dwordx2 v[12:13], v3, {p(sWS)} offset:3072 sc1
        global_load_dwordx2 v[14:15], v4, {p(sWS)} sc1'''), [11, 13, 15], 16)
    g.stamp(8)
    for r in (14, 8, 10, 12): g.unpack(r, r)
    allred('v_add_f32', 14, 16, (3, 2, 4))
    allred('v_add_f32', 15, 16, (3, 2, 4))
    g.rb2(14)
    g('v_pk_mul_f32 v[14:15], v[14:15], v[10:11]')
    g.rb2(14)
    g('v_pk_add_f32 v[14:15], v[14:15], v[8:9]')
    g.rb2(14)
    g(f'''
    s_mov_b64 exec, 15
    s_barrier
    ds_read_b128 v[16:19], v6 offset:{L_D}
    ds_read_b128 v[20:23], v6 offset:{L_D+16}
    s_waitcnt lgkmcnt(0)
    ''')
    g.sum4(16)
    g.rb2(16)
    g('v_pk_mul_f32 v[16:17], v[16:17], v[12:13]')
    g.rb2(16)
    g(f'''
    v_pk_add_f32 v[16:17], v[16:17], v[14:15]
    v_cvt_pk_bf16_f32 v16, v16, v17
    global_store_dword v7, v16, {p(sOUT)}
    ''')
    g.stamp(10)
    g(f'''
    s_cmp_lg_u32 s2, 0
    s_cbranch_scc1 Lexit
    v_mov_b32 v2, 0
    v_mov_b32 v3, s{sTAG}
    global_store_dword v2, v3, {p(sWS)} sc1
    Lexit:
    ''')
    if opt.get('stamps'):
        g(f'''
        Lfin:
        s_memrealtime {p(sSTAMP + 28)}
        s_getreg_b32 s{sSTAMP + 30}, hwreg(HW_REG_XCC_ID, 0, 4)
        s_mov_b64 exec, 1
        s_lshl3_add_u32 s{sT}, s2, s{sWAVE}
        s_lshl_b32 s{sT}, s{sT}, 6
        s_add_u32 s{sT}, s{sT}, {STAMP_OFF}
        v_mov_b32 v2, s{sT}
        s_waitcnt lgkmcnt(0)
        ''')
        for i in range(16):
            g(f'v_mov_b32 v3, s{sSTAMP + 2 * i}\nglobal_store_dword v2, v3, {p(sWS)} offset:{4 * i}')
    g('Lexit0:\ns_endpgm')
    g(f'''
    .section .rodata,"a"
    .p2align 6
    .amdhsa_kernel {K}
    ''')
    for d in ('next_free_vgpr 128', f'next_free_sgpr {96 if opt.get("stamps") else 64}', 'accum_offset 128', 'group_segment_fixed_size 0', 'kernarg_size 112',
              'user_sgpr_count 2', 'user_sgpr_kernarg_segment_ptr 1', 'system_sgpr_workgroup_id_x 1', 'float_denorm_mode_32 3'):
        g.L.append('  .amdhsa_' + d)
    g('.end_amdhsa_kernel')
    return '\n'.join(g.L) + '\n'


if __name__ == '__main__':
    opt = {}
    out = sys.argv[1]
    for a in sys.argv[2:]:
        k, _, v = a.partition('=')
        opt[k] = v if _ else True
    open(out, 'w').write(gen(opt))
```

```python
import sys

NAME = 'adaLN_cond__sliding_block_cached__swiglu_ffn__decode'
K = NAME + '_kernel'

H1 = 0x01000
H1_REP = 0x2100
HR = 0x12000
HR_REP = 0x2100
H2 = 0x23000
H2_G = 0x900
LSE = 0x28000
LSE_G = 0x900
H3A = 0x30000
H3A_G = 0x8100
H3B = 0x71000
H3B_G = 0x900
H4 = 0x76000
H4_REP = 0x4100
H5 = 0x97000
H5_REP = 0x1d00
STAMP_OFF = 0x1000000

L_FLAG = 0
L_Q = 64
L_ST = 1152
L_O = 1536
L_D = L_O + 16384
L_M = 0
L_XS = 128
L_QP = 256
L_RP = 768
L_WP = 1024
L_GS = 2048
LDS_BYTES = L_D + 256

sX, sK, sV, sWQ, sWO, sGATE, sUP, sDOWN, sC, sWM, sOUT, sDBG, sWS = 4, 6, 8, 10, 12, 16, 18, 20, 22, 24, 26, 28, 30
sWAVE = 3
sTAG, sG, sJ, sTO, sSLO, sSHI, sXCC, sLOC, sEXP = 32, 33, 34, 35, 36, 37, 38, 39, 40
sT = 42
sSTAMP = 64

LOG2E = 0x3fb8aa3b
SCALE = 0x3db504f3
EPS = 0x3727c5ac
INV512 = 0x3b000000


def p(r): return f's[{r}:{r+1}]'
def v2(r): return f'v[{r}:{r+1}]'
def v4(r): return f'v[{r}:{r+3}]'


class G:
    def __init__(self, opt):
        self.L = []
        self.o = opt
        self.nlab = 0

    def __call__(self, s):
        for line in s.strip('\n').split('\n'):
            line = line.strip()
            if line:
                self.L.append(line if line.endswith(':') or line.startswith('.') else '    ' + line)

    def lab(self, n):
        self.nlab += 1
        return f'L{n}{self.nlab}'

    def stamp(self, i):
        if self.o.get('stamps'):
            self(f's_memrealtime {p(sSTAMP + 2 * i)}')

    def dpp(self, op, d, s0, s1, ctrl, bank=0xf):
        if s1 is None:
            self(f'{op}_dpp v{d}, v{s0} {ctrl} row_mask:0xf bank_mask:{bank:#x}')
        else:
            self(f'{op}_dpp v{d}, v{s0}, v{s1} {ctrl} row_mask:0xf bank_mask:{bank:#x}')

    def poll(self, loads, tags, tmp):
        r, l = self.lab('retry'), self.lab('poll')
        self(f's_branch {l}\n{r}:\ns_sub_u32 s{sTO}, s{sTO}, 1\ns_cbranch_scc1 Lexit\n{l}:')
        loads()
        self('s_waitcnt vmcnt(0)')
        if len(tags) == 1:
            self(f'v_cmp_ne_u32 vcc, s{sTAG}, v{tags[0]}')
        else:
            self(f'v_bitop3_b32 v{tmp}, v{tags[0]}, s{sTAG}, v{tags[1]} bitop3:0x7e')
            for t in tags[2:]:
                self(f'v_bitop3_b32 v{tmp}, v{t}, s{sTAG}, v{tmp} bitop3:0xbe')
            self(f'v_cmp_ne_u32 vcc, 0, v{tmp}')
        self(f's_cbranch_vccnz {r}')

    def pair(self, dst, a, b, W):
        for c in range(2 * W):
            self(f'v_perm_b32 v{dst + c}, v{b + c // 2}, v{a + c // 2}, s{sSHI if c & 1 else sSLO}')

    def red8(self, a, lpr):
        self('s_nop 1')
        for i in range(4): self(f'v_permlane32_swap_b32 v{a+i}, v{a+4+i}')
        for i in (0, 2, 1, 3): self(f'v_add_f32 v{a+i}, v{a+i}, v{a+4+i}')
        self(f'v_permlane16_swap_b32 v{a}, v{a+2}')
        self('s_nop 0')
        self(f'v_permlane16_swap_b32 v{a+1}, v{a+3}')
        self(f'v_add_f32 v{a}, v{a}, v{a+2}\nv_add_f32 v{a+1}, v{a+1}, v{a+3}')
        steps = ['row_ror:8', 'row_ror:4']
        if lpr <= 2: steps.append('quad_perm:[2,3,0,1]')
        if lpr == 1: steps.append('quad_perm:[1,0,3,2]')
        for s in steps:
            self('s_nop 0')
            self.dpp('v_add_f32', a, a, a, s)
            self.dpp('v_add_f32', a + 1, a + 1, a + 1, s)

    def red4(self, a):
        self('s_nop 1')
        self(f'v_permlane32_swap_b32 v{a}, v{a+2}\nv_permlane32_swap_b32 v{a+1}, v{a+3}')
        self(f'v_add_f32 v{a}, v{a}, v{a+2}\nv_add_f32 v{a+1}, v{a+1}, v{a+3}')
        self('s_nop 1')
        self(f'v_permlane16_swap_b32 v{a}, v{a+1}')
        self(f'v_add_f32 v{a}, v{a}, v{a+1}')

    def sum4(self, r):
        self(f'v_pk_add_f32 {v2(r)}, {v2(r)}, {v2(r+2)}\nv_pk_add_f32 {v2(r+4)}, {v2(r+4)}, {v2(r+6)}\nv_pk_add_f32 {v2(r)}, {v2(r)}, {v2(r+4)}')

    def unpack(self, d, s):
        self(f'v_and_b32 v{d+1}, 0xffff0000, v{s}\nv_lshlrev_b32 v{d}, 16, v{s}')

    def rb2(self, d):
        self(f'v_cvt_pk_bf16_f32 v{d}, v{d}, v{d+1}')
        self.unpack(d, d)

    def rb1(self, d):
        self(f'v_cvt_pk_bf16_f32 v{d}, v{d}, v{d}\nv_lshlrev_b32 v{d}, 16, v{d}')

    def silu2(self, x, t):
        self(f'v_mul_f32 v{t}, 0xbfb8aa3b, v{x}\nv_mul_f32 v{t+1}, 0xbfb8aa3b, v{x+1}')
        self(f'v_exp_f32 v{t}, v{t}\nv_exp_f32 v{t+1}, v{t+1}')
        self(f'v_add_f32 v{t}, 1.0, v{t}\nv_add_f32 v{t+1}, 1.0, v{t+1}' if False else f'v_add_f32 v{t}, 1.0, v{t}')
        self(f'v_add_f32 v{t+1}, 1.0, v{t+1}')
        self(f'v_rcp_f32 v{t}, v{t}\nv_rcp_f32 v{t+1}, v{t+1}')
        self(f'v_mul_f32 v{x}, v{x}, v{t}\nv_mul_f32 v{x+1}, v{x+1}, v{t+1}')

    def stats_wave(self, x, t):
        self(f'v_mul_f32 v{t+1}, v{x}, v{x}\nv_add_f32 v{t}, v{x}, v{x+1}\nv_fmac_f32 v{t+1}, v{x+1}, v{x+1}')
        self('s_nop 1')
        self(f'v_permlane32_swap_b32 v{t}, v{t+1}\nv_add_f32 v{t}, v{t}, v{t+1}')
        for s in ('row_ror:8', 'row_ror:4', 'row_ror:2', 'row_ror:1'):
            self('s_nop 1')
            self.dpp('v_add_f32', t, t, t, s)

    def stats_fin(self, r):
        for i in (0, 8):
            self(f'v_pk_add_f32 {v2(r+i)}, {v2(r+i)}, {v2(r+i+2)}\nv_pk_add_f32 {v2(r+i+4)}, {v2(r+i+4)}, {v2(r+i+6)}')
        self(f'v_pk_add_f32 {v2(r)}, {v2(r)}, {v2(r+4)}\nv_pk_add_f32 {v2(r+8)}, {v2(r+8)}, {v2(r+12)}')
        self(f'v_add_f32 v{r}, v{r}, v{r+1}\nv_add_f32 v{r+1}, v{r+8}, v{r+9}')
        self(f'v_mul_f32 v{r}, {INV512:#x}, v{r}\nv_mul_f32 v{r+1}, {INV512:#x}, v{r+1}')
        self(f'v_fma_f32 v{r+1}, -v{r}, v{r}, v{r+1}\nv_max_f32 v{r+1}, 0, v{r+1}')
        self.rb2(r)
        self(f'v_add_f32 v{r+1}, {EPS:#x}, v{r+1}')
        self.rb1(r + 1)
        self(f'v_sqrt_f32 v{r+1}, v{r+1}\ns_nop 0')
        self.rb1(r + 1)
        self(f'v_rcp_f32 v{r+1}, v{r+1}')

    def ln_apply(self, x, m):
        self(f'v_sub_f32 v{x}, v{x}, v{m}\nv_sub_f32 v{x+1}, v{x+1}, v{m}')
        self.rb2(x)
        self(f'v_mul_f32 v{x}, v{x}, v{m+1}\nv_mul_f32 v{x+1}, v{x+1}, v{m+1}')
        self.rb2(x)

    def store_local(self, insts):
        a, b = self.lab('far'), self.lab('sd')
        if self.o.get('nolocal'):
            for i in insts: self(i + ' sc1')
            return
        self(f's_cmp_eq_u32 s{sLOC}, s{sEXP}\ns_cbranch_scc0 {a}')
        for i in insts: self(i)
        self(f'{b}:')
        self.tail.append((a, [i + ' sc1' for i in insts], b))

    def load_local(self):
        if not self.o.get('nolocal'):
            self(f's_load_dword s{sLOC}, {p(sDBG)}, s{sXCC} glc')

    def flush_tail(self):
        for a, insts, b in self.tail:
            self(f'{a}:')
            for i in insts: self(i)
            self(f's_branch {b}')
        self.tail = []

    def end(self):
        self('s_branch Lfin' if self.o.get('stamps') else 's_endpgm')


def gen(opt):
    g = G(opt)
    g.tail = []
    NT = opt.get('nt', 'nt')
    hdr = open('cdna_kernels/' + NAME + '.s.ref').read().split('; Override launch')[0] if opt.get('hdr', True) else ''
    g.L.append(hdr.rstrip('\n'))
    g.L.append(f'; @launch grid=(256,1,1) block=(512,1,1) lds={LDS_BYTES}')
    g(f'.amdgcn_target "amdgcn-amd-amdhsa--gfx950"\n.text\n.globl {K}\n.p2align 8\n.type {K},@function\n{K}:')
    g.stamp(0)
    g(f'''
    s_load_dwordx16 s[4:19], s[0:1], 0
    s_load_dwordx8 s[20:27], s[0:1], 64
    s_load_dwordx4 s[28:31], s[0:1], 96
    s_cmpk_ge_u32 s2, 256
    s_cbranch_scc1 Lexit0
    v_readfirstlane_b32 s{sWAVE}, v0
    s_and_b32 s{sG}, s2, 7
    s_lshr_b32 s{sJ}, s2, 3
    v_and_b32 v1, 63, v0
    s_lshr_b32 s{sWAVE}, s{sWAVE}, 6
    s_cmp_ge_u32 s{sJ}, 16
    s_cbranch_scc1 LF
    ''')
    vK, vV, vVT = 8, 40, 72
    g(f'''
    v_mov_b32 v2, 0
    ds_write_b32 v2, v2 offset:{L_FLAG}
    s_lshl_b32 s{sT}, s{sG}, 24
    s_lshl_b32 s{sT+1}, s{sJ}, 16
    s_add_u32 s{sT}, s{sT}, s{sT+1}
    s_add_u32 s{sT}, s{sT}, {(15 << 20) + 4096}
    v_and_b32 v4, 0xff, v0
    v_and_b32 v5, 0x100, v0
    v_lshlrev_b32 v4, 4, v4
    v_lshl_add_u32 v4, v5, 7, v4
    v_add_u32 v4, s{sT}, v4
    v_and_b32 v5, 12, v0
    v_and_b32 v6, 48, v0
    v_mul_u32_u24 v5, 48, v5
    v_mul_u32_u24 v6, 12, v6
    v_add_u32 v3, v4, v5
    v_sub_u32 v3, v3, v6
    s_movk_i32 s{sT+2}, 0x2000
    s_waitcnt lgkmcnt(0)
    s_barrier
    ''')
    g.stamp(1)
    g(f's_load_dword s{sTAG}, {p(sWS)}, 0')
    for base, va, vd in ((sK, 3, vK), (sV, 4, vV)):
        for n in range(8):
            g(f'global_load_dwordx4 {v4(vd + 4 * n)}, v{va}, {p(base)} offset:{-4096 if n % 2 == 0 else 0} {NT}')
            if n % 2 == 1 and n != 7: g(f'v_add_u32 v{va}, s{sT+2}, v{va}')
    g('s_branch LA2')
    vC, vXP, vMW, vQW = 6, 7, 8, 16
    g(f'''
    LF:
    s_cmp_ge_u32 s{sWAVE}, 4
    s_cbranch_scc1 LFH
    s_and_b32 s{sJ}, s{sJ}, 15
    s_and_b32 s{sT}, s{sJ}, 3
    s_and_b32 s{sT+1}, s{sJ}, 1
    s_lshl_b32 s{sT}, s{sT}, 6
    s_or_b32 s{sT}, s{sT}, s{sT+1}
    v_xor_b32 v2, s{sT}, v0
    s_lshl4_add_u32 s{sT+2}, s{sG}, s{sJ}
    s_bfe_u32 s{sT+3}, s{sJ}, 0x10002
    s_mul_i32 s{sT+4}, s{sT+3}, 6144
    s_lshl4_add_u32 s{sT+5}, s{sT+2}, s{sT+4}
    v_mul_u32_u24 v3, 12288, v2
    v_add_u32 v3, s{sT+5}, v3
    s_mul_i32 s{sT+4}, s{sT+3}, -12288
    s_addk_i32 s{sT+4}, 6144
    v_add_u32 v4, s{sT+4}, v3
    v_lshlrev_b32 v5, 2, v2
    s_waitcnt lgkmcnt(0)
    ''')
    g.stamp(1)
    g(f'''
    global_load_dword v{vC}, v5, {p(sC)}
    global_load_dwordx4 {v4(vMW)}, v3, {p(sWM)} {NT}
    global_load_dwordx4 {v4(vMW+4)}, v4, {p(sWM)} {NT}
    s_load_dword s{sTAG}, {p(sWS)}, 0
    s_lshl_b32 s{sT+1}, s{sT+1}, 1
    v_xor_b32 v3, s{sT+1}, v0
    v_lshlrev_b32 v5, 2, v3
    global_load_dword v{vXP}, v5, {p(sX)}
    v_lshrrev_b32 v4, 2, v0
    v_and_b32 v5, 3, v0
    v_lshlrev_b32 v4, 16, v4
    v_lshl_add_u32 v4, v5, 4, v4
    s_lshl_b32 s{sT+4}, s{sT+2}, 6
    s_lshl_b32 s{sT+5}, s{sT+1}, 14
    s_add_u32 s{sT+4}, s{sT+4}, s{sT+5}
    v_add_u32 v4, s{sT+4}, v4
    s_movk_i32 s{sT+6}, 0x2000
    ''')
    for n in range(4):
        g(f'global_load_dwordx4 {v4(vQW + 4 * n)}, v4, {p(sWQ)} {NT}')
        g(f'v_add_u32 v4, s{sT+6}, v4')
    g('LF2:')

    def common_consts():
        g(f's_mov_b32 s{sTO}, 0x100000')
        g(f's_mov_b32 s{sSLO}, 0x05040100\ns_mov_b32 s{sSHI}, 0x07060302')

    def xcc_setup(add):
        g(f'''
        s_getreg_b32 s{sXCC}, hwreg(HW_REG_XCC_ID, 0, 4)
        s_cmp_lt_u32 s{sXCC}, 8
        s_cselect_b32 s{sEXP}, 32, -1
        s_cselect_b32 s{sLOC}, 1, 0
        s_and_b32 s{sXCC}, s{sXCC}, 7
        s_lshl3_add_u32 s{sXCC}, s{sG}, s{sXCC}
        s_lshl_b32 s{sXCC}, s{sXCC}, 2
        ''')
        if add and not opt.get('nolocal'):
            l = g.lab('nx')
            g(f'''
            s_cmp_lg_u32 s{sWAVE}, {add[0]}
            s_cbranch_scc1 {l}
            v_mov_b32 v{add[1]}, s{sXCC}
            v_mov_b32 v{add[1]+1}, s{sLOC}
            s_mov_b64 exec, 1
            global_atomic_add v{add[1]}, v{add[1]+1}, {p(sDBG)} sc1
            s_mov_b64 exec, -1
            {l}:
            ''')

    def mk_tag():
        g(f's_mul_i32 s{sTAG}, s{sTAG}, 0x9e3779b1\ns_add_u32 s{sTAG}, s{sTAG}, 0x7f4a7c15')

    common_consts()
    xcc_setup(None)
    g(f'''
    s_cmp_eq_u32 s{sT+3}, 0
    s_cselect_b32 s{sSLO}, s{sSLO}, 0x01000504
    s_cselect_b32 s{sSHI}, s{sSHI}, 0x03020706
    ''')
    vA, vT, vS, vN = 48, 56, 72, 74
    vLW, vLR, vPA = 76, 77, 78
    g('s_waitcnt vmcnt(7)')
    g.unpack(vT, vC)
    g.silu2(vT, vT + 2)
    g(f'v_cvt_pk_bf16_f32 v{vS}, v{vT}, v{vT+1}')
    for i in range(8): g(f'v_mov_b32 v{vA+i}, 0')
    g(f'''
    v_lshrrev_b32 v5, 4, v1
    s_lshl_b32 s{sT+7}, s{sWAVE}, 3
    v_lshl_add_u32 v{vLW}, v5, 5, s{sT+7}
    ''')
    g(f'''
    v_and_b32 v{vT}, 3, v1
    v_bfe_u32 v{vT+1}, v1, 2, 3
    v_lshlrev_b32 v{vLR}, 5, v{vT}
    v_mul_u32_u24 v{vT+1}, {H1_REP}, v{vT+1}
    v_lshl_add_u32 v{vPA}, v{vT}, 3, v{vT+1}
    s_lshl_b32 s{sT+4}, s{sT+2}, 6
    s_add_u32 s{sT+4}, s{sT+4}, {H1}
    v_add_u32 v{vPA}, s{sT+4}, v{vPA}
    ''')
    g('s_waitcnt vmcnt(5)')
    g.stamp(2)
    g.pair(vT, vMW, vMW + 4, 4)
    for c in range(8): g(f'v_dot2c_f32_bf16 v{vA+c}, v{vS}, v{vT+c}')
    g.red8(vA, 1)
    g(f'ds_write_b64 v{vLW}, {v2(vA)} offset:{L_M}')
    g('s_waitcnt vmcnt(4)')
    g.unpack(vN, vXP)
    g.stats_wave(vN, vT)
    g(f'''
    v_lshrrev_b32 v{vT+2}, 5, v1
    v_and_b32 v{vT+3}, 1, v5
    v_lshlrev_b32 v{vT+2}, 5, v{vT+2}
    v_lshl_add_u32 v{vT+2}, v{vT+3}, 2, v{vT+2}
    v_add_u32 v79, s{sT+7}, v{vT+2}
    ds_write_b32 v79, v{vT} offset:{L_XS}
    s_waitcnt lgkmcnt(0)
    s_barrier
    ''')
    mk_tag()
    l = g.lab('nm')
    g(f'''
    s_cmp_lg_u32 s{sWAVE}, 0
    s_cbranch_scc1 {l}
    ds_read_b128 {v4(vT)}, v{vLR} offset:{L_M}
    ds_read_b128 {v4(vT+4)}, v{vLR} offset:{L_M+16}
    s_waitcnt lgkmcnt(0)
    ''')
    g.sum4(vT)
    g(f'''
    v_cvt_pk_bf16_f32 v{vT}, v{vT}, v{vT+1}
    v_mov_b32 v{vT+1}, s{sTAG}
    s_mov_b32 exec_hi, 0
    global_store_dwordx2 v{vPA}, {v2(vT)}, {p(sWS)} sc1
    s_mov_b32 exec_hi, -1
    {l}:
    ''')
    g.stamp(3)
    g(f'''
    s_lshl_b32 s{sT+5}, s{sT+1}, 15
    v_subrev_u32 v4, s{sT+5}, v4
    ''')
    for n in range(4, 8):
        g(f'global_load_dwordx4 {v4(vQW + 4 * n)}, v4, {p(sWQ)} {NT}')
        if n != 7: g(f'v_add_u32 v4, s{sT+6}, v4')
    g('v_mov_b32 v5, 0')
    for i in range(4): g(f'ds_read_b128 {v4(vT + 4 * i)}, v5 offset:{L_XS + 16 * i}')
    g(f's_mov_b32 s{sSLO}, 0x05040100\ns_mov_b32 s{sSHI}, 0x07060302')
    g('s_waitcnt lgkmcnt(0)')
    g.stats_fin(vT)
    g.ln_apply(vN, vT)
    for i in range(8): g(f'v_mov_b32 v{vA+i}, 0')
    g(f'''
    v_lshrrev_b32 v{vT}, 2, v3
    v_and_b32 v{vT+1}, 3, v3
    v_lshlrev_b32 v{vT}, 6, v{vT}
    v_lshl_add_u32 v5, v{vT+1}, 3, v{vT}
    s_mul_i32 s{sT+4}, s{sG}, {H1_REP}
    s_add_u32 s{sT+4}, s{sT+4}, {H1 + 4096}
    v_add_u32 v5, s{sT+4}, v5
    ''')
    g(f'''
    v_lshrrev_b32 v{vT}, 4, v1
    v_and_b32 v{vT+1}, 3, v1
    v_lshl_add_u32 v{vT}, v{vT}, 2, v{vT+1}
    v_lshl_add_u32 v{vLW}, v{vT}, 5, s{sT+7}
    v_bfe_u32 v{vT}, v1, 2, 2
    v_lshl_add_u32 v{vT}, v{vT+1}, 2, v{vT}
    v_lshlrev_b32 v{vLR}, 5, v{vT}
    s_mul_i32 s{sT+4}, s{sG}, {H2_G}
    s_lshl_b32 s{sT+5}, s{sJ}, 7
    s_add_u32 s{sT+4}, s{sT+4}, s{sT+5}
    s_add_u32 s{sT+4}, s{sT+4}, {H2}
    v_lshl_add_u32 v{vPA}, v1, 3, s{sT+4}
    ''')
    vQP = 80
    g('s_waitcnt vmcnt(4)')
    for k in range(2): g.pair(vQP + 8 * k, vQW + 8 * k, vQW + 8 * k + 4, 4)
    g('s_waitcnt vmcnt(0)')
    g.stamp(4)
    for k in range(2, 4): g.pair(vQP + 8 * k, vQW + 8 * k, vQW + 8 * k + 4, 4)
    g.load_local()
    g.poll(lambda: g(f'global_load_dwordx2 {v2(vT)}, v5, {p(sWS)} offset:-4096 sc1\nglobal_load_dwordx2 {v2(vT+2)}, v5, {p(sWS)} sc1'),
           [vT + 1, vT + 3], vT + 4)
    g.stamp(5)
    g.unpack(vT + 2, vT + 2)
    g(f'v_add_f32 v{vT+2}, 1.0, v{vT+2}\nv_add_f32 v{vT+3}, 1.0, v{vT+3}')
    g.rb2(vT + 2)
    g(f'v_pk_mul_f32 {v2(vN)}, {v2(vN)}, {v2(vT+2)}')
    g.rb2(vN)
    g.unpack(vT, vT)
    g(f'v_pk_add_f32 {v2(vN)}, {v2(vN)}, {v2(vT)}\nv_cvt_pk_bf16_f32 v{vN}, v{vN}, v{vN+1}\ns_nop 1')
    for k in range(4):
        for c in range(8): g.dpp('v_dot2c_f32_bf16', vA + c, vN, vQP + 8 * k + c, f'quad_perm:[{k},{k},{k},{k}]')
    g.red8(vA, 4)
    l = g.lab('nq')
    g(f'''
    ds_write_b64 v{vLW}, {v2(vA)} offset:{L_QP}
    s_waitcnt lgkmcnt(0)
    s_barrier
    s_cmp_lg_u32 s{sWAVE}, 0
    s_cbranch_scc1 {l}
    ds_read_b128 {v4(vT)}, v{vLR} offset:{L_QP}
    ds_read_b128 {v4(vT+4)}, v{vLR} offset:{L_QP+16}
    s_waitcnt lgkmcnt(0)
    ''')
    g.sum4(vT)
    g(f'v_cvt_pk_bf16_f32 v{vT}, v{vT}, v{vT+1}\nv_mov_b32 v{vT+1}, s{sTAG}\ns_mov_b64 exec, 0xffff')
    g.store_local([f'global_store_dwordx2 v{vPA}, {v2(vT)}, {p(sWS)}'])
    g(f's_mov_b64 exec, -1\n{l}:\ns_barrier')
    g.stamp(6)
    vRW = 8
    g(f'''
    v_lshrrev_b32 v4, 1, v2
    v_and_b32 v5, 1, v0
    v_mul_u32_u24 v4, {4*6144}, v4
    v_lshl_add_u32 v4, v5, 4, v4
    s_mul_i32 s{sT+4}, s{sT+1}, 6144
    s_lshl_b32 s{sT+5}, s{sT+2}, 5
    s_add_u32 s{sT+4}, s{sT+4}, s{sT+5}
    s_add_u32 s{sT+4}, s{sT+4}, {2048 + 3072}
    v_add_u32 v4, s{sT+4}, v4
    s_mul_i32 s{sT+5}, s{sT+1}, -12288
    s_addk_i32 s{sT+5}, 12288
    global_load_dwordx4 {v4(vRW)}, v4, {p(sWM)} offset:-3072 {NT}
    global_load_dwordx4 {v4(vRW+4)}, v4, {p(sWM)} offset:3072 {NT}
    v_add_u32 v4, s{sT+5}, v4
    global_load_dwordx4 {v4(vRW+8)}, v4, {p(sWM)} offset:-3072 {NT}
    global_load_dwordx4 {v4(vRW+12)}, v4, {p(sWM)} offset:3072 {NT}
    ''')
    for i in range(8): g(f'v_mov_b32 v{vA+i}, 0')
    g(f'''
    v_lshrrev_b32 v{vT}, 4, v1
    v_lshl_add_u32 v{vT}, v{vT}, 1, v5
    v_lshl_add_u32 v{vLW}, v{vT}, 5, s{sT+7}
    v_and_b32 v{vT}, 3, v1
    v_bfe_u32 v{vT+1}, v1, 2, 1
    v_lshl_add_u32 v{vT}, v{vT}, 1, v{vT+1}
    v_lshlrev_b32 v{vLR}, 5, v{vT}
    v_and_b32 v{vT}, 7, v1
    v_lshrrev_b32 v{vT+1}, 3, v1
    v_mul_u32_u24 v{vT+1}, {HR_REP}, v{vT+1}
    v_lshl_add_u32 v{vPA}, v{vT}, 3, v{vT+1}
    s_lshl_b32 s{sT+4}, s{sT+2}, 6
    s_add_u32 s{sT+4}, s{sT+4}, {HR}
    v_add_u32 v{vPA}, s{sT+4}, v{vPA}
    s_waitcnt vmcnt(0)
    ''')
    g.stamp(7)
    for k in range(2): g.pair(vT + 8 * k, vRW + 8 * k, vRW + 8 * k + 4, 4)
    for k in range(2):
        for c in range(8): g.dpp('v_dot2c_f32_bf16', vA + c, vS, vT + 8 * k + c, f'quad_perm:[{k},{k},{k+2},{k+2}]')
    g.red8(vA, 2)
    l = g.lab('nr')
    g(f'''
    ds_write_b64 v{vLW}, {v2(vA)} offset:{L_RP}
    s_waitcnt lgkmcnt(0)
    s_barrier
    s_cmp_lg_u32 s{sWAVE}, 0
    s_cbranch_scc1 {l}
    ds_read_b128 {v4(vT)}, v{vLR} offset:{L_RP}
    ds_read_b128 {v4(vT+4)}, v{vLR} offset:{L_RP+16}
    s_waitcnt lgkmcnt(0)
    ''')
    g.sum4(vT)
    g(f'''
    v_cvt_pk_bf16_f32 v{vT}, v{vT}, v{vT+1}
    v_mov_b32 v{vT+1}, s{sTAG}
    global_store_dwordx2 v{vPA}, {v2(vT)}, {p(sWS)} sc1
    {l}:
    s_barrier
    ''')
    g.stamp(8)
    vW, vA, vT = 12, 80, 84
    vWP = 8
    g(f'''
    v_lshrrev_b32 v{vT}, 5, v1
    v_and_b32 v{vT+1}, 15, v1
    v_lshl_add_u32 v{vT}, v{vT}, 4, v{vT+1}
    v_bfe_u32 v{vT+2}, v1, 4, 1
    v_lshlrev_b32 v{vT}, 5, v{vT}
    v_lshl_add_u32 v{vT}, v{vT+2}, 2, v{vT}
    v_add_u32 v{vLW}, s{sT+7}, v{vT}
    ''')
    for i in range(4): g(f'v_mov_b32 v{vA+i}, 0')
    g(f's_cmp_ge_u32 s{sJ}, 8\ns_cbranch_scc1 LG')

    def pair_all():
        for q in range(4):
            g(f's_waitcnt vmcnt({24 - 8 * q})')
            for k in range(4 * q, 4 * q + 4): g.pair(vWP + 4 * k, vW + 4 * k, vW + 4 * k + 2, 2)

    def gemv16(x):
        for k in range(16):
            for c in range(4): g.dpp('v_dot2c_f32_bf16', vA + c, x, vWP + 4 * k + c, f'row_newbcast:{k}')
        g.red4(vA)
        g(f'ds_write_b32 v{vLW}, v{vA} offset:{L_WP}\ns_waitcnt lgkmcnt(0)\ns_barrier')

    g(f'''
    v_lshrrev_b32 v{vT}, 5, v1
    v_lshl_add_u32 v{vT}, v{vT+2}, 6, v{vT}
    s_lshl_b32 s{sT+4}, s{sWAVE}, 1
    s_lshl_b32 s{sT+5}, s{sG}, 9
    s_add_u32 s{sT+4}, s{sT+4}, s{sT+5}
    s_lshl_b32 s{sT+4}, s{sT+4}, 10
    s_lshl_b32 s{sT+5}, s{sJ}, 7
    s_add_u32 s{sT+4}, s{sT+4}, s{sT+5}
    v_lshlrev_b32 v{vT}, 10, v{vT}
    v_lshl_add_u32 v{vT}, v{vT+1}, 3, v{vT}
    v_add_u32 v4, s{sT+4}, v{vT}
    ''')
    sB = sT + 8
    for h in range(1, 4):
        g(f's_add_u32 s{sB+2*h}, s{sWO}, {h << 17}\ns_addc_u32 s{sB+2*h+1}, s{sWO+1}, 0')
    for n in range(32):
        b = sWO if n % 4 == 0 else sB + 2 * (n % 4)
        g(f'global_load_dwordx2 {v2(vW + 2 * n)}, v4, {p(b)} {NT}')
        if n % 4 == 3 and n != 31: g(f'v_add_u32 v4, s{sT+6}, v4')
    g(f'''
    v_and_b32 v{vT}, 1, v1
    v_bfe_u32 v{vT+1}, v1, 1, 4
    v_lshl_add_u32 v{vT}, v{vT}, 4, v{vT+1}
    v_lshlrev_b32 v{vLR}, 5, v{vT}
    v_lshrrev_b32 v{vT}, 5, v0
    v_and_b32 v{vT+1}, 31, v0
    v_mul_u32_u24 v{vT}, {H4_REP}, v{vT}
    v_lshl_add_u32 v{vPA}, v{vT+1}, 3, v{vT}
    s_lshl3_add_u32 s{sT+4}, s{sG}, s{sJ}
    s_lshl_b32 s{sT+4}, s{sT+4}, 8
    s_add_u32 s{sT+4}, s{sT+4}, {H4}
    v_add_u32 v{vPA}, s{sT+4}, v{vPA}
    s_mul_i32 s{sT+4}, s{sG}, {H3B_G}
    s_add_u32 s{sT+4}, s{sT+4}, {H3B}
    v_lshl_add_u32 v5, v0, 3, s{sT+4}
    v_mov_b32 v{vT+9}, s{sTAG}
    ''')
    pair_all()
    g.stamp(9)
    g.poll(lambda: g(f'global_load_dwordx2 {v2(vT)}, v5, {p(sWS)} sc1'), [vT + 1], None)
    g.stamp(10)
    gemv16(vT)
    g(f'ds_read_b128 {v4(vT)}, v{vLR} offset:{L_WP}\nds_read_b128 {v4(vT+4)}, v{vLR} offset:{L_WP+16}\ns_waitcnt lgkmcnt(0)')
    g.sum4(vT)
    g(f'v_cvt_pk_bf16_f32 v{vT+8}, v{vT}, v{vT+1}\nglobal_store_dwordx2 v{vPA}, {v2(vT+8)}, {p(sWS)} sc1')
    g.stamp(11)
    g.end()
    g.flush_tail()
    g(f'''
    LG:
    s_cmp_eq_u32 s{sG}, 7
    s_cbranch_scc1 Lexit
    s_and_b32 s{sJ}, s{sJ}, 7
    s_lshl3_add_u32 s{sT+2}, s{sG}, s{sJ}
    s_lshl_b32 s{sT+3}, s{sT+1}, 2
    v_xor_b32 v3, s{sT+3}, v0
    v_lshrrev_b32 v{vT}, 4, v0
    v_mul_u32_u24 v{vT}, {32*3584}, v{vT}
    v_and_b32 v{vT+2}, 7, v1
    v_lshl_add_u32 v{vT}, v{vT+2}, 3, v{vT}
    s_mul_i32 s{sT+4}, s{sT+1}, {8*3584}
    s_lshl_b32 s{sT+5}, s{sT+2}, 6
    s_add_u32 s{sT+4}, s{sT+4}, s{sT+5}
    v_add_u32 v{vT}, s{sT+4}, v{vT}
    v_mov_b32 v{vT+2}, s{sGATE}
    v_mov_b32 v{vT+3}, s{sGATE+1}
    v_mov_b32 v{vT+4}, s{sUP}
    v_mov_b32 v{vT+5}, s{sUP+1}
    v_cmp_lt_u32 vcc, 7, v{vT+1}
    v_mov_b32 v{vT+1}, 0
    s_movk_i32 s{sB}, {2*3584}
    s_mov_b32 s{sB+1}, 0
    v_cndmask_b32 v4, v{vT+2}, v{vT+4}, vcc
    v_cndmask_b32 v5, v{vT+3}, v{vT+5}, vcc
    v_lshl_add_u64 v[4:5], {v2(vT)}, 0, v[4:5]
    s_mul_i32 s{sB+2}, s{sT+1}, {-16*3584}
    s_add_i32 s{sB+2}, s{sB+2}, s{sB}
    s_ashr_i32 s{sB+3}, s{sB+2}, 31
    ''')
    for n in range(32):
        g(f'global_load_dwordx2 {v2(vW + 2 * n)}, v[4:5], off offset:{3584 * (n & 1)} {NT}')
        if n % 2 == 1 and n != 31: g(f'v_lshl_add_u64 v[4:5], {p(sB + 2 if n == 15 else sB)}, 0, v[4:5]')
    vX, vGA, vSB, vCB = 104, 106, 108, 110
    g(f'''
    v_and_b32 v{vT}, 1, v1
    v_bfe_u32 v{vT+1}, v1, 1, 3
    v_lshl_add_u32 v{vT}, v{vT}, 4, v{vT+1}
    v_lshlrev_b32 v{vLR}, 5, v{vT}
    v_bfe_u32 v{vT}, v0, 4, 3
    v_and_b32 v{vT+1}, 15, v0
    v_mul_u32_u24 v{vT}, {H5_REP}, v{vT}
    v_lshl_add_u32 v{vPA}, v{vT+1}, 3, v{vT}
    s_lshl_b32 s{sT+4}, s{sT+2}, 7
    s_add_u32 s{sT+4}, s{sT+4}, {H5}
    v_add_u32 v{vPA}, s{sT+4}, v{vPA}
    s_mul_i32 s{sT+4}, s{sG}, {HR_REP}
    s_add_u32 s{sT+4}, s{sT+4}, {HR + 2048}
    v_lshl_add_u32 v2, v3, 3, s{sT+4}
    s_mul_i32 s{sT+4}, s{sG}, {H4_REP}
    s_add_u32 s{sT+4}, s{sT+4}, {H4 + 4096}
    v_lshl_add_u32 v6, v3, 3, s{sT+4}
    v_add_u32 v7, s{sT+6}, v6
    v_lshlrev_b32 v3, 2, v3
    ''')
    pair_all()
    g.stamp(9)
    g(f'global_load_dword v{vX}, v3, {p(sX)}')
    g.poll(lambda: g(f'''
        global_load_dwordx2 {v2(vGA)}, v2, {p(sWS)} offset:-2048 sc1
        global_load_dwordx2 {v2(vSB)}, v2, {p(sWS)} sc1
        global_load_dwordx2 {v2(vCB)}, v2, {p(sWS)} offset:2048 sc1'''), [vGA + 1, vSB + 1, vCB + 1], vT)
    for r in (vX, vGA, vSB, vCB): g.unpack(r, r)
    g(f'v_add_f32 v{vCB}, 1.0, v{vCB}\nv_add_f32 v{vCB+1}, 1.0, v{vCB+1}')
    g.rb2(vCB)
    vY = 112
    g(f'v_mov_b32 v{vY}, 0\nv_mov_b32 v{vY+1}, 0\nv_mov_b32 v3, 0')
    g(f's_movk_i32 s{sT+4}, 0x3f80\ns_mov_b32 s{sT+5}, 0x3f800000')
    g.stamp(10)

    def h4loads():
        for i in range(8):
            g(f'global_load_dwordx2 {v2(vT + 2 * i)}, v{6 if i < 4 else 7}, {p(sWS)} offset:{(i % 4) * 2048 - 4096} sc1')
    g.poll(h4loads, [vT + 2 * i + 1 for i in range(8)], vT + 16)
    g.stamp(11)
    for i in range(8):
        g(f'v_dot2c_f32_bf16 v{vY}, s{sT+4}, v{vT+2*i}\nv_dot2c_f32_bf16 v{vY+1}, s{sT+5}, v{vT+2*i}')
    g('s_nop 2')
    g.rb2(vY)
    g(f'v_pk_mul_f32 {v2(vY)}, {v2(vY)}, {v2(vGA)}')
    g.rb2(vY)
    g(f'v_pk_add_f32 {v2(vY)}, {v2(vY)}, {v2(vX)}')
    g.rb2(vY)
    g.stats_wave(vY, vT)
    g(f'ds_write_b32 v79, v{vT} offset:{L_GS}\ns_waitcnt lgkmcnt(0)\ns_barrier')
    for i in range(4): g(f'ds_read_b128 {v4(vT + 4 * i)}, v3 offset:{L_GS + 16 * i}')
    g('s_waitcnt lgkmcnt(0)')
    g.stats_fin(vT)
    g.ln_apply(vY, vT)
    g(f'v_pk_mul_f32 {v2(vY)}, {v2(vY)}, {v2(vCB)}')
    g.rb2(vY)
    g(f'v_pk_add_f32 {v2(vY)}, {v2(vY)}, {v2(vSB)}\nv_cvt_pk_bf16_f32 v{vY}, v{vY}, v{vY+1}\ns_nop 1')
    g.stamp(12)
    gemv16(vY)
    g(f's_cmp_ge_u32 s{sWAVE}, 2\ns_cbranch_scc1 Lexit')
    for i in range(4): g(f'ds_read_b128 {v4(vT + 4 * i)}, v{vLR} offset:{L_WP + 16 * (i & 1) + 256 * (i >> 1)}')
    g('s_waitcnt lgkmcnt(2)' if not opt.get('stamps') else 's_waitcnt lgkmcnt(0)')
    g.sum4(vT)
    g.rb2(vT)
    g.silu2(vT, vT + 2)
    g.rb2(vT)
    g('s_waitcnt lgkmcnt(0)')
    g.sum4(vT + 8)
    g.rb2(vT + 8)
    g(f'''
    v_pk_mul_f32 {v2(vT)}, {v2(vT)}, {v2(vT+8)}
    v_cvt_pk_bf16_f32 v{vT}, v{vT}, v{vT+1}
    v_mov_b32 v{vT+1}, s{sTAG}
    global_store_dwordx2 v{vPA}, {v2(vT)}, {p(sWS)} sc1
    ''')
    g.stamp(13)
    g.end()
    g(f'''
    LFH:
    s_and_b32 s{sJ}, s{sJ}, 15
    s_waitcnt lgkmcnt(0)
    s_load_dword s{sTAG}, {p(sWS)}, 0
    ''')
    xcc_setup((4, 2))
    g(f's_cmp_ge_u32 s{sJ}, 8\ns_cbranch_scc1 Lexit')
    common_consts()
    g(f'''
    v_and_b32 v4, 15, v1
    v_lshrrev_b32 v5, 4, v0
    s_lshl_b32 s{sT}, s{sJ}, 4
    s_sub_u32 s{sT}, s{sT}, 16
    v_add_u32 v5, s{sT}, v5
    s_mul_i32 s{sT+1}, s{sG}, {LSE_G}
    s_add_u32 s{sT+1}, s{sT+1}, {LSE}
    v_lshl_add_u32 v6, v4, 7, s{sT+1}
    s_mul_i32 s{sT+1}, s{sG}, {H3A_G}
    s_add_u32 s{sT+1}, s{sT+1}, {H3A}
    v_lshl_add_u32 v7, v4, 11, s{sT+1}
    v_lshl_add_u32 v7, v5, 4, v7
    s_mul_i32 s{sT+1}, s{sG}, {H3B_G}
    s_add_u32 s{sT+1}, s{sT+1}, {H3B}
    v_lshl_add_u32 v5, v5, 4, s{sT+1}
    s_mov_b32 s{sT+2}, 0x0c04000c
    s_mov_b32 s{sT+3}, 0x0402010c
    s_waitcnt lgkmcnt(0)
    ''')
    mk_tag()
    g('s_barrier\n' * 5)
    g.stamp(8)
    g.poll(lambda: g(f'global_load_dwordx4 v[8:11], v6, {p(sWS)} sc1\nglobal_load_dwordx4 v[12:15], v6, {p(sWS)} offset:16 sc1'), [9, 11, 13, 15], 16)
    g.stamp(9)
    g.load_local()
    ROT = ('row_ror:8', 'row_ror:4', 'row_ror:2', 'row_ror:1')
    for i, s in enumerate(ROT):
        for h in range(4): g.dpp('v_max_f32', 9 + 2 * h, (8 if i == 0 else 9) + 2 * h, (8 if i == 0 else 9) + 2 * h, s)
    for h in range(4): g(f'v_sub_f32 v{8+2*h}, v{8+2*h}, v{9+2*h}')
    for h in range(4): g(f'v_exp_f32 v{8+2*h}, v{8+2*h}')
    g('s_nop 1')
    for i, s in enumerate(ROT):
        for h in range(4): g.dpp('v_add_f32', 9 + 2 * h, (8 if i == 0 else 9) + 2 * h, (8 if i == 0 else 9) + 2 * h, s)
    for h in range(4): g(f'v_rcp_f32 v{9+2*h}, v{9+2*h}')
    g('s_nop 0')
    for h in range(4): g(f'v_mul_f32 v{16+h}, v{8+2*h}, v{9+2*h}')
    g(f'v_mov_b32 v21, s{sTAG}\nv_mov_b32 v23, s{sTAG}\ns_mov_b32 s{sT+4}, 0x00010001\ns_mov_b32 s{sT+5}, 0x00010001\ns_waitcnt lgkmcnt(0)')
    g.poll(lambda: g(f'global_load_dwordx4 v[8:11], v7, {p(sWS)} sc1'), [11], None)
    g.stamp(10)
    g(f'''
    v_perm_b32 v11, v9, v8, s{sT+2}
    v_pk_mul_f32 v[8:9], v[8:9], v[16:17]
    v_perm_b32 v11, v10, v11, s{sT+3}
    v_pk_mul_f32 v[10:11], v[10:11], v[18:19]
    ''')
    for s in ROT:
        for h in range(4): g.dpp('v_add_f32', 8 + h, 8 + h, 8 + h, s)
    g(f'v_cvt_pk_bf16_f32 v20, v8, v9\nv_cvt_pk_bf16_f32 v22, v10, v11\ns_mov_b64 exec, {p(sT+4)}')
    g.store_local([f'global_store_dwordx4 v5, v[20:23], {p(sWS)}'])
    g('s_mov_b64 exec, -1')
    g.stamp(11)
    g.end()
    g.flush_tail()
    g('LA2:')
    g.stamp(2)
    common_consts()
    xcc_setup((0, 2))
    vQ, vP, vT = 104, 108, 4
    for i in range(16): g(f'v_mov_b32 v{vP+i}, 0')
    g('s_waitcnt lgkmcnt(0)')
    mk_tag()
    l = g.lab('nq')
    g(f'''
    v_lshlrev_b32 v124, 4, v1
    s_cmp_lg_u32 s{sWAVE}, 0
    s_cbranch_scc1 {l}
    v_and_b32 v4, 3, v1
    v_lshrrev_b32 v5, 2, v1
    v_lshlrev_b32 v4, 9, v4
    v_lshl_add_u32 v4, v5, 5, v4
    s_mul_i32 s{sT}, s{sG}, {H2_G}
    s_add_u32 s{sT}, s{sT}, {H2}
    v_add_u32 v4, s{sT}, v4
    ''')
    g.poll(lambda: g(f'global_load_dwordx4 {v4(vVT)}, v4, {p(sWS)} sc1\nglobal_load_dwordx4 {v4(vVT+4)}, v4, {p(sWS)} offset:16 sc1'),
           [vVT + 1, vVT + 3, vVT + 5, vVT + 7], 5)
    g(f'''
    v_mov_b32 v{vVT+1}, v{vVT+2}
    v_mov_b32 v{vVT+2}, v{vVT+4}
    v_mov_b32 v{vVT+3}, v{vVT+6}
    v_mov_b32 v4, 0
    v_mov_b32 v5, 1
    ds_write_b128 v124, {v4(vVT)} offset:{L_Q}
    ds_write_b32 v4, v5 offset:{L_FLAG}
    {l}:
    v_mov_b32 v4, 0
    ''')
    r, l = g.lab('retry'), g.lab('spin')
    g(f'''
    s_branch {l}
    {r}:
    s_sub_u32 s{sTO}, s{sTO}, 1
    s_cbranch_scc1 Lexit
    {l}:
    ds_read_b32 v5, v4 offset:{L_FLAG}
    ds_read_b128 {v4(vQ)}, v124 offset:{L_Q}
    s_waitcnt lgkmcnt(0)
    v_cmp_eq_u32 vcc, 0, v5
    s_cbranch_vccnz {r}
    ''')
    g.stamp(3)
    g.load_local()
    g('s_waitcnt vmcnt(8)')
    g.stamp(4)
    for n in range(8):
        g(f'v_mfma_f32_16x16x32_bf16 {v4(vK - 4 + 4 * n)}, {v4(vK + 4 * n)}, {v4(vQ)}, 0')
    vS0 = 36
    g('s_nop 0')
    for half in range(2):
        for t in range(3):
            for beta in (2 * half, 2 * half + 1):
                for m in range(2):
                    n = 2 * beta + m
                    D = vK - 4 + 4 * n
                    pi = (beta + 1 + t) % 4
                    T = vS0 + m + 2 * (beta & 1)
                    g.dpp('v_add_f32', T, D + pi, D + beta if t == 0 else T, f'row_ror:{4 * ((beta - pi) % 4)}', 1 << beta)
    g('s_nop 0')
    g.dpp('v_mov_b32', vS0, vS0 + 2, None, 'quad_perm:[0,1,2,3]', 0xa)
    g.dpp('v_mov_b32', vS0 + 1, vS0 + 3, None, 'quad_perm:[0,1,2,3]', 0xa)
    g.rb2(vS0)
    g(f'v_mul_f32 v{vS0}, {SCALE:#x}, v{vS0}\nv_mul_f32 v{vS0+1}, {SCALE:#x}, v{vS0+1}')
    g.rb2(vS0)

    def allred(op, r, t, bits):
        for b in bits:
            if b in (2, 3):
                g('s_nop 1')
                g.dpp(op, r, r, r, f'row_ror:{1 << b}')
            else:
                g(f'v_mov_b32 v{t}, v{r}\ns_nop 1\nv_permlane{16 if b == 4 else 32}_swap_b32 v{r}, v{t}\n{op} v{r}, v{r}, v{t}')
    g(f'v_max_f32 v4, v{vS0}, v{vS0+1}')
    allred('v_max_f32', 4, 6, (3, 2, 4, 5))
    g(f'''
    v_sub_f32 v{vS0}, v{vS0}, v4
    v_sub_f32 v{vS0+1}, v{vS0+1}, v4
    v_mul_f32 v{vS0}, {LOG2E:#x}, v{vS0}
    v_mul_f32 v{vS0+1}, {LOG2E:#x}, v{vS0+1}
    v_exp_f32 v{vS0}, v{vS0}
    v_exp_f32 v{vS0+1}, v{vS0+1}
    v_and_b32 v7, 3, v1
    v_add_f32 v5, v{vS0}, v{vS0+1}
    ''')
    allred('v_add_f32', 5, 6, (3, 2, 4, 5))
    g(f'''
    s_lshl_b32 s{sT}, s{sWAVE}, 5
    v_lshl_add_u32 v6, v7, 3, s{sT}
    ds_write_b64 v6, v[4:5] offset:{L_ST}
    v_and_b32 v6, 31, v1
    v_lshlrev_b32 v6, 3, v6
    s_waitcnt lgkmcnt(0)
    s_barrier
    ds_read_b64 v[8:9], v6 offset:{L_ST}
    s_mul_i32 s{sT}, s{sG}, {LSE_G}
    s_lshl_b32 s{sT+1}, s{sJ}, 7
    s_add_u32 s{sT}, s{sT}, s{sT+1}
    s_add_u32 s{sT}, s{sT}, {LSE}
    v_lshl_add_u32 v7, v7, 3, s{sT}
    s_waitcnt lgkmcnt(0)
    v_mov_b32 v10, v8
    ''')
    g.stamp(5)
    allred('v_max_f32', 10, 6, (3, 2, 4))
    g(f'''
    v_sub_f32 v8, v8, v10
    v_sub_f32 v4, v4, v10
    v_mul_f32 v8, {LOG2E:#x}, v8
    v_mul_f32 v4, {LOG2E:#x}, v4
    v_exp_f32 v8, v8
    v_exp_f32 v4, v4
    v_mul_f32 v9, v9, v8
    ''')
    allred('v_add_f32', 9, 6, (3, 2, 4))
    l = g.lab('nl')
    g(f'''
    v_rcp_f32 v8, v9
    v_log_f32 v12, v9
    v_mov_b32 v13, s{sTAG}
    v_mul_f32 v4, v4, v8
    v_fmac_f32 v12, {LOG2E:#x}, v10
    v_mul_f32 v{vS0}, v{vS0}, v4
    v_mul_f32 v{vS0+1}, v{vS0+1}, v4
    v_cvt_pk_bf16_f32 v{vS0}, v{vS0}, v{vS0+1}
    s_cmp_lg_u32 s{sWAVE}, 0
    s_cbranch_scc1 {l}
    s_mov_b64 exec, 15
    ''')
    g.store_local([f'global_store_dwordx2 v7, v[12:13], {p(sWS)}'])
    g(f's_mov_b64 exec, -1\n{l}:')
    for c in range(4):
        for m in range(4):
            rot = 4 * ((c - m) % 4)
            g.dpp('v_mov_b32', vP + 4 * c + m, vS0, None, f'row_ror:{rot}' if rot else 'quad_perm:[0,1,2,3]', 1 << c)
    g(f'''
    s_lshl_b32 s{sT}, s{sWAVE}, 11
    v_add_u32 v124, s{sT}, v124
    v_lshlrev_b32 v125, 4, v0
    s_mul_i32 s{sT}, s{sG}, {H3A_G}
    s_lshl_b32 s{sT+1}, s{sJ}, 11
    s_add_u32 s{sT}, s{sT}, s{sT+1}
    s_add_u32 s{sT}, s{sT}, {H3A}
    v_add_u32 v126, s{sT}, v125
    s_mov_b32 s{sT+2}, 0x07060501
    s_mov_b32 s{sT+3}, 0x07060502
    s_mov_b32 s{sT+4}, 0x07060503
    ''')
    for m in range(4):
        g(f's_waitcnt vmcnt({6 - 2 * m})')
        if m == 3: g.stamp(6)
        order = (0, 4, 1, 5, 2, 6, 3, 7)
        for c in order:
            g(f'v_perm_b32 v{vVT + 4 * c + m}, v{vV + 8 * m + 4 + c // 2}, v{vV + 8 * m + c // 2}, s{sSHI if c & 1 else sSLO}')
    for c in range(4):
        for a in range(2):
            g(f'v_mfma_f32_16x16x32_bf16 {v4(8 + 4 * a)}, {v4(vP + 4 * c)}, {v4(vVT + 16 * a + 4 * c)}, {v4(8 + 4 * a) if c else 0}')
    l = g.lab('np')
    g(f'''
    s_nop 6
    ds_write_b128 v124, v[8:11] offset:{L_O}
    ds_write_b128 v124, v[12:15] offset:{L_O + 1024}
    s_waitcnt lgkmcnt(0)
    s_barrier
    s_cmp_ge_u32 s{sWAVE}, 2
    s_cbranch_scc1 {l}
    ''')
    for w in range(8): g(f'ds_read_b128 {v4(8 + 4 * w)}, v125 offset:{L_O + 2048 * w}')
    for a, b, wt in ((0, 1, 6), (2, 3, 4), (0, 2, None), (4, 5, 2), (0, 4, None), (6, 7, 0), (0, 6, None)):
        if wt is not None: g(f's_waitcnt lgkmcnt({0 if opt.get("stamps") else wt})')
        g(f'v_pk_add_f32 {v2(8+4*a)}, {v2(8+4*a)}, {v2(8+4*b)}\nv_pk_add_f32 {v2(10+4*a)}, {v2(10+4*a)}, {v2(10+4*b)}')
    for i in range(3): g(f'v_perm_b32 v{8+i}, v{8+i}, v11, s{sT+2+i}')
    g(f'v_mov_b32 v11, s{sTAG}')
    g.store_local([f'global_store_dwordx4 v126, v[8:11], {p(sWS)}'])
    g(f'{l}:')
    g.stamp(7)
    g(f'''
    s_cmp_ge_u32 s{sJ}, 8
    s_cbranch_scc1 Lexit
    s_cmp_ge_u32 s{sWAVE}, 5
    s_cbranch_scc1 Lexit
    s_barrier
    s_cmp_eq_u32 s{sWAVE}, 4
    s_cbranch_scc1 LDH
    ''')
    vW, vWP, vA, vT = 16, 48, 80, 88
    g(f'''
    s_bfe_u32 s{sT}, s{sJ}, 0x10002
    s_mul_i32 s{sT}, s{sT}, 224
    v_add_u32 v2, s{sT}, v0
    v_subrev_u32 v3, 448, v2
    v_min_u32 v2, v2, v3
    v_add_u32 v3, 256, v2
    v_subrev_u32 v4, 448, v3
    v_min_u32 v3, v3, v4
    s_lshl3_add_u32 s{sT+1}, s{sG}, s{sJ}
    s_lshl_b32 s{sT+1}, s{sT+1}, 4
    v_lshl_add_u32 v4, v2, 12, s{sT+1}
    v_lshl_add_u32 v5, v3, 12, s{sT+1}
    s_and_b32 s{sT+2}, s{sJ}, 3
    ''')
    sB = sT + 8
    for n in range(4):
        g(f's_xor_b32 s{sT+3}, s{sT+2}, {n}\ns_lshl_b32 s{sT+3}, s{sT+3}, 10\ns_add_u32 s{sB+2*n}, s{sDOWN}, s{sT+3}\ns_addc_u32 s{sB+2*n+1}, s{sDOWN+1}, 0')
    for n in range(4): g(f'global_load_dwordx4 {v4(vW + 4 * n)}, v4, {p(sB + 2 * n)} {NT}')
    l = g.lab('d1')
    for i in range(16): g(f'v_mov_b32 v{vW+16+i}, 0')
    g(f's_cmp_eq_u32 s{sWAVE}, 3\ns_cbranch_scc1 {l}')
    for n in range(4): g(f'global_load_dwordx4 {v4(vW + 16 + 4 * n)}, v5, {p(sB + 2 * n)} {NT}')
    g(f'''
    {l}:
    s_bitcmp0_b32 s{sJ}, 0
    s_cselect_b32 s{sSLO}, s{sSLO}, 0x01000504
    s_cselect_b32 s{sSHI}, s{sSHI}, 0x03020706
    s_mul_i32 s{sT}, s{sG}, {H5_REP}
    s_add_u32 s{sT}, s{sT}, {H5}
    v_lshl_add_u32 v2, v2, 4, s{sT}
    v_lshl_add_u32 v3, v3, 4, s{sT}
    v_lshrrev_b32 v6, 4, v1
    s_lshl_b32 s{sT+7}, s{sWAVE}, 3
    v_lshl_add_u32 v6, v6, 5, s{sT+7}
    ''')
    for i in range(8): g(f'v_mov_b32 v{vA+i}, 0')
    l1, l2 = g.lab('dsw'), g.lab('dj')
    g(f's_waitcnt vmcnt(0)\ns_bitcmp1_b32 s{sJ}, 1\ns_cbranch_scc1 {l1}')
    for k in range(4): g.pair(vWP + 8 * k, vW + 8 * k, vW + 8 * k + 4, 4)
    g(f's_branch {l2}\n{l1}:')
    for k in range(4): g.pair(vWP + 8 * (k ^ 1), vW + 8 * k, vW + 8 * k + 4, 4)
    g(f'{l2}:')
    g.stamp(8)
    g.poll(lambda: g(f'global_load_dwordx4 {v4(vT)}, v2, {p(sWS)} sc1\nglobal_load_dwordx4 {v4(vT+4)}, v3, {p(sWS)} sc1'),
           [vT + 1, vT + 3, vT + 5, vT + 7], vT + 8)
    g.stamp(9)
    for k in range(4):
        for c in range(8): g(f'v_dot2c_f32_bf16 v{vA+c}, v{vT+2*k}, v{vWP+8*k+c}')
    g.red8(vA, 1)
    g(f'ds_write_b64 v6, {v2(vA)} offset:{L_D}\ns_waitcnt lgkmcnt(0)\ns_barrier')
    g.stamp(10)
    g.end()
    g.flush_tail()
    g(f'''
    LDH:
    s_lshl3_add_u32 s{sT+1}, s{sG}, s{sJ}
    s_lshl_b32 s{sT+1}, s{sT+1}, 2
    v_and_b32 v2, 3, v1
    v_lshlrev_b32 v6, 5, v2
    v_add_u32 v2, s{sT+1}, v2
    v_lshlrev_b32 v7, 2, v2
    global_load_dword v8, v7, {p(sX)}
    s_mul_i32 s{sT}, s{sG}, {HR_REP}
    s_add_u32 s{sT}, s{sT}, {HR + 3072}
    v_lshl_add_u32 v3, v2, 3, s{sT}
    s_mul_i32 s{sT}, s{sG}, {H4_REP}
    s_add_u32 s{sT}, s{sT}, {H4}
    v_lshl_add_u32 v4, v2, 3, s{sT}
    v_bfe_u32 v5, v1, 2, 3
    v_lshl_add_u32 v4, v5, 11, v4
    ''')
    g.poll(lambda: g(f'''
        global_load_dwordx2 v[10:11], v3, {p(sWS)} offset:-3072 sc1
        global_load_dwordx2 v[12:13], v3, {p(sWS)} offset:3072 sc1
        global_load_dwordx2 v[14:15], v4, {p(sWS)} sc1'''), [11, 13, 15], 16)
    g.stamp(8)
    for r in (14, 8, 10, 12): g.unpack(r, r)
    allred('v_add_f32', 14, 16, (3, 2, 4))
    allred('v_add_f32', 15, 16, (3, 2, 4))
    g.rb2(14)
    g('v_pk_mul_f32 v[14:15], v[14:15], v[10:11]')
    g.rb2(14)
    g('v_pk_add_f32 v[14:15], v[14:15], v[8:9]')
    g.rb2(14)
    g(f'''
    s_mov_b64 exec, 15
    s_barrier
    ds_read_b128 v[16:19], v6 offset:{L_D}
    ds_read_b128 v[20:23], v6 offset:{L_D+16}
    s_waitcnt lgkmcnt(0)
    ''')
    g.sum4(16)
    g.rb2(16)
    g('v_pk_mul_f32 v[16:17], v[16:17], v[12:13]')
    g.rb2(16)
    g(f'''
    v_pk_add_f32 v[16:17], v[16:17], v[14:15]
    v_cvt_pk_bf16_f32 v16, v16, v17
    global_store_dword v7, v16, {p(sOUT)}
    ''')
    g.stamp(10)
    g(f'''
    s_cmp_lg_u32 s2, 0
    s_cbranch_scc1 Lexit
    v_mov_b32 v2, 0
    v_mov_b32 v3, s{sTAG}
    global_store_dword v2, v3, {p(sWS)} sc1
    Lexit:
    ''')
    if opt.get('stamps'):
        g(f'''
        Lfin:
        s_memrealtime {p(sSTAMP + 28)}
        s_getreg_b32 s{sSTAMP + 30}, hwreg(HW_REG_XCC_ID, 0, 4)
        s_mov_b64 exec, 1
        s_lshl3_add_u32 s{sT}, s2, s{sWAVE}
        s_lshl_b32 s{sT}, s{sT}, 6
        s_add_u32 s{sT}, s{sT}, {STAMP_OFF}
        v_mov_b32 v2, s{sT}
        s_waitcnt lgkmcnt(0)
        ''')
        if opt.get('probe'):
            wg, wv, st, T0, mult = map(int, opt['probe'].split(':'))
            g(f'''
            s_cmp_lg_u32 s2, {wg}
            s_cbranch_scc1 Lexit0
            s_cmp_lg_u32 s{sWAVE}, {wv}
            s_cbranch_scc1 Lexit0
            s_sub_u32 s{sT}, s{sSTAMP + 2 * st}, s{sSTAMP}
            s_mul_i32 s{sT}, s{sT}, {mult}
            s_add_u32 s{sT}, s{sT}, {T0}
            s_min_u32 s{sT}, s{sT}, 100000
            Lpad:
            s_memrealtime {p(sT + 2)}
            s_waitcnt lgkmcnt(0)
            s_sub_u32 s{sT+2}, s{sT+2}, s{sSTAMP}
            s_cmp_lt_u32 s{sT+2}, s{sT}
            s_cbranch_scc1 Lpad
            ''')
        else:
            for i in range(16):
                g(f'v_mov_b32 v3, s{sSTAMP + 2 * i}\nglobal_store_dword v2, v3, {p(sWS)} offset:{4 * i}')
    g('Lexit0:\ns_endpgm')
    g(f'''
    .section .rodata,"a"
    .p2align 6
    .amdhsa_kernel {K}
    ''')
    for d in ('next_free_vgpr 128', f'next_free_sgpr {96 if opt.get("stamps") else 64}', 'accum_offset 128', 'group_segment_fixed_size 0', 'kernarg_size 112',
              'user_sgpr_count 2', 'user_sgpr_kernarg_segment_ptr 1', 'system_sgpr_workgroup_id_x 1', 'float_denorm_mode_32 3'):
        g.L.append('  .amdhsa_' + d)
    g('.end_amdhsa_kernel')
    return '\n'.join(g.L) + '\n'


if __name__ == '__main__':
    opt = {}
    out = sys.argv[1]
    for a in sys.argv[2:]:
        k, _, v = a.partition('=')
        opt[k] = v if _ else True
    open(out, 'w').write(gen(opt))
```

```python
import sys

NAME = 'adaLN_cond__sliding_block_cached__swiglu_ffn__decode'
K = NAME + '_kernel'

MOD = 0x01000
MOD_REP = 0x3100
H2 = 0x1a000
H2_G = 0x900
H3A = 0x20000
H3A_S = 4224
H3A_G = 16 * H3A_S
H4 = 0xa4000
H4_REP = 0x4100
H5 = 0xc5000
H5_REP = 0x1d00
STAMP_OFF = 0x1000000
assert MOD + 8 * MOD_REP <= H2 and H2 + 8 * H2_G <= H3A and H3A + 8 * H3A_G <= H4 and H4 + 8 * H4_REP <= H5

L_FLAG = 0
L_MX = 16
L_SM = 32
L_Q = 64
L_O = 2560
L_W = L_O + 16384
L_MP = 0
L_RP = 256
L_D = 768
L_XS = 0
L_GS = 64
L_QP = 256
L_GP = 1280
LDS_BYTES = L_W + 10240

sX, sK, sV, sWQ, sWO, sGATE, sUP, sDOWN, sC, sWM, sOUT, sDBG, sWS = 4, 6, 8, 10, 12, 16, 18, 20, 22, 24, 26, 28, 30
sWAVE = 3
sTAG, sG, sJ, sTO, sSLO, sSHI, sXCC, sLOC, sPM, sROLE = 32, 33, 34, 35, 36, 37, 38, 39, 40, 41
sT = 42
sRET = 60
sW8 = 62
sSTAMP = 64

LOG2E = 0x3fb8aa3b
SCALE = 0x3db504f3
EPS = 0x3727c5ac
INV512 = 0x3b000000


def p(r): return f's[{r}:{r+1}]'
def v2(r): return f'v[{r}:{r+1}]'
def v4(r): return f'v[{r}:{r+3}]'


class G:
    def __init__(self, opt):
        self.L = []
        self.o = opt
        self.nlab = 0

    def __call__(self, s):
        for line in s.strip('\n').split('\n'):
            line = line.strip()
            if line:
                self.L.append(line if line.endswith(':') or line.startswith('.') else '    ' + line)

    def lab(self, n):
        self.nlab += 1
        return f'L{n}{self.nlab}'

    def stamp(self, i):
        if self.o.get('stamps'):
            self(f's_memrealtime {p(sSTAMP + 2 * i)}')

    def dpp(self, op, d, s0, s1, ctrl, bank=0xf):
        if s1 is None:
            self(f'{op}_dpp v{d}, v{s0} {ctrl} row_mask:0xf bank_mask:{bank:#x}')
        else:
            self(f'{op}_dpp v{d}, v{s0}, v{s1} {ctrl} row_mask:0xf bank_mask:{bank:#x}')

    def poll(self, loads, tags, tmp, issued=False, tag=sTAG):
        r, l = self.lab('retry'), self.lab('poll')
        self(f's_branch {l}\n{r}:\ns_sub_u32 s{sTO}, s{sTO}, 1\ns_cbranch_scc1 Lexit')
        if not issued: self(f'{l}:')
        loads()
        if issued: self(f'{l}:')
        self('s_waitcnt vmcnt(0)')
        if len(tags) == 1:
            self(f'v_cmp_ne_u32 vcc, s{tag}, v{tags[0]}')
        else:
            self(f'v_bitop3_b32 v{tmp}, v{tags[0]}, s{sTAG}, v{tags[1]} bitop3:0x7e')
            for t in tags[2:]:
                self(f'v_bitop3_b32 v{tmp}, v{t}, s{sTAG}, v{tmp} bitop3:0xbe')
            self(f'v_cmp_ne_u32 vcc, 0, v{tmp}')
        self(f's_cbranch_vccnz {r}')

    def pair(self, dst, a, b, W):
        for c in range(2 * W):
            self(f'v_perm_b32 v{dst + c}, v{b + c // 2}, v{a + c // 2}, s{sSHI if c & 1 else sSLO}')

    def red8(self, a, lpr):
        self('s_nop 1')
        for i in range(4): self(f'v_permlane32_swap_b32 v{a+i}, v{a+4+i}')
        for i in (0, 2, 1, 3): self(f'v_add_f32 v{a+i}, v{a+i}, v{a+4+i}')
        self(f'v_permlane16_swap_b32 v{a}, v{a+2}')
        self('s_nop 0')
        self(f'v_permlane16_swap_b32 v{a+1}, v{a+3}')
        self(f'v_add_f32 v{a}, v{a}, v{a+2}\nv_add_f32 v{a+1}, v{a+1}, v{a+3}')
        steps = ['row_ror:8', 'row_ror:4']
        if lpr <= 2: steps.append('quad_perm:[2,3,0,1]')
        if lpr == 1: steps.append('quad_perm:[1,0,3,2]')
        for s in steps:
            self('s_nop 0')
            self.dpp('v_add_f32', a, a, a, s)
            self.dpp('v_add_f32', a + 1, a + 1, a + 1, s)

    def red4(self, a):
        self('s_nop 1')
        self(f'v_permlane32_swap_b32 v{a}, v{a+2}\nv_permlane32_swap_b32 v{a+1}, v{a+3}')
        self(f'v_add_f32 v{a}, v{a}, v{a+2}\nv_add_f32 v{a+1}, v{a+1}, v{a+3}')
        self('s_nop 1')
        self(f'v_permlane16_swap_b32 v{a}, v{a+1}')
        self(f'v_add_f32 v{a}, v{a}, v{a+1}')

    def sum4(self, r):
        self(f'v_pk_add_f32 {v2(r)}, {v2(r)}, {v2(r+2)}\nv_pk_add_f32 {v2(r+4)}, {v2(r+4)}, {v2(r+6)}\nv_pk_add_f32 {v2(r)}, {v2(r)}, {v2(r+4)}')

    def unpack(self, d, s):
        self(f'v_and_b32 v{d+1}, 0xffff0000, v{s}\nv_lshlrev_b32 v{d}, 16, v{s}')

    def rb2(self, d):
        self(f'v_cvt_pk_bf16_f32 v{d}, v{d}, v{d+1}')
        self.unpack(d, d)

    def rb1(self, d):
        self(f'v_cvt_pk_bf16_f32 v{d}, v{d}, v{d}\nv_lshlrev_b32 v{d}, 16, v{d}')

    def silu2(self, x, t):
        self(f'v_mul_f32 v{t}, 0xbfb8aa3b, v{x}\nv_mul_f32 v{t+1}, 0xbfb8aa3b, v{x+1}')
        self(f'v_exp_f32 v{t}, v{t}\nv_exp_f32 v{t+1}, v{t+1}')
        self(f'v_add_f32 v{t}, 1.0, v{t}\nv_add_f32 v{t+1}, 1.0, v{t+1}')
        self(f'v_rcp_f32 v{t}, v{t}\nv_rcp_f32 v{t+1}, v{t+1}')
        self(f'v_mul_f32 v{x}, v{x}, v{t}\nv_mul_f32 v{x+1}, v{x+1}, v{t+1}')

    def stats_wave(self, x, t):
        self(f'v_mul_f32 v{t+1}, v{x}, v{x}\nv_add_f32 v{t}, v{x}, v{x+1}\nv_fmac_f32 v{t+1}, v{x+1}, v{x+1}')
        self('s_nop 1')
        self(f'v_permlane32_swap_b32 v{t}, v{t+1}\nv_add_f32 v{t}, v{t}, v{t+1}')
        for s in ('row_ror:8', 'row_ror:4', 'row_ror:2', 'row_ror:1'):
            self('s_nop 1')
            self.dpp('v_add_f32', t, t, t, s)

    def stats_fin(self, r):
        for i in (0, 8):
            self(f'v_pk_add_f32 {v2(r+i)}, {v2(r+i)}, {v2(r+i+2)}\nv_pk_add_f32 {v2(r+i+4)}, {v2(r+i+4)}, {v2(r+i+6)}')
        self(f'v_pk_add_f32 {v2(r)}, {v2(r)}, {v2(r+4)}\nv_pk_add_f32 {v2(r+8)}, {v2(r+8)}, {v2(r+12)}')
        self(f'v_add_f32 v{r}, v{r}, v{r+1}\nv_add_f32 v{r+1}, v{r+8}, v{r+9}')
        self(f'v_mul_f32 v{r}, {INV512:#x}, v{r}\nv_mul_f32 v{r+1}, {INV512:#x}, v{r+1}')
        self(f'v_fma_f32 v{r+1}, -v{r}, v{r}, v{r+1}\nv_max_f32 v{r+1}, 0, v{r+1}')
        self.rb2(r)
        self(f'v_add_f32 v{r+1}, {EPS:#x}, v{r+1}')
        self.rb1(r + 1)
        self(f'v_sqrt_f32 v{r+1}, v{r+1}\ns_nop 0')
        self.rb1(r + 1)
        self(f'v_rcp_f32 v{r+1}, v{r+1}')

    def ln_apply(self, x, m):
        self(f'v_sub_f32 v{x}, v{x}, v{m}\nv_sub_f32 v{x+1}, v{x+1}, v{m}')
        self.rb2(x)
        self(f'v_mul_f32 v{x}, v{x}, v{m+1}\nv_mul_f32 v{x+1}, v{x+1}, v{m+1}')
        self.rb2(x)

    def store_local(self, insts):
        a, b = self.lab('far'), self.lab('sd')
        if self.o.get('nolocal'):
            for i in insts: self(i + ' sc1')
            return
        self(f's_cmp_eq_u32 s{sLOC}, 0\ns_cbranch_scc0 {a}')
        for i in insts: self(i)
        self(f'{b}:')
        self.tail.append((a, [i + ' sc1' for i in insts], b))

    def flush_tail(self):
        for a, insts, b in self.tail:
            self(f'{a}:')
            for i in insts: self(i)
            self(f's_branch {b}')
        self.tail = []

    def pad(self, name, target):
        if self.o.get('warm', '1') != '0':
            self(f'{name}:\ns_cbranch_execz {target}')

    def end(self):
        self('s_branch Lfin' if self.o.get('stamps') else 's_endpgm')


def gen(opt):
    g = G(opt)
    g.tail = []
    NT = opt.get('nt', 'nt')
    LOCAL = not opt.get('nolocal')
    NTG, NTD, NTW, NTV = (opt.get(k, d).replace('_', ' ') for k, d in (('ntg', ''), ('ntd', ''), ('ntw', 'nt'), ('ntv', 'nt')))
    PF = int(opt.get('pf', 15))
    VA = int(opt.get('va', 2))
    WARM = opt.get('warm', '1') != '0'
    STAMPS = opt.get('stamps')
    DIAG = int(opt.get('diag', -1))
    DPF = int(opt.get('dpf', 1))
    SM1 = opt.get('sm1', ''); SM2 = opt.get('sm2', 'W0.G1.D'); SQ = opt.get('sq', 'P.H.W1.G0')
    hdr = open('cdna_kernels/' + NAME + '.s.ref').read().split('; Override launch')[0] if opt.get('hdr', True) else ''
    g.L.append(hdr.rstrip('\n'))
    g.L.append(f'; @launch grid=(256,1,1) block=(512,1,1) lds={LDS_BYTES}')
    g(f'.amdgcn_target "amdgcn-amd-amdhsa--gfx950"\n.text\n.globl {K}\n.p2align 12\n.fill 832, 4, 0xbf810000\n.p2align 8\n.type {K},@function\n{K}:')
    ROT = ('row_ror:8', 'row_ror:4', 'row_ror:2', 'row_ror:1')

    def lgkm(n):
        g(f's_waitcnt lgkmcnt({0 if STAMPS else n})')

    def consts():
        g(f's_mov_b32 s{sTO}, 0x100000\ns_mov_b32 s{sSLO}, 0x05040100\ns_mov_b32 s{sSHI}, 0x07060302')

    def mk_tag():
        g(f's_mul_i32 s{sTAG}, s{sTAG}, 0x9e3779b1\ns_add_u32 s{sTAG}, s{sTAG}, 0x7f4a7c15')

    def xcc_val():
        g(f's_getreg_b32 s{sXCC}, hwreg(HW_REG_XCC_ID, 0, 4)\ns_or_b32 s{sXCC}, s{sXCC}, 0x80\ns_mul_i32 s{sXCC}, s{sXCC}, 0x01010101')

    def xcc_addr():
        xcc_val()
        g(f'v_and_b32 v126, 7, v0\nv_lshlrev_b32 v126, 2, v126\nv_lshl_add_u32 v126, s{sG}, 5, v126')

    def xcc_test():
        g(f'v_cmp_ne_u32 vcc, s{sXCC}, v127\ns_mov_b32 s{sLOC}, vcc_lo')
    XLD = f'\nglobal_load_dword v127, v126, {p(sDBG)} sc1'

    def base(dst, mul, off, extra=None):
        g(f's_mul_i32 s{dst}, s{sG}, {mul}\ns_add_u32 s{dst}, s{dst}, {off}')
        if extra is not None: g(f's_add_u32 s{dst}, s{dst}, s{extra}')

    def fp24_consts(a):
        g(f's_mov_b32 s{a}, 0x0c04000c\ns_mov_b32 s{a+1}, 0x0402010c\ns_mov_b32 s{a+2}, 0x07060501\ns_mov_b32 s{a+3}, 0x07060502\ns_mov_b32 s{a+4}, 0x07060503')

    def fp24_unpack(r, a):
        g(f'v_perm_b32 v{r+3}, v{r+1}, v{r}, s{a}\nv_perm_b32 v{r+3}, v{r+2}, v{r+3}, s{a+1}')

    def fp24_pack(d, r, a):
        for i in range(3): g(f'v_perm_b32 v{d+i}, v{r+i}, v{r+3}, s{a+2+i}')

    def stream(spec):
        g(f's_lshl_b32 s{sT}, s{sJ}, 5\nv_xor_b32 v123, s{sT}, v0' if int(opt.get('rot', 1)) else 'v_mov_b32 v123, v0')
        for it in spec.split('.'):
            if not it: continue
            if it[0] == 'V':
                off = {'a': 0, 'b': 65536, 'c': 32768, 'd': 98304, 'x': 32768, 'y': 49152}[it[1]]
                g(f's_lshl_b32 s{sT}, s{sG}, 24\ns_lshl_b32 s{sT+1}, s{sJ}, 17\ns_add_u32 s{sT}, s{sT}, s{sT+1}\ns_add_u32 s{sT}, s{sT}, {(15 << 20) + off}')
                if it[1] in 'xy':
                    g(f's_lshr_b32 s{sT+1}, s{sWAVE}, 1\ns_mul_i32 s{sT+1}, s{sT+1}, 49152\ns_add_u32 s{sT}, s{sT}, s{sT+1}')
                g(f'v_lshl_add_u32 v120, v{0 if it[1] in "xy" else 123}, 7, s{sT}\nglobal_load_dword v121, v120, {p(sV)} {NTV}')
            elif it[0] == 'W':
                g(f's_lshl4_add_u32 s{sT}, s{sG}, s{sJ}\ns_add_u32 s{sT}, s{sT}, {8 * int(it[1])}\ns_lshl_b32 s{sT}, s{sT}, 15')
                g(f'v_lshl_add_u32 v120, v123, 7, s{sT}\nglobal_load_dword v121, v120, {p(sWO)} {NTW}')
            elif it[0] == 'G':
                l = g.lab('ng')
                g(f"""
                s_cmp_eq_u32 s{sG}, 7
                s_cbranch_scc1 {l}
                s_lshr_b32 s{sT}, s{sWAVE}, 1
                s_lshl1_add_u32 s{sT}, s{sJ}, s{sT}
                s_lshl_b32 s{sT}, s{sT}, 4
                s_addk_i32 s{sT}, {256 * int(it[1])}
                v_lshrrev_b32 v120, 2, v1
                v_add_u32 v120, s{sT}, v120
                v_and_b32 v122, 3, v1
                v_mad_u32_u24 v120, v120, 28, v122
                s_lshl_b32 s{sT}, s{sG}, 2
                v_add_lshl_u32 v120, v120, s{sT}, 7
                s_bitcmp1_b32 s{sWAVE}, 0
                s_cselect_b64 {p(sT)}, {p(sUP)}, {p(sGATE)}
                global_load_dword v121, v120, {p(sT)} {NTG}
                {l}:
                """)
            elif it == 'D':
                g(f"""
                s_mul_i32 s{sT}, s{sJ}, 224
                v_min_u32 v120, 223, v0
                v_add_lshl_u32 v120, v120, s{sT}, 3
                v_add_lshl_u32 v120, v120, s{sG}, 7
                global_load_dword v121, v120, {p(sDOWN)} {NTD}
                """)
            elif it == 'R':
                g(f"""
                s_lshl_b32 s{sT}, s{sJ}, 6
                v_lshrrev_b32 v120, 2, v0
                v_add_u32 v120, s{sT}, v120
                v_and_b32 v122, 3, v0
                v_mad_u32_u24 v120, v120, 48, v122
                s_lshl2_add_u32 s{sT}, s{sG}, 16
                v_add_lshl_u32 v120, v120, s{sT}, 7
                global_load_dword v121, v120, {p(sWM)} {NT}
                """)
            elif it == 'H':
                g(f's_lshr_b32 s{sT}, s{sWAVE}, 1\ns_lshl1_add_u32 s{sT}, s{sJ}, s{sT}\ns_mul_i32 s{sT}, s{sT}, {H3A_S}')
                base(sT + 1, H3A_G, H3A, sT)
                g(f'v_bfe_u32 v120, v0, 2, 5\nv_lshl_add_u32 v120, v120, 7, s{sT+1}\nglobal_load_dword v121, v120, {p(sWS)} sc1')
            elif it[0] == 'T':
                base(sT, H3A_G, H3A + 128 + 12)
                r, l = g.lab('retry'), g.lab('trig')
                g(f"""
                v_and_b32 v120, 15, v0
                v_mul_u32_u24 v120, {H3A_S}, v120
                v_add_u32 v120, s{sT}, v120
                s_branch {l}
                {r}:
                s_sub_u32 s{sTO}, s{sTO}, 1
                s_cbranch_scc1 Lexit
                {l}:
                global_load_dword v121, v120, {p(sWS)} sc1
                s_waitcnt vmcnt(0)
                v_cmp_eq_u32 vcc, s{sTAG}, v121
                s_bcnt1_i32_b32 s{sT}, vcc_lo
                s_cmp_lt_u32 s{sT}, {2 * int(it[1:])}
                s_cbranch_scc1 {r}
                """)
            elif it == 'P':
                g(f's_lshl_b32 s{sT}, s{sJ}, 11')
                base(sT + 1, H4_REP, H4, sT)
                g(f'v_lshrrev_b32 v120, 4, v0\nv_lshl_add_u32 v120, v120, 7, s{sT+1}\nglobal_load_dword v121, v120, {p(sWS)} sc1')
            else:
                raise ValueError(it)

    g.stamp(0)
    g(f"""
    s_load_dwordx16 s[4:19], s[0:1], 0
    s_load_dwordx8 s[20:27], s[0:1], 64
    s_load_dwordx4 s[28:31], s[0:1], 96
    s_cmpk_ge_u32 s2, 256
    s_cbranch_scc1 Lexit0
    v_readfirstlane_b32 s{sWAVE}, v0
    s_and_b32 s{sG}, s2, 7
    s_lshr_b32 s{sJ}, s2, 3
    v_and_b32 v1, 63, v0
    s_lshr_b32 s{sWAVE}, s{sWAVE}, 6
    s_cmp_lt_u32 s{sWAVE}, 4
    s_cbranch_scc0 LH
    s_cmp_ge_u32 s{sJ}, 24
    s_cbranch_scc1 LM
    s_cmp_ge_u32 s{sJ}, 16
    s_cbranch_scc1 LQ
    s_branch LA
    LH:
    """)
    if LOCAL:
        l = g.lab('h')
        g(f's_cmp_lg_u32 s{sWAVE}, 7\ns_cbranch_scc1 {l}\ns_cmp_lt_u32 s{sJ}, 16\ns_cbranch_scc1 {l}')
        xcc_val()
        g(f"""
        s_lshl_b32 s{sT}, s{sG}, 5
        s_add_u32 s{sT}, s{sT}, s{sJ}
        v_mov_b32 v126, s{sT}
        v_mov_b32 v127, s{sXCC}
        s_mov_b64 exec, 1
        s_waitcnt lgkmcnt(0)
        global_store_byte v126, v127, {p(sDBG)}
        {l}:
        """)
    lq, lm = g.lab('hq'), g.lab('hm')

    def hop(targets):
        for w, t in zip((4, 5, 6), targets):
            g(f's_cmp_eq_u32 s{sWAVE}, {w}\ns_cbranch_scc1 {t}')
        g(f's_branch {targets[3]}')
    g(f's_mov_b64 exec, 0\ns_cmp_ge_u32 s{sJ}, 24\ns_cbranch_scc0 {lq}')
    hop(['LFH', 'PM1', 'PM2', 'PM3'] if WARM else ['LFH'] + ['Lexit1'] * 3)
    g(f'{lq}:\ns_cmp_ge_u32 s{sJ}, 16\ns_cbranch_scc0 {lm}')
    hop(['PQ1', 'PQ2', 'PQ3', 'PQ4'] if WARM else ['Lexit1'] * 4)
    g(f'{lm}:')
    if WARM: hop(['PA1', 'PA2', 'PA3', 'PA4'])
    g('LAres:\ns_mov_b64 exec, -1')
    if VA == 2:
        g(f"""
        v_and_b32 v125, 3, v1
        v_lshlrev_b32 v125, 2, v125
        v_mov_b32 v4, 0xff800000
        v_mov_b32 v5, 0
        ds_write2_b32 v125, v4, v5 offset0:{L_MX // 4} offset1:{L_SM // 4}
        s_waitcnt lgkmcnt(0)
        s_barrier
        """)
    vK, vV, vVT, vQ, vP = 8, 40, 72, 104, 108
    g(f"""
    LA:
    s_lshl_b32 s{sT}, s{sG}, 24
    s_lshl_b32 s{sT+1}, s{sJ}, 16
    s_add_u32 s{sT}, s{sT}, s{sT+1}
    s_add_u32 s{sT}, s{sT}, {15 << 20}
    s_and_b32 s{sT+2}, s{sJ}, {7 if int(opt.get('rot', 1)) else 0}
    """)
    PAT = int(opt.get('pat', 1))
    if PAT == 0: g(f's_and_b32 s{sT+1}, s{sWAVE}, 4\ns_add_u32 s{sT+1}, s{sT+1}, s{sWAVE}\ns_xor_b32 s{sT+1}, s{sT+1}, s{sT+2}\ns_lshl_b32 s{sT+1}, s{sT+1}, 12')
    else: g(f's_and_b32 s{sT+1}, s{sWAVE}, 4\ns_mul_i32 s{sT+1}, s{sT+1}, 7\ns_add_u32 s{sT+1}, s{sT+1}, s{sWAVE}\ns_lshl2_add_u32 s{sT+1}, s{sT+2}, s{sT+1}\ns_lshl_b32 s{sT+1}, s{sT+1}, 10')
    g(f"""
    s_add_u32 s{sT}, s{sT}, s{sT+1}
    v_lshl_add_u32 v2, v1, 4, s{sT}
    v_and_b32 v5, 12, v0
    v_and_b32 v6, 48, v0
    v_mul_u32_u24 v5, 48, v5
    v_mul_u32_u24 v6, 12, v6
    v_add_u32 v3, v2, v5
    v_sub_u32 v3, v3, v6
    """)
    if LOCAL:
        xcc_val()
        g(f's_lshl_b32 s{sT}, s{sG}, 5\ns_add_u32 s{sT}, s{sT}, s{sJ}\nv_mov_b32 v126, s{sT}\nv_mov_b32 v127, s{sXCC}')
    if PF:
        g(f"""
        s_lshl_b32 s{sT+3}, s{sJ}, 5
        s_and_b32 s{sT+4}, s{sJ}, 1
        s_mul_i32 s{sT+4}, s{sT+4}, 24
        s_lshl4_add_u32 s{sT+5}, s{sWAVE}, s{sT+3}
        s_sub_u32 s{sT+4}, s{sT+5}, s{sT+4}
        s_cmp_eq_u32 s{sWAVE}, 0
        s_cselect_b32 s{sT+3}, s{sT+3}, s{sT+4}
        s_cselect_b32 s{sT+4}, 1, 3
        s_cselect_b32 s{sT+5}, 48, 64
        v_lshrrev_b32 v5, s{sT+4}, v1
        v_bfe_u32 v6, v1, 0, s{sT+4}
        v_add_u32 v5, s{sT+3}, v5
        s_lshl_b32 s{sT+4}, s{sG}, s{sT+4}
        v_mad_u32_u24 v5, v5, s{sT+5}, v6
        v_add_lshl_u32 v5, v5, s{sT+4}, 7
        """)
    l = g.lab('a')
    g(f's_cmp_lg_u32 s{sWAVE}, 0\ns_waitcnt lgkmcnt(0)')
    g.stamp(1)
    g(f's_cbranch_scc1 {l}')
    if LOCAL: g(f's_mov_b64 exec, 1\nglobal_store_byte v126, v127, {p(sDBG)}\ns_mov_b64 exec, -1')
    g(f's_mov_b64 {p(sWQ)}, {p(sWM)}\n{l}:')
    if PF:
        l = g.lab('a')
        g(f"""
        s_bitcmp0_b32 {PF}, s{sWAVE}
        s_cbranch_scc1 {l}
        global_load_dword v{vVT+8}, v5, {p(sWQ)} {NT}
        {l}:
        """)
    g(f's_load_dword s{sTAG}, {p(sWS)}, 0')

    def load8(b, va, vd, step):
        for n in range(8):
            g(f'global_load_dwordx4 {v4(vd + 4 * n)}, v{va}, {p(b)} offset:{-4096 if n % 2 == 0 else 0} {NT}')
            if n % 2 == 1 and n != 7: g(f'v_add_u32 v{va}, s{step}, v{va}')

    def loadkv(b, va, vd):
        if PAT == 1:
            for n in range(8):
                g(f'global_load_dwordx4 {v4(vd + 4 * n)}, v{va}, {p(b)} {NT}')
                if n != 7: g(f'v_xor_b32 v{va}, {((n ^ (n + 1)) & 7) << 12}, v{va}')
            return
        for n in range(8):
            g(f'global_load_dwordx4 {v4(vd + 4 * n)}, v{va}, {p(b)} offset:{1024 * (n & 3)} {NT}')
            if n == 3: g(f'v_xor_b32 v{va}, 0x4000, v{va}')
    loadkv(sK, 3, vK)
    if VA == 2:
        loadkv(sV, 2, vV)
        g.stamp(2)
        l, lsp, r = g.lab('y'), g.lab('sp'), g.lab('retry')
        g(f's_cmp_ge_u32 s{sWAVE}, 4\ns_cbranch_scc1 {l}\ns_barrier\n{l}:')
        if DIAG >= 0:
            g('s_waitcnt vmcnt(0)')
            g.stamp(6)
            g.end()
        consts()
        for i in range(16): g(f'v_mov_b32 v{vP+i}, 0')
        base(sT, H2_G, H2)
        g(f"""
        v_lshlrev_b32 v124, 4, v1
        v_and_b32 v125, 3, v1
        v_lshrrev_b32 v4, 2, v1
        v_lshlrev_b32 v4, 5, v4
        v_lshl_add_u32 v3, v125, 9, v4
        v_lshlrev_b32 v125, 2, v125
        v_add_u32 v2, s{sT}, v124
        s_mov_b32 s{sT+4}, 0x000f000f
        s_mov_b32 s{sT+5}, 0x000f000f
        s_sub_u32 s{sDBG}, s{sDBG}, 2048
        s_subb_u32 s{sDBG+1}, s{sDBG+1}, 0
        s_movk_i32 m0, {L_Q}
        s_waitcnt lgkmcnt(0)
        """)
        mk_tag()
        xcc_addr()
        g(f"""
        v_lshlrev_b32 v127, 2, v1
        s_cmp_lg_u32 s{sWAVE}, 0
        s_cselect_b32 s63, -1, 0
        s_cmp_ge_u32 s{sWAVE}, 4
        s_cbranch_scc1 {lsp}
        s_call_b64 {p(sRET)}, Lvperm
        {r}:
        s_sub_u32 s{sTO}, s{sTO}, 1
        s_cbranch_scc1 Lexit
        s_sub_u32 s63, s63, 1
        s_cbranch_scc0 {lsp}
        s_mov_b32 s63, {int(opt.get('qn', 3))}
        global_load_lds_dword v126, {p(sDBG)} offset:2048 sc1
        global_load_lds_dwordx4 v2, {p(sWS)} sc1
        global_load_lds_dwordx4 v2, {p(sWS)} offset:1024 sc1
        {lsp}:
        ds_read_b128 {v4(vQ)}, v3 offset:{L_Q}
        ds_read_b128 v[4:7], v3 offset:{L_Q + 16}
        ds_read_b32 v0, v127 offset:{L_Q + 2048}
        s_waitcnt lgkmcnt(0)
        v_bitop3_b32 v{vQ+1}, v{vQ+1}, s{sTAG}, v{vQ+3} bitop3:0x7e
        v_bitop3_b32 v5, v5, s{sTAG}, v7 bitop3:0x7e
        v_or_b32 v5, v5, v{vQ+1}
        v_cmp_ne_u32 vcc, 0, v5
        s_cbranch_vccnz {r}
        v_mov_b32 v{vQ+1}, v{vQ+2}
        v_mov_b32 v{vQ+2}, v4
        v_mov_b32 v{vQ+3}, v6
        v_cmp_ne_u32 vcc, s{sXCC}, v0
        v_lshl_add_u32 v0, s{sWAVE}, 6, v1
        s_mov_b32 s{sLOC}, vcc_lo
        s_cmp_lt_u32 s{sWAVE}, 4
        s_cbranch_scc1 LAk
        """)
        g.stamp(3)
    else:
        g.stamp(2)
        consts()
        for i in range(16): g(f'v_mov_b32 v{vP+i}, 0')
        g(f"""
        v_lshlrev_b32 v124, 4, v1
        v_and_b32 v125, 3, v1
        v_lshlrev_b32 v125, 2, v125
        v_mov_b32 v4, 0xff800000
        ds_write2_b32 v125, v4, v{vP} offset0:{L_MX // 4} offset1:{L_SM // 4}
        s_mov_b32 s{sT+4}, 0x000f000f
        s_mov_b32 s{sT+5}, 0x000f000f
        s_waitcnt lgkmcnt(0)
        s_barrier
        """)
        mk_tag()
        lv, lsp = g.lab('v'), g.lab('sp')
        if VA:
            g(f's_mov_b32 s{sROLE}, 0\ns_cmp_lt_u32 s{sWAVE}, 4\ns_cbranch_scc1 {lv}\nLAq:\ns_mov_b32 s{sROLE}, 1')
        g(f"""
        v_mov_b32 v4, 0
        s_cmp_lg_u32 s{sWAVE}, 0
        s_cbranch_scc1 {lsp}
        """)
        base(sT, H2_G, H2)
        g(f"""
        v_add_u32 v5, s{sT}, v124
        v_bfe_u32 v6, v1, 1, 4
        v_lshrrev_b32 v7, 5, v1
        v_lshl_add_u32 v6, v6, 2, v7
        v_and_b32 v7, 1, v1
        v_lshl_add_u32 v6, v6, 1, v7
        v_lshlrev_b32 v6, 3, v6
        """)
        xcc_addr()
        g.poll(lambda: g(f'global_load_dwordx4 {v4(vVT)}, v5, {p(sWS)} sc1\nglobal_load_dwordx4 {v4(vVT+4)}, v5, {p(sWS)} offset:1024 sc1' + XLD),
               [vVT + 1, vVT + 3, vVT + 5, vVT + 7], 7)
        g(f'ds_write2_b32 v6, v{vVT}, v{vVT+2} offset0:{L_Q // 4} offset1:{L_Q // 4 + 1}\nds_write2_b32 v6, v{vVT+4}, v{vVT+6} offset0:{L_Q // 4 + 8} offset1:{L_Q // 4 + 9}')
        xcc_test()
        r = g.lab('retry')
        g(f"""
        v_mov_b32 v{vVT+8}, s{sLOC}
        ds_write2_b32 v4, v{vVT+8}, v{vVT+7} offset0:{L_FLAG // 4} offset1:{L_FLAG // 4 + 1}
        s_branch {lsp}
        {r}:
        s_sub_u32 s{sTO}, s{sTO}, 1
        s_cbranch_scc1 Lexit
        {lsp}:
        ds_read_b64 v[6:7], v4 offset:{L_FLAG}
        ds_read_b128 {v4(vQ)}, v124 offset:{L_Q}
        s_waitcnt lgkmcnt(0)
        v_cmp_ne_u32 vcc, s{sTAG}, v7
        s_cbranch_vccnz {r}
        v_readfirstlane_b32 s{sLOC}, v6
        """)
        g.stamp(3)
        if VA: g(f's_cmp_lt_u32 s{sWAVE}, 4\ns_cbranch_scc1 LAk\n{lv}:')
        loadkv(sV, 2, vV)
        if VA: g(f's_cmp_eq_u32 s{sROLE}, 0\ns_cbranch_scc1 LAq\nLAk:')
    g('s_waitcnt vmcnt(8)')
    if VA == 2: g('LAk:')
    g.stamp(4)
    for n in range(8):
        g(f'v_mfma_f32_16x16x32_bf16 {v4(vK - 4 + 4 * n)}, {v4(vK + 4 * n)}, {v4(vQ)}, 0')
    vS0 = 36
    if WARM: g.pad('PA1', 'LAres')
    else: g('s_nop 0')
    for half in range(2):
        for t in range(3):
            for beta in (2 * half, 2 * half + 1):
                for m in range(2):
                    n = 2 * beta + m
                    D = vK - 4 + 4 * n
                    pi = (beta + 1 + t) % 4
                    T = vS0 + m + 2 * (beta & 1)
                    g.dpp('v_add_f32', T, D + pi, D + beta if t == 0 else T, f'row_ror:{4 * ((beta - pi) % 4)}', 1 << beta)
    g('s_nop 0')
    g.dpp('v_mov_b32', vS0, vS0 + 2, None, 'quad_perm:[0,1,2,3]', 0xa)
    g.dpp('v_mov_b32', vS0 + 1, vS0 + 3, None, 'quad_perm:[0,1,2,3]', 0xa)
    g.rb2(vS0)
    g(f'v_mul_f32 v{vS0}, {SCALE:#x}, v{vS0}\nv_mul_f32 v{vS0+1}, {SCALE:#x}, v{vS0+1}')
    g.rb2(vS0)
    g(f'v_max_f32 v4, v{vS0}, v{vS0+1}\ns_lshl_b32 s{sT}, s{sWAVE}, 11\nv_add_u32 v6, s{sT}, v124')
    g.dpp('v_max_f32', 4, 4, 4, 'row_ror:8')
    g(f'v_lshlrev_b32 v7, 2, v0\nv_add_u32 v7, {L_O - 1024}, v7')
    g.dpp('v_max_f32', 4, 4, 4, 'row_ror:4')
    g(f"""
    s_mov_b64 exec, {p(sT+4)}
    ds_max_f32 v125, v4 offset:{L_MX}
    s_mov_b64 exec, -1
    s_waitcnt lgkmcnt(0)
    s_barrier
    ds_read_b32 v4, v125 offset:{L_MX}
    """)
    g.stamp(5)
    g(f's_mul_i32 s{sT}, s{sJ}, {H3A_S}')
    base(sT + 6, H3A_G, H3A)
    g(f"""
    s_add_u32 s{sT+7}, s{sT+6}, s{sT}
    s_sub_u32 s{sT}, s{sT+7}, 4096
    v_lshl_add_u32 v5, v0, 4, s{sT}
    v_mov_b32 v19, s{sTAG}
    s_waitcnt lgkmcnt(0)
    v_sub_f32 v{vS0}, v{vS0}, v4
    v_sub_f32 v{vS0+1}, v{vS0+1}, v4
    v_mul_f32 v{vS0}, {LOG2E:#x}, v{vS0}
    v_mul_f32 v{vS0+1}, {LOG2E:#x}, v{vS0+1}
    v_exp_f32 v{vS0}, v{vS0}
    v_exp_f32 v{vS0+1}, v{vS0+1}
    v_mul_f32 v4, {LOG2E:#x}, v4
    v_cvt_pk_bf16_f32 v{vS0+2}, v{vS0}, v{vS0+1}
    v_add_f32 v{vS0}, v{vS0}, v{vS0+1}
    s_nop 0
    """)
    for c in range(4):
        for m in range(4):
            rot = 4 * ((c - m) % 4)
            g.dpp('v_mov_b32', vP + 4 * c + m, vS0 + 2, None, f'row_ror:{rot}' if rot else 'quad_perm:[0,1,2,3]', 1 << c)
        if c < 2: g.dpp('v_add_f32', vS0, vS0, vS0, ROT[c])
    g(f's_mov_b64 exec, {p(sT+4)}\nds_add_f32 v125, v{vS0} offset:{L_SM}\ns_mov_b64 exec, -1')
    g.pad('PA2', 'LAres')
    if VA == 2:
        g(f"""
        s_cmp_lt_u32 s{sWAVE}, 4
        s_cbranch_scc1 Lpv
        s_getpc_b64 {p(sRET)}
        Lpc0:
        s_add_u32 s{sRET}, s{sRET}, Lpv-Lpc0
        s_addc_u32 s{sRET+1}, s{sRET+1}, 0
        Lvperm:
        s_cmp_lt_u32 s{sWAVE}, 4
        """)
    for m in range(4):
        g(f's_waitcnt vmcnt({6 - 2 * m})')
        if m == 3: g.stamp(6)
        for c in (0, 4, 1, 5, 2, 6, 3, 7):
            g(f'v_perm_b32 v{vVT + 4 * c + m}, v{vV + 8 * m + 4 + c // 2}, v{vV + 8 * m + c // 2}, s{sSHI if c & 1 else sSLO}')
    if VA == 2: g('s_cbranch_scc1 Lvret\nLpv:')
    for c in range(4):
        for a in range(2):
            g(f'v_mfma_f32_16x16x32_bf16 {v4(8 + 4 * a)}, {v4(vP + 4 * c)}, {v4(vVT + 16 * a + 4 * c)}, {v4(8 + 4 * a) if c else 0}')
    g(f"""
    s_cmp_lt_u32 s{sWAVE}, 4
    s_nop 5
    ds_write_b128 v6, v[8:11] offset:{L_O}
    ds_write_b128 v6, v[12:15] offset:{L_O + 1024}
    s_cbranch_scc1 LKW
    s_waitcnt lgkmcnt(0)
    s_barrier
    ds_read_b32 v18, v125 offset:{L_SM}
    """)
    regs = [16, 20, 22, 24, 26, 28, 30, 32]
    for w in range(8): g(f'ds_read2st64_b32 {v2(regs[w])}, v7 offset0:{8 * w} offset1:{8 * w + 4}')
    lgkm(8)
    g('v_rcp_f32 v34, v18\nv_log_f32 v18, v18')
    for a, b, wt in ((0, 1, 6), (2, 3, 4), (0, 2, None), (4, 5, 2), (0, 4, None), (6, 7, 0), (0, 6, None)):
        if wt is not None: lgkm(wt)
        g(f'v_pk_add_f32 {v2(regs[a])}, {v2(regs[a])}, {v2(regs[b])}')
        if wt == 6: g('v_add_f32 v18, v18, v4')
    g('v_pk_mul_f32 v[16:17], v[16:17], v[34:35] op_sel_hi:[1,0]')
    g.store_local([f'global_store_dwordx4 v5, v[16:19], {p(sWS)}'])
    g('s_barrier')
    g.stamp(7)
    fp24_consts(sT + 8)
    g(f's_add_u32 s{sT+13}, s{sTAG}, 0x40000000\ns_cmp_lt_u32 s{sWAVE}, 6\ns_cbranch_scc1 LRED')
    g(f"""
    v_mov_b32 v27, s{sT+13}
    v_bfe_u32 v2, v0, 3, 4
    v_and_b32 v3, 7, v0
    v_mul_u32_u24 v2, {H3A_S}, v2
    v_lshl_add_u32 v2, v3, 4, v2
    s_lshl_b32 s{sT}, s{sJ}, 8
    s_add_u32 s{sT}, s{sT}, s{sT+6}
    v_add_u32 v5, s{sT}, v2
    v_and_b32 v2, 1, v0
    v_bfe_u32 v3, v0, 1, 6
    v_mul_u32_u24 v2, 1152, v2
    v_lshl_add_u32 v2, v3, 4, v2
    s_and_b32 s{sT}, s{sG}, 4
    s_lshl1_add_u32 s{sT}, s{sT}, {L_W}
    v_add_u32 v2, s{sT}, v2
    v_xor_b32 v3, 8, v2
    s_barrier
    ds_read2st64_b64 v[8:11], v2 offset0:0 offset1:5
    ds_read2st64_b64 v[12:15], v2 offset0:10 offset1:15
    ds_read2st64_b64 v[28:31], v3 offset0:0 offset1:5
    ds_read2st64_b64 v[20:23], v3 offset0:10 offset1:15
    """)
    lgkm(2)
    g("""
    v_pk_add_f32 v[8:9], v[8:9], v[10:11]
    v_pk_add_f32 v[12:13], v[12:13], v[14:15]
    v_pk_add_f32 v[8:9], v[8:9], v[12:13]
    s_waitcnt lgkmcnt(0)
    v_pk_add_f32 v[28:29], v[28:29], v[30:31]
    v_pk_add_f32 v[20:21], v[20:21], v[22:23]
    v_pk_add_f32 v[10:11], v[28:29], v[20:21]
    """)
    fp24_pack(24, 8, sT + 8)
    g.store_local([f'global_store_dwordx4 v5, v[24:27], {p(sWS)}'])
    g.stamp(10)
    if STAMPS and DPF: g('s_barrier')
    g.end()
    g.pad('PA3', 'LAres')
    g(f"""
    LRED:
    v_mov_b32 v27, s{sTAG}
    v_and_b32 v2, 0x70, v0
    v_and_b32 v3, 15, v0
    v_lshl_add_u32 v4, v3, 8, v2
    v_add_u32 v4, s{sT+7}, v4
    s_lshl_b32 s{sT}, s{sJ}, 7
    """)
    base(sT + 1, 2048, H4, sT)
    g(f"""
    v_mul_u32_u24 v5, {H4_REP}, v3
    v_add3_u32 v5, v5, v2, s{sT+1}
    s_mov_b32 s{sT+4}, 0x00ff00ff
    s_mov_b32 s{sT+5}, 0x00ff00ff
    s_lshl1_add_u32 s{sT}, s{sJ}, s{sWAVE}
    s_sub_u32 s{sT}, s{sT}, 4
    s_mul_i32 s{sT}, s{sT}, 56
    v_min_u32 v6, 55, v1
    v_add_lshl_u32 v6, v6, s{sT}, 3
    v_add_lshl_u32 v6, v6, s{sG}, 7
    s_barrier
    """)
    g.poll(lambda: g(f'global_load_dwordx4 v[8:11], v4, {p(sWS)} sc1'), [11], None, tag=sT + 13)
    g.stamp(11)
    fp24_unpack(8, sT + 8)
    for s in ROT:
        for h in range(4): g.dpp('v_add_f32', 8 + h, 8 + h, 8 + h, s)
    fp24_pack(24, 8, sT + 8)
    g(f's_mov_b64 exec, {p(sT+4)}\nglobal_store_dwordx4 v5, v[24:27], {p(sWS)} sc1\ns_mov_b64 exec, -1')
    g.stamp(12)
    if DPF: g(f's_barrier\nglobal_load_dword v8, v6, {p(sDOWN)} {NTD}')
    g.end()
    if VA == 2: g(f'Lvret:\ns_setpc_b64 {p(sRET)}')
    g.flush_tail()
    g('.p2align 12')
    g.pad('PA4', 'LAres')
    g(f"""
    LKW:
    s_lshl2_add_u32 s{sT+3}, s{sJ}, s{sWAVE}
    s_and_b32 s{sT}, s{sT+3}, 15
    s_lshr_b32 s{sT+1}, s{sJ}, 2
    s_lshl3_add_u32 s{sT}, s{sT}, s{sT+1}
    s_lshl_b32 s{sT+1}, s{sG}, 9
    s_add_u32 s{sT}, s{sT}, s{sT+1}
    s_add_u32 s{sT}, s{sT}, 4
    s_lshl_b32 s{sT}, s{sT}, 10
    v_add_u32 v3, s{sT}, v124
    s_mov_b32 s{sT+2}, 0x20000
    """)
    WOPOS = int(opt.get('wopos', 0))
    if WOPOS == 0: load8(sWO, 3, vV, sT + 2)
    g(f"""
    s_waitcnt lgkmcnt(0)
    s_barrier
    s_lshl_b32 s{sT}, s{sT+3}, 6
    s_add_u32 s{sT}, s{sT}, s{sT+6}
    v_and_b32 v4, 15, v1
    v_mul_u32_u24 v4, {H3A_S}, v4
    v_and_b32 v5, 48, v1
    v_add3_u32 v4, v4, v5, s{sT}
    s_mul_i32 s{sT}, s{sWAVE}, 2560
    s_addk_i32 s{sT}, {L_W}
    v_add_u32 v6, s{sT}, v124
    s_barrier
    """)
    if WOPOS == 1: load8(sWO, 3, vV, sT + 2)
    ld = f'global_load_dwordx4 v[8:11], v4, {p(sWS)} sc1'
    g(ld)
    for i in range(8): g(f'v_mov_b32 v{16+i}, 0')
    for h in range(4):
        g(f's_waitcnt vmcnt({7 - 2 * h})')
        g.pair(vVT + 8 * h, vV + 8 * h, vV + 8 * h + 4, 4)
    g.stamp(8)
    g.poll(lambda: g(ld), [11], None, issued=True)
    g.stamp(9)
    for i, s in enumerate(ROT):
        if i: g('s_nop 1')
        g.dpp('v_max_f32', 12, 10 if i == 0 else 12, 10 if i == 0 else 12, s)
    g('v_sub_f32 v10, v10, v12\nv_exp_f32 v10, v10\ns_nop 0\nv_pk_mul_f32 v[8:9], v[8:9], v[10:11] op_sel_hi:[1,0]')
    for i, s in enumerate(ROT):
        g.dpp('v_add_f32', 10, 10, 10, s)
        if i == 0: g('s_nop 0')
        if i == 3: g('v_rcp_f32 v10, v10')
        g.dpp('v_add_f32', 8, 8, 8, s)
        g.dpp('v_add_f32', 9, 9, 9, s)
    g('v_pk_mul_f32 v[8:9], v[8:9], v[10:11] op_sel_hi:[1,0]\nv_cvt_pk_bf16_f32 v8, v8, v9\ns_nop 0')
    for h in range(4): g(f'v_readlane_b32 s{sT+h}, v8, {16*h}')
    for h in range(4):
        for c in range(8): g(f'v_dot2c_f32_bf16 v{16+c}, s{sT+h}, v{vVT+8*h+c}')
    g(f"""
    ds_write_b128 v6, v[16:19]
    s_nop 1
    ds_write_b128 v6, v[20:23] offset:1152
    s_waitcnt lgkmcnt(0)
    s_barrier
    """)
    g.stamp(10)
    if STAMPS and DPF: g('s_barrier')
    g.end()
    vW, vWP, vA = 10, 8, 76
    g.pad('PQ5', 'Lexit1')
    g('Lperm64:')
    for i in range(4): g(f'v_mov_b32 v{vA+i}, 0')
    for ks, wt in ((range(0, 16), 32), (range(16, 24), 16), (range(24, 28), 8), (range(28, 32), 0)):
        g(f's_waitcnt vmcnt({wt + 4})')
        for k in ks: g.pair(vWP + 2 * k, vW + 2 * k, vW + 2 * k + 1, 1)
    g(f's_setpc_b64 {p(sRET)}')

    vT, vLW, vLR, vPA, sST = 84, 80, 81, 82, sT + 8
    g('LG1:')
    stream(SQ)
    if DIAG >= 0: g.end()
    g(f's_cmp_eq_u32 s{sG}, 7\ns_cbranch_scc1 Lexit\ns_mov_b32 s{sROLE}, 2\nv_add_u32 v2, {4096 + 2048}, v2')
    base(sT, H4_REP, H4 + 4096)
    g(f"""
    v_lshrrev_b32 v{vT}, 1, v3
    v_and_b32 v{vT+1}, 1, v3
    v_lshl_add_u32 v{vT}, v{vT}, 4, s{sT}
    v_lshl_add_u32 v3, v{vT+1}, 13, v{vT}
    v_lshrrev_b32 v{vT}, 5, v0
    v_mul_u32_u24 v{vT}, {64*3584}, v{vT}
    v_and_b32 v{vT+6}, 15, v1
    v_lshl_add_u32 v{vT}, v{vT+6}, 2, v{vT}
    s_lshl_b32 s{sT}, s{sPM}, 6
    v_add_u32 v{vT}, s{sT}, v{vT}
    v_mov_b32 v{vT+2}, s{sGATE}
    v_mov_b32 v{vT+3}, s{sGATE+1}
    v_mov_b32 v{vT+4}, s{sUP}
    v_mov_b32 v{vT+5}, s{sUP+1}
    v_cmp_lt_u32 vcc, 15, v6
    v_mov_b32 v{vT+1}, 0
    s_movk_i32 s{sST}, 3584
    v_cndmask_b32 v4, v{vT+2}, v{vT+4}, vcc
    v_cndmask_b32 v5, v{vT+3}, v{vT+5}, vcc
    v_lshl_add_u64 v[4:5], {v2(vT)}, 0, v[4:5]
    """)
    g(f"""
    v_lshrrev_b32 v{vT}, 5, v1
    v_bfe_u32 v{vT+1}, v1, 4, 1
    v_lshl_add_u32 v{vT}, v{vT}, 1, v{vT+1}
    v_lshl_add_u32 v{vT}, v{vT+6}, 2, v{vT}
    s_lshl_b32 s{sT}, s{sWAVE}, 8
    s_addk_i32 s{sT}, {L_GP}
    v_lshl_add_u32 v{vLW}, v{vT}, 2, s{sT}
    v_lshl_add_u32 v{vLR}, v{vT+6}, 1, v{vT+1}
    v_lshlrev_b32 v{vLR}, 3, v{vLR}
    v_add_u32 v{vLR}, {L_GP}, v{vLR}
    v_bfe_u32 v{vT}, v0, 4, 3
    v_mul_u32_u24 v{vT}, {H5_REP}, v{vT}
    v_lshl_add_u32 v{vPA}, v{vT+6}, 3, v{vT}
    s_lshl_b32 s{sT}, s{sPM}, 7
    s_add_u32 s{sT}, s{sT}, {H5}
    v_add_u32 v{vPA}, s{sT}, v{vPA}
    """)
    fp24_consts(sT + 12)
    g('s_barrier')
    g.stamp(8)
    g('s_branch Lload64')

    def f_setup():
        consts()
        g(f's_and_b32 s{sJ}, s{sJ}, 7\ns_lshl3_add_u32 s{sPM}, s{sG}, s{sJ}\ns_lshl_b32 s{sW8}, s{sWAVE}, 3')
    g('.p2align 12\nLM:')
    if DIAG == 0: g('s_waitcnt lgkmcnt(0)\ns_branch Lexit')
    f_setup()
    vW, vA, vT, vS = 8, 40, 48, 80
    vLW, vLR, vPA = 81, 82, 83
    g(f"""
    v_lshrrev_b32 v4, 1, v0
    v_and_b32 v5, 1, v0
    v_mul_u32_u24 v4, {4*6144}, v4
    v_lshl_add_u32 v4, v5, 4, v4
    s_lshl_b32 s{sT}, s{sPM}, 5
    s_addk_i32 s{sT}, 3072
    v_add_u32 v4, s{sT}, v4
    v_add_u32 v3, 12288, v4
    v_lshlrev_b32 v6, 2, v0
    s_lshl_b32 s{sT}, s{sJ}, 6
    v_lshrrev_b32 v120, 2, v0
    v_add_u32 v120, s{sT}, v120
    v_bfe_u32 v122, v0, 1, 1
    v_mad_u32_u24 v120, v120, 48, v122
    s_lshl_b32 s{sT}, s{sG}, 1
    v_add_lshl_u32 v120, v120, s{sT}, 7
    s_waitcnt lgkmcnt(0)
    """)
    g.stamp(1)
    if int(opt.get('mpf', 0)): g(f'global_load_dword v121, v120, {p(sWM)} {NT}')
    g(f"""
    global_load_dword v6, v6, {p(sC)}
    global_load_dwordx4 {v4(vW)}, v4, {p(sWM)} offset:-3072 {NT}
    global_load_dwordx4 {v4(vW+4)}, v4, {p(sWM)} offset:3072 {NT}
    global_load_dwordx4 {v4(vW+8)}, v3, {p(sWM)} offset:-3072 {NT}
    global_load_dwordx4 {v4(vW+12)}, v3, {p(sWM)} offset:3072 {NT}
    s_load_dword s{sTAG}, {p(sWS)}, 0
    """)
    for i in range(8): g(f'v_mov_b32 v{vA+i}, 0')
    g(f"""
    v_lshrrev_b32 v{vT}, 4, v1
    v_lshl_add_u32 v{vT}, v{vT}, 1, v5
    v_lshl_add_u32 v{vLW}, v{vT}, 5, s{sW8}
    v_and_b32 v{vT}, 3, v1
    v_bfe_u32 v{vT+1}, v1, 2, 1
    v_lshl_add_u32 v{vT}, v{vT}, 1, v{vT+1}
    v_lshlrev_b32 v{vLR}, 5, v{vT}
    v_and_b32 v{vT}, 7, v1
    v_lshrrev_b32 v{vT+1}, 3, v1
    v_mul_u32_u24 v{vT+1}, {MOD_REP}, v{vT+1}
    v_lshl_add_u32 v{vPA}, v{vT}, 3, v{vT+1}
    s_lshl_b32 s{sT}, s{sPM}, 6
    s_add_u32 s{sT}, s{sT}, {MOD}
    v_add_u32 v{vPA}, s{sT}, v{vPA}
    s_waitcnt vmcnt(4)
    """)
    g.unpack(vT, 6)
    g.silu2(vT, vT + 2)
    g(f'v_cvt_pk_bf16_f32 v{vS}, v{vT}, v{vT+1}')
    g('s_waitcnt lgkmcnt(0)')
    mk_tag()
    g(f'v_mov_b32 v85, s{sTAG}')
    for k in range(2):
        g(f's_waitcnt vmcnt({2 - 2 * k})')
        if k: g.stamp(2)
        g.pair(vT + 8 * k, vW + 8 * k, vW + 8 * k + 4, 4)
        for c in range(8): g.dpp('v_dot2c_f32_bf16', vA + c, vS, vT + 8 * k + c, f'quad_perm:[{k},{k},{k+2},{k+2}]')
    g.red8(vA, 2)

    def fin_pairs(lds, nw):
        l = g.lab('nm')
        g(f"""
        ds_write_b64 v{vLW}, {v2(vA)} offset:{lds}
        s_waitcnt lgkmcnt(0)
        s_barrier
        s_cmp_ge_u32 s{sWAVE}, {nw}
        s_cbranch_scc1 {l}
        ds_read_b128 {v4(vT)}, v{vLR} offset:{lds}
        ds_read_b128 {v4(vT+4)}, v{vLR} offset:{lds+16}
        s_waitcnt lgkmcnt(0)
        """)
        g.sum4(vT)
        g(f"""
        v_cvt_pk_bf16_f32 v84, v{vT}, v{vT+1}
        global_store_dwordx2 v{vPA}, v[84:85], {p(sWS)} sc1
        {l}:
        s_barrier
        """)
    fin_pairs(L_MP, 1)
    g.stamp(3)
    if 0 <= DIAG <= 2: g.end()
    stream(SM1 + '.R')
    g.pad('PM1', 'Lexit1')
    g(f"""
    v_lshrrev_b32 v4, 2, v0
    v_and_b32 v5, 3, v0
    v_mul_u32_u24 v4, {8*6144}, v4
    v_lshl_add_u32 v4, v5, 4, v4
    s_lshl_b32 s{sT}, s{sPM}, 6
    s_addk_i32 s{sT}, {2048 + 3072}
    v_add_u32 v4, s{sT}, v4
    s_movk_i32 s{sT}, 12288
    """)
    for k in range(4):
        g(f'global_load_dwordx4 {v4(vW+8*k)}, v4, {p(sWM)} offset:-3072 {NT}\nglobal_load_dwordx4 {v4(vW+8*k+4)}, v4, {p(sWM)} offset:3072 {NT}')
        if k != 3: g(f'v_add_u32 v4, s{sT}, v4')
    for i in range(8): g(f'v_mov_b32 v{vA+i}, 0')
    g(f"""
    v_lshrrev_b32 v{vT}, 4, v1
    v_lshl_add_u32 v{vT}, v{vT}, 2, v5
    v_lshl_add_u32 v{vLW}, v{vT}, 5, s{sW8}
    v_bfe_u32 v{vT}, v1, 2, 2
    v_lshl_add_u32 v{vT}, v5, 2, v{vT}
    v_lshlrev_b32 v{vLR}, 5, v{vT}
    v_and_b32 v{vT}, 15, v1
    v_bfe_u32 v{vT+1}, v0, 4, 3
    v_mul_u32_u24 v{vT+1}, {MOD_REP}, v{vT+1}
    v_lshl_add_u32 v{vPA}, v{vT}, 3, v{vT+1}
    s_lshl_b32 s{sT}, s{sPM}, 7
    s_add_u32 s{sT}, s{sT}, {MOD + 4096}
    v_add_u32 v{vPA}, s{sT}, v{vPA}
    """)
    for k in range(4):
        g(f's_waitcnt vmcnt({6 - 2 * k})')
        if k == 3: g.stamp(4)
        g.pair(vT + 8 * k, vW + 8 * k, vW + 8 * k + 4, 4)
        for c in range(8): g.dpp('v_dot2c_f32_bf16', vA + c, vS, vT + 8 * k + c, f'quad_perm:[{k},{k},{k},{k}]')
    g.red8(vA, 4)
    g.pad('PM2', 'Lexit1')
    fin_pairs(L_RP, 2)
    g.stamp(5)
    stream(SM2)
    if DIAG >= 0: g.end()
    vW, vWP, vA, vT = 16, 48, 80, 88
    l = g.lab('d1')
    g(f"""
    s_lshl_b32 s{sT}, s{sPM}, 4
    v_lshl_add_u32 v4, v0, 12, s{sT}
    v_add_u32 v5, 0x100000, v4
    """)
    for i in range(16): g(f'v_mov_b32 v{vW+16+i}, 0')
    g('s_barrier')
    g.stamp(6)
    for n in range(4): g(f'global_load_dwordx4 {v4(vW + 4 * n)}, v4, {p(sDOWN)} offset:{1024 * n} {opt.get("ntdr", NTD)}')
    base(sT, H5_REP, H5)
    g(f'v_lshl_add_u32 v2, v0, 4, s{sT}\nv_mov_b32 v3, v2\ns_cmp_eq_u32 s{sWAVE}, 3\ns_cbranch_scc1 {l}')
    for n in range(4): g(f'global_load_dwordx4 {v4(vW + 16 + 4 * n)}, v5, {p(sDOWN)} offset:{1024 * n} {opt.get("ntdr", NTD)}')
    g(f'v_add_u32 v3, 4096, v2\n{l}:\nv_lshrrev_b32 v6, 4, v1\nv_lshl_add_u32 v6, v6, 5, s{sW8}')
    for i in range(8): g(f'v_mov_b32 v{vA+i}, 0')
    g.pad('PM3', 'Lexit1')
    g('s_waitcnt vmcnt(0)')
    for k in range(4): g.pair(vWP + 8 * k, vW + 8 * k, vW + 8 * k + 4, 4)
    g.stamp(8)
    g.poll(lambda: g(f'global_load_dwordx4 {v4(vT)}, v2, {p(sWS)} sc1\nglobal_load_dwordx4 {v4(vT+4)}, v3, {p(sWS)} sc1'),
           [vT + 1, vT + 3, vT + 5, vT + 7], vT + 8)
    g.stamp(9)
    for k in range(4):
        for c in range(8): g(f'v_dot2c_f32_bf16 v{vA+c}, v{vT+2*k}, v{vWP+8*k+c}')
    g.red8(vA, 1)
    g(f'ds_write_b64 v6, {v2(vA)} offset:{L_D}\ns_waitcnt lgkmcnt(0)\ns_barrier')
    g.stamp(10)
    g.end()
    if DIAG >= 0: g('LFH:\ns_endpgm')
    g(f'LFH{"x" if DIAG >= 0 else ""}:\ns_mov_b64 exec, -1\ns_waitcnt lgkmcnt(0)\ns_load_dword s{sTAG}, {p(sWS)}, 0')
    f_setup()
    g(f"""
    v_bfe_u32 v2, v1, 3, 1
    v_bfe_u32 v3, v1, 4, 1
    v_lshl_add_u32 v5, v2, 1, v3
    v_lshlrev_b32 v6, 5, v5
    v_lshl_add_u32 v5, s{sPM}, 2, v5
    v_lshlrev_b32 v7, 2, v5
    v_bfe_u32 v4, v1, 2, 1
    v_cmp_ne_u32 {p(sT+4)}, v4, v3
    """)
    base(sT, MOD_REP, MOD + 4096 + 3072)
    g(f'v_lshl_add_u32 v3, v5, 3, s{sT}')
    base(sT, H4_REP, H4)
    g(f"""
    v_lshl_add_u32 v2, s{sPM}, 1, v2
    v_lshl_add_u32 v2, v2, 4, s{sT}
    v_and_b32 v4, 7, v1
    v_lshl_add_u32 v4, v4, 11, v2
    s_waitcnt lgkmcnt(0)
    """)
    mk_tag()
    fp24_consts(sT + 8)
    g('s_barrier\n' * 5)
    g(f'global_load_dword v8, v7, {p(sX)}')
    g.poll(lambda: g(f"""
        global_load_dwordx2 v[10:11], v3, {p(sWS)} offset:-3072 sc1
        global_load_dwordx2 v[12:13], v3, {p(sWS)} offset:3072 sc1
        global_load_dwordx4 v[16:19], v4, {p(sWS)} sc1"""), [11, 13, 19], 14)
    g.stamp(8)
    for r in (8, 10, 12): g.unpack(r, r)
    fp24_unpack(16, sT + 8)
    g(f'v_cndmask_b32 v14, v16, v18, {p(sT+4)}\nv_cndmask_b32 v15, v17, v19, {p(sT+4)}')
    for s in ('quad_perm:[1,0,3,2]', 'quad_perm:[2,3,0,1]', 'row_half_mirror'):
        g('s_nop 0')
        g.dpp('v_add_f32', 14, 14, 14, s)
        g.dpp('v_add_f32', 15, 15, 15, s)
    g.rb2(14)
    g('v_pk_mul_f32 v[14:15], v[14:15], v[10:11]')
    g.rb2(14)
    g('v_pk_add_f32 v[14:15], v[14:15], v[8:9]')
    g.rb2(14)
    g(f"""
    s_mov_b64 exec, 0x01010101
    s_barrier
    ds_read_b128 v[16:19], v6 offset:{L_D}
    ds_read_b128 v[20:23], v6 offset:{L_D+16}
    s_waitcnt lgkmcnt(0)
    """)
    g.sum4(16)
    g.rb2(16)
    g('v_pk_mul_f32 v[16:17], v[16:17], v[12:13]')
    g.rb2(16)
    g(f"""
    v_pk_add_f32 v[16:17], v[16:17], v[14:15]
    v_cvt_pk_bf16_f32 v16, v16, v17
    global_store_dword v7, v16, {p(sOUT)}
    """)
    g.stamp(10)
    g(f"""
    s_cmp_lg_u32 s{sPM}, 0
    s_cbranch_scc1 Ldend
    v_mov_b32 v2, 0
    v_mov_b32 v3, s{sTAG}
    global_store_dword v2, v3, {p(sWS)} sc1
    Ldend:
    """)
    g.end()
    vW, vWP, vA, vT = 10, 8, 76, 84
    vLW, vLR, vPA, vSS = 80, 81, 82, 83
    vX, vGA, vSB, vCB, vY = 104, 106, 108, 110, 112
    sST = sT + 8
    g('.p2align 12\nLQ:')
    if 0 <= DIAG <= 1: g('s_waitcnt lgkmcnt(0)\ns_branch Lexit')
    f_setup()
    l = g.lab('qp')
    g(f"""
    s_mov_b32 s{sROLE}, 0
    v_and_b32 v7, 7, v0
    v_bfe_u32 v{vT+1}, v0, 3, 1
    v_lshl_add_u32 v{vT}, v7, 1, v{vT+1}
    v_and_or_b32 v3, v0, -16, v{vT}
    v_lshlrev_b32 v116, 2, v3
    v_lshrrev_b32 v4, 5, v0
    v_and_b32 v6, 31, v0
    v_lshlrev_b32 v4, 19, v4
    v_lshl_add_u32 v4, v6, 2, v4
    s_lshl_b32 s{sT}, s{sPM}, 7
    v_add_u32 v4, s{sT}, v4
    v_mov_b32 v5, 0
    s_movk_i32 s{sST}, 0x2000
    s_mov_b32 s{sST+1}, 0
    v_lshrrev_b32 v120, 3, v0
    v_lshl_add_u32 v120, v120, 6, v7
    s_lshl_b32 s{sT}, s{sJ}, 12
    s_lshl3_add_u32 s{sT}, s{sG}, s{sT}
    v_add_lshl_u32 v120, v120, s{sT}, 7
    s_cmp_ge_u32 s{sWAVE}, {int(opt.get('qpf', 2))}
    s_waitcnt lgkmcnt(0)
    """)
    g.stamp(1)
    if int(opt.get('qpf', 2)):
        g(f's_cbranch_scc1 {l}\nglobal_load_dword v121, v120, {p(sWQ)} {NT}\n{l}:')
    g(f"""
    s_load_dword s{sTAG}, {p(sWS)}, 0
    global_load_dword v{vY}, v116, {p(sX)}
    v_lshl_add_u64 v[4:5], {p(sWQ)}, 0, v[4:5]
    Lload64:
    """)
    for n in range(64):
        g(f'global_load_dword v{vW + n}, v[4:5], off {opt.get("nt64", NT)}')
        if n == 50: g.pad('PQ1', 'Lexit1')
        if n != 63: g(f'v_lshl_add_u64 v[4:5], {p(sST)}, 0, v[4:5]')
    g(f's_cmp_lg_u32 s{sROLE}, 0\ns_cbranch_scc1 LG2')
    g.stamp(2)
    QX = int(opt.get('qx', 0))
    if QX == 1: g.end()
    xcc_addr()
    g(f's_lshl_b32 s{sT}, s{sJ}, 8')
    base(sT + 1, H2_G, H2, sT)
    g(f'v_lshl_add_u32 v{vPA}, v6, 3, s{sT+1}')
    base(sT, MOD_REP, MOD)
    g(f'v_lshl_add_u32 v2, v3, 3, s{sT}\nglobal_load_dword v121, v{vPA}, {p(sWS)} sc1')
    H1F = opt.get('h1f', 'sc1').replace('_', ' ')
    h1 = lambda: g(f'global_load_dwordx2 {v2(vSB)}, v2, {p(sWS)} {H1F}\nglobal_load_dwordx2 {v2(vCB)}, v2, {p(sWS)} offset:2048 {H1F}' + (XLD if not opt.get('noxld') else f'\nglobal_load_dword v127, v2, {p(sWS)} {H1F}'))
    h1()
    g(f"""
    v_lshrrev_b32 v{vT+2}, 5, v1
    v_bfe_u32 v{vT+3}, v1, 4, 1
    v_lshlrev_b32 v{vT+4}, 5, v{vT+2}
    v_lshl_add_u32 v{vT+4}, v{vT+3}, 2, v{vT+4}
    v_add_u32 v{vSS}, s{sW8}, v{vT+4}
    s_lshl_b32 s{sT}, s{sWAVE}, 8
    s_addk_i32 s{sT}, {L_QP}
    v_lshl_add_u32 v{vLW}, v6, 1, v{vT+2}
    v_lshl_add_u32 v{vLW}, v{vLW}, 2, s{sT}
    v_lshlrev_b32 v{vLR}, 3, v6
    v_add_u32 v{vLR}, {L_QP}, v{vLR}
    s_waitcnt vmcnt(63)
    """)
    g.unpack(vY, vY)
    g.stats_wave(vY, vT)
    g(f'ds_write_b32 v{vSS}, v{vT} offset:{L_XS}\nv_mov_b32 v7, 0\ns_waitcnt lgkmcnt(0)\ns_barrier')
    for i in range(4): g(f'ds_read_b128 {v4(vT + 4 * i)}, v7 offset:{L_XS + 16 * i}')
    mk_tag()
    g(f'v_mov_b32 v115, s{sTAG}\ns_waitcnt lgkmcnt(0)')
    g.stats_fin(vT)
    g.ln_apply(vY, vT)
    g(f's_call_b64 {p(sRET)}, Lperm64')
    g.stamp(4)
    if QX == 2: g.end()
    g.poll(h1, [vSB + 1, vCB + 1], vT, issued=True)
    g.stamp(5)
    if QX == 3: g.end()
    g.unpack(vCB, vCB)
    g(f'v_add_f32 v{vCB}, 1.0, v{vCB}\nv_add_f32 v{vCB+1}, 1.0, v{vCB+1}')
    xcc_test()
    g.rb2(vCB)
    g.unpack(vSB, vSB)
    g('s_branch Lmodulate')
    g.pad('PQ2', 'Lexit1')
    l = g.lab('nq')
    g(f"""
    LQ2:
    s_cmp_lg_u32 s{sWAVE}, 0
    s_cbranch_scc1 {l}
    v_cvt_pk_bf16_f32 v114, v{vT}, v{vT+1}
    s_mov_b32 exec_hi, 0
    """)
    g.store_local([f'global_store_dwordx2 v{vPA}, v[114:115], {p(sWS)}'])
    g(f's_mov_b32 exec_hi, -1\n{l}:\ns_barrier')
    g.stamp(6)
    g('s_branch LG1')
    g.pad('PQ3', 'PQ5')
    hr = lambda: g(f"""
        global_load_dwordx2 {v2(vGA)}, v2, {p(sWS)} offset:-2048 sc1
        global_load_dwordx2 {v2(vSB)}, v2, {p(sWS)} sc1
        global_load_dwordx2 {v2(vCB)}, v2, {p(sWS)} offset:2048 sc1""")
    g(f'LG2:\nglobal_load_dword v{vX}, v116, {p(sX)}')
    hr()
    g(f's_call_b64 {p(sRET)}, Lperm64')
    g.stamp(9)
    g.poll(hr, [vGA + 1, vSB + 1, vCB + 1], vT, issued=True)
    g.stamp(7)

    def h4loads():
        for i in range(4):
            g(f'global_load_dwordx4 {v4(vT + 4 * i)}, v3, {p(sWS)} offset:{i * 2048 - 4096} sc1')
    h4loads()
    for r in (vX, vGA, vSB, vCB): g.unpack(r, r)
    g(f'v_add_f32 v{vCB}, 1.0, v{vCB}\nv_add_f32 v{vCB+1}, 1.0, v{vCB+1}')
    g.rb2(vCB)
    g.poll(h4loads, [vT + 4 * i + 3 for i in range(4)], vT + 16, issued=True)
    g.stamp(11)
    for i in range(4): fp24_unpack(vT + 4 * i, sT + 12)
    for a, b in ((2, 6), (10, 14), (0, 4), (2, 10), (8, 12)):
        g(f'v_pk_add_f32 {v2(vT+a)}, {v2(vT+a)}, {v2(vT+b)}')
    g('s_nop 0')
    g.dpp('v_add_f32', vY, vT + 2, vT, 'row_ror:8')
    g.dpp('v_add_f32', vY + 1, vT + 3, vT + 1, 'row_ror:8')
    g(f'v_pk_add_f32 {v2(vY)}, {v2(vY)}, {v2(vT+8)}')
    g.rb2(vY)
    g(f'v_pk_mul_f32 {v2(vY)}, {v2(vY)}, {v2(vGA)}')
    g.rb2(vY)
    g(f'v_pk_add_f32 {v2(vY)}, {v2(vY)}, {v2(vX)}')
    g.rb2(vY)
    g.stats_wave(vY, vT)
    g(f'ds_write_b32 v{vSS}, v{vT} offset:{L_GS}\ns_waitcnt lgkmcnt(0)\ns_barrier')
    for i in range(4): g(f'ds_read_b128 {v4(vT + 4 * i)}, v7 offset:{L_GS + 16 * i}')
    g('s_waitcnt lgkmcnt(0)')
    g.stats_fin(vT)
    g.ln_apply(vY, vT)
    g.stamp(12)
    g('Lmodulate:')
    g(f'v_pk_mul_f32 {v2(vY)}, {v2(vY)}, {v2(vCB)}')
    g.rb2(vY)
    g(f"""
    v_pk_add_f32 {v2(vT)}, {v2(vY)}, {v2(vSB)}
    v_cvt_pk_bf16_f32 v{vY}, v{vT}, v{vT+1}
    v_cvt_pk_bf16_f32 v{vY+1}, v{vT}, v{vT+1}
    s_nop 1
    v_permlane16_swap_b32 v{vY}, v{vY+1}
    s_nop {0 if WARM else 1}
    """)
    g.pad('PQ4', 'Lexit1')
    for k in range(16):
        lam = (k >> 1) + 8 * (k & 1)
        for a in range(4): g.dpp('v_dot2c_f32_bf16', vA + a, vY + (a >> 1), vWP + 32 * (a >> 1) + 2 * k + (a & 1), f'row_newbcast:{lam}')
    g(f"""
    s_nop 2
    v_pk_add_f32 {v2(vA)}, {v2(vA)}, {v2(vA+2)}
    s_nop 1
    v_permlane32_swap_b32 v{vA}, v{vA+1}
    v_add_f32 v{vA}, v{vA}, v{vA+1}
    ds_write_b32 v{vLW}, v{vA}
    s_waitcnt lgkmcnt(0)
    s_barrier
    ds_read2_b64 {v4(vT)}, v{vLR} offset0:0 offset1:32
    ds_read2_b64 {v4(vT+4)}, v{vLR} offset0:64 offset1:96
    s_cmp_eq_u32 s{sROLE}, 0
    s_waitcnt lgkmcnt(0)
    """)
    g.sum4(vT)
    g('s_cbranch_scc1 LQ2')
    g.rb2(vT)
    g(f"""
    v_mul_f32 v{vT+2}, 0xbfb8aa3b, v{vT}
    v_exp_f32 v{vT+2}, v{vT+2}
    s_cmp_ge_u32 s{sWAVE}, 2
    v_add_f32 v{vT+2}, 1.0, v{vT+2}
    v_rcp_f32 v{vT+2}, v{vT+2}
    s_cbranch_scc1 Lexit
    v_mul_f32 v{vT}, v{vT}, v{vT+2}
    """)
    g.rb1(vT)
    g(f'v_pk_mul_f32 {v2(vT)}, {v2(vT)}, {v2(vT)} op_sel:[0,1] op_sel_hi:[0,1]\ns_nop 1\nv_permlane16_swap_b32 v{vT}, v{vT+1}')
    g(f'v_cvt_pk_bf16_f32 v114, v{vT}, v{vT+1}\nglobal_store_dwordx2 v{vPA}, v[114:115], {p(sWS)} sc1')
    g.stamp(13)
    g.end()
    g.flush_tail()
    if opt.get('stamps'):
        g(f"""
        Lexit1:
        s_endpgm
        Lexit:
        Lfin:
        s_memrealtime {p(sSTAMP + 28)}
        s_sleep 127
        s_sleep 127
        s_sleep 127
        s_mov_b32 s{sSTAMP + 30}, s{sLOC}
        s_mov_b64 exec, 1
        s_lshl3_add_u32 s{sT}, s2, s{sWAVE}
        s_lshl_b32 s{sT}, s{sT}, 6
        s_add_u32 s{sT}, s{sT}, {STAMP_OFF}
        v_mov_b32 v2, s{sT}
        s_waitcnt lgkmcnt(0)
        """)
        if opt.get('probe'):
            wg, wv, st, T0, mult = map(int, opt['probe'].split(':'))
            g(f"""
            s_cmp_lg_u32 s2, {wg}
            s_cbranch_scc1 Lexit0
            s_cmp_lg_u32 s{sWAVE}, {wv}
            s_cbranch_scc1 Lexit0
            s_sub_u32 s{sT}, s{sSTAMP + 2 * st}, s{sSTAMP}
            s_mul_i32 s{sT}, s{sT}, {mult}
            s_add_u32 s{sT}, s{sT}, {T0}
            s_min_u32 s{sT}, s{sT}, 100000
            Lpad:
            s_memrealtime {p(sT + 2)}
            s_waitcnt lgkmcnt(0)
            s_sub_u32 s{sT+2}, s{sT+2}, s{sSTAMP}
            s_cmp_lt_u32 s{sT+2}, s{sT}
            s_cbranch_scc1 Lpad
            """)
        else:
            for i in range(16):
                g(f'v_mov_b32 v3, s{sSTAMP + 2 * i}\nglobal_store_dword v2, v3, {p(sWS)} offset:{4 * i}')
    else:
        g('Lexit1:\nLexit:')
    g('Lexit0:\ns_endpgm')
    g(f"""
    .section .rodata,"a"
    .p2align 6
    .amdhsa_kernel {K}
    """)
    for d in ('next_free_vgpr 128', f'next_free_sgpr {96 if opt.get("stamps") else 64}', 'accum_offset 128', 'group_segment_fixed_size 0', 'kernarg_size 112',
              'user_sgpr_count 2', 'user_sgpr_kernarg_segment_ptr 1', 'system_sgpr_workgroup_id_x 1', 'float_denorm_mode_32 3'):
        g.L.append('  .amdhsa_' + d)
    g('.end_amdhsa_kernel')
    return '\n'.join(g.L) + '\n'


if __name__ == '__main__':
    opt = {}
    out = sys.argv[1]
    for a in sys.argv[2:]:
        k, _, v = a.partition('=')
        opt[k] = v if _ else True
    open(out, 'w').write(gen(opt))
```

```python
import sys

NAME = 'adaLN_cond__sliding_block_cached__swiglu_ffn__decode'
K = NAME + '_kernel'

MARK = 0x1f000
MOD = 0x01000
MOD_REP = 0x3100
H2 = 0xd4000
H2_G = 0x1480
H3A = 0x20000
H3A_S = 4224
H3A_G = 16 * H3A_S
H4 = 0xa4000
H4_REP = 0x4100
H5 = 0xc5000
H5_REP = 0x1d00
STAMP_OFF = 0x1000000
assert MOD + 8 * MOD_REP <= MARK and H5 + 8 * H5_REP <= H2 and H3A + 8 * H3A_G <= H4 and H4 + 8 * H4_REP <= H5

L_FLAG = 0
L_MX = 16
L_SM = 32
L_LOC = 48
L_Q = 64
L_O = 2560
L_W = L_O + 16384
L_MP = 0
L_RP = 256
L_D = 768
L_XS = 0
L_GS = 64
L_QP = 256
L_GP = 1280
LDS_BYTES = L_W + 10240

sX, sK, sV, sWQ, sWO, sGATE, sUP, sDOWN, sC, sWM, sOUT, sDBG, sWS = 4, 6, 8, 10, 12, 16, 18, 20, 22, 24, 26, 28, 30
sWAVE = 3
sTAG, sG, sJ, sTO, sSLO, sSHI, sXCC, sLOC, sPM, sROLE = 32, 33, 34, 35, 36, 37, 38, 39, 40, 41
sT = 42
sRET = 60
sW8 = 62
sSTAMP = 64

LOG2E = 0x3fb8aa3b
SCALE = 0x3db504f3
EPS = 0x3727c5ac
INV512 = 0x3b000000


def p(r): return f's[{r}:{r+1}]'
def v2(r): return f'v[{r}:{r+1}]'
def v4(r): return f'v[{r}:{r+3}]'


class G:
    def __init__(self, opt):
        self.L = []
        self.o = opt
        self.nlab = 0

    def __call__(self, s):
        for line in s.strip('\n').split('\n'):
            line = line.strip()
            if line:
                self.L.append(line if line.endswith(':') or line.startswith('.') else '    ' + line)

    def lab(self, n):
        self.nlab += 1
        return f'L{n}{self.nlab}'

    def stamp(self, i):
        if self.o.get('stamps'):
            self(f's_memrealtime {p(sSTAMP + 2 * i)}')

    def dpp(self, op, d, s0, s1, ctrl, bank=0xf):
        if s1 is None:
            self(f'{op}_dpp v{d}, v{s0} {ctrl} row_mask:0xf bank_mask:{bank:#x}')
        else:
            self(f'{op}_dpp v{d}, v{s0}, v{s1} {ctrl} row_mask:0xf bank_mask:{bank:#x}')

    def poll(self, loads, tags, tmp, issued=False, tag=sTAG):
        r, l = self.lab('retry'), self.lab('poll')
        self(f's_branch {l}\n{r}:\ns_sub_u32 s{sTO}, s{sTO}, 1\ns_cbranch_scc1 Lexit')
        if not issued: self(f'{l}:')
        loads()
        if issued: self(f'{l}:')
        self('s_waitcnt vmcnt(0)')
        if len(tags) == 1:
            self(f'v_cmp_ne_u32 vcc, s{tag}, v{tags[0]}')
        else:
            self(f'v_bitop3_b32 v{tmp}, v{tags[0]}, s{sTAG}, v{tags[1]} bitop3:0x7e')
            for t in tags[2:]:
                self(f'v_bitop3_b32 v{tmp}, v{t}, s{sTAG}, v{tmp} bitop3:0xbe')
            self(f'v_cmp_ne_u32 vcc, 0, v{tmp}')
        self(f's_cbranch_vccnz {r}')

    def pair(self, dst, a, b, W):
        for c in range(2 * W):
            self(f'v_perm_b32 v{dst + c}, v{b + c // 2}, v{a + c // 2}, s{sSHI if c & 1 else sSLO}')

    def red8(self, a, lpr):
        self('s_nop 1')
        for i in range(4): self(f'v_permlane32_swap_b32 v{a+i}, v{a+4+i}')
        for i in (0, 2, 1, 3): self(f'v_add_f32 v{a+i}, v{a+i}, v{a+4+i}')
        self(f'v_permlane16_swap_b32 v{a}, v{a+2}')
        self('s_nop 0')
        self(f'v_permlane16_swap_b32 v{a+1}, v{a+3}')
        self(f'v_add_f32 v{a}, v{a}, v{a+2}\nv_add_f32 v{a+1}, v{a+1}, v{a+3}')
        steps = ['row_ror:8', 'row_ror:4']
        if lpr <= 2: steps.append('quad_perm:[2,3,0,1]')
        if lpr == 1: steps.append('quad_perm:[1,0,3,2]')
        for s in steps:
            self('s_nop 0')
            self.dpp('v_add_f32', a, a, a, s)
            self.dpp('v_add_f32', a + 1, a + 1, a + 1, s)

    def red4(self, a):
        self('s_nop 1')
        self(f'v_permlane32_swap_b32 v{a}, v{a+2}\nv_permlane32_swap_b32 v{a+1}, v{a+3}')
        self(f'v_add_f32 v{a}, v{a}, v{a+2}\nv_add_f32 v{a+1}, v{a+1}, v{a+3}')
        self('s_nop 1')
        self(f'v_permlane16_swap_b32 v{a}, v{a+1}')
        self(f'v_add_f32 v{a}, v{a}, v{a+1}')

    def sum4(self, r):
        self(f'v_pk_add_f32 {v2(r)}, {v2(r)}, {v2(r+2)}\nv_pk_add_f32 {v2(r+4)}, {v2(r+4)}, {v2(r+6)}\nv_pk_add_f32 {v2(r)}, {v2(r)}, {v2(r+4)}')

    def unpack(self, d, s):
        self(f'v_and_b32 v{d+1}, 0xffff0000, v{s}\nv_lshlrev_b32 v{d}, 16, v{s}')

    def rb2(self, d):
        self(f'v_cvt_pk_bf16_f32 v{d}, v{d}, v{d+1}')
        self.unpack(d, d)

    def rb1(self, d):
        self(f'v_cvt_pk_bf16_f32 v{d}, v{d}, v{d}\nv_lshlrev_b32 v{d}, 16, v{d}')

    def silu2(self, x, t):
        self(f'v_mul_f32 v{t}, 0xbfb8aa3b, v{x}\nv_mul_f32 v{t+1}, 0xbfb8aa3b, v{x+1}')
        self(f'v_exp_f32 v{t}, v{t}\nv_exp_f32 v{t+1}, v{t+1}')
        self(f'v_add_f32 v{t}, 1.0, v{t}\nv_add_f32 v{t+1}, 1.0, v{t+1}')
        self(f'v_rcp_f32 v{t}, v{t}\nv_rcp_f32 v{t+1}, v{t+1}')
        self(f'v_mul_f32 v{x}, v{x}, v{t}\nv_mul_f32 v{x+1}, v{x+1}, v{t+1}')

    def stats_wave(self, x, t):
        self(f'v_mul_f32 v{t+1}, v{x}, v{x}\nv_add_f32 v{t}, v{x}, v{x+1}\nv_fmac_f32 v{t+1}, v{x+1}, v{x+1}')
        self('s_nop 1')
        self(f'v_permlane32_swap_b32 v{t}, v{t+1}\nv_add_f32 v{t}, v{t}, v{t+1}')
        for s in ('row_ror:8', 'row_ror:4', 'row_ror:2', 'row_ror:1'):
            self('s_nop 1')
            self.dpp('v_add_f32', t, t, t, s)

    def stats_fin(self, r):
        for i in (0, 8):
            self(f'v_pk_add_f32 {v2(r+i)}, {v2(r+i)}, {v2(r+i+2)}\nv_pk_add_f32 {v2(r+i+4)}, {v2(r+i+4)}, {v2(r+i+6)}')
        self(f'v_pk_add_f32 {v2(r)}, {v2(r)}, {v2(r+4)}\nv_pk_add_f32 {v2(r+8)}, {v2(r+8)}, {v2(r+12)}')
        self(f'v_add_f32 v{r}, v{r}, v{r+1}\nv_add_f32 v{r+1}, v{r+8}, v{r+9}')
        self(f'v_mul_f32 v{r}, {INV512:#x}, v{r}\nv_mul_f32 v{r+1}, {INV512:#x}, v{r+1}')
        self(f'v_fma_f32 v{r+1}, -v{r}, v{r}, v{r+1}\nv_max_f32 v{r+1}, 0, v{r+1}')
        self.rb2(r)
        self(f'v_add_f32 v{r+1}, {EPS:#x}, v{r+1}')
        self.rb1(r + 1)
        self(f'v_sqrt_f32 v{r+1}, v{r+1}\ns_nop 0')
        self.rb1(r + 1)
        self(f'v_rcp_f32 v{r+1}, v{r+1}')

    def ln_apply(self, x, m):
        self(f'v_sub_f32 v{x}, v{x}, v{m}\nv_sub_f32 v{x+1}, v{x+1}, v{m}')
        self.rb2(x)
        self(f'v_mul_f32 v{x}, v{x}, v{m+1}\nv_mul_f32 v{x+1}, v{x+1}, v{m+1}')
        self.rb2(x)

    def store_local(self, insts):
        a, b = self.lab('far'), self.lab('sd')
        if self.o.get('nolocal'):
            for i in insts: self(i + ' sc1')
            return
        self(f's_cmp_eq_u32 s{sLOC}, 0\ns_cbranch_scc0 {a}')
        for i in insts: self(i)
        self(f'{b}:')
        self.tail.append((a, [i + ' sc1' for i in insts], b))

    def flush_tail(self):
        for a, insts, b in self.tail:
            self(f'{a}:')
            for i in insts: self(i)
            self(f's_branch {b}')
        self.tail = []

    def pad(self, name, target):
        if self.o.get('warm', '1') != '0':
            self(f'{name}:\ns_cbranch_execz {target}')

    def end(self):
        self('s_branch Lfin' if self.o.get('stamps') else 's_endpgm')


def gen(opt):
    g = G(opt)
    g.tail = []
    NT = opt.get('nt', '')
    NTK = opt.get('ntk', 'nt')
    NTO = opt.get('nto', 'nt')
    LOCAL = not opt.get('nolocal')
    NTG, NTD, NTW, NTV = (opt.get(k, d).replace('_', ' ') for k, d in (('ntg', ''), ('ntd', ''), ('ntw', ''), ('ntv', '')))
    PF = int(opt.get('pf', 15))
    VA = int(opt.get('va', 3))
    WARM = opt.get('warm', '1') != '0'
    STAMPS = opt.get('stamps')
    DIAG = int(opt.get('diag', -1))
    DPF = int(opt.get('dpf', 0))
    SM1 = opt.get('sm1', 'Vc.Vd'); SM2 = opt.get('sm2', 'G1.D'); SQ = opt.get('sq', 'P.H.W0.W1.G0')
    hdr = open('cdna_kernels/' + NAME + '.s.ref').read().split('; Override launch')[0] if opt.get('hdr', True) else ''
    g.L.append(hdr.rstrip('\n'))
    g.L.append(f'; @launch grid=(256,1,1) block=(512,1,1) lds={LDS_BYTES}')
    g(f'.amdgcn_target "amdgcn-amd-amdhsa--gfx950"\n.text\n.globl {K}\n.p2align 12\n.fill 832, 4, 0xbf810000\n.p2align 8\n.type {K},@function\n{K}:')
    ROT = ('row_ror:8', 'row_ror:4', 'row_ror:2', 'row_ror:1')

    def lgkm(n):
        g(f's_waitcnt lgkmcnt({0 if STAMPS else n})')

    def consts():
        g(f's_mov_b32 s{sTO}, 0x100000\ns_mov_b32 s{sSLO}, 0x05040100\ns_mov_b32 s{sSHI}, 0x07060302')

    def mk_tag():
        g(f's_mul_i32 s{sTAG}, s{sTAG}, 0x9e3779b1\ns_add_u32 s{sTAG}, s{sTAG}, 0x7f4a7c15')

    def xcc_val():
        g(f's_getreg_b32 s{sXCC}, hwreg(HW_REG_XCC_ID, 0, 4)\ns_or_b32 s{sXCC}, s{sXCC}, 0x80\ns_mul_i32 s{sXCC}, s{sXCC}, 0x01010101')

    def xcc_addr():
        xcc_val()
        g(f'v_and_b32 v126, 7, v0\nv_lshlrev_b32 v126, 2, v126\nv_lshl_add_u32 v126, s{sG}, 5, v126')

    def xcc_test():
        g(f'v_cmp_ne_u32 vcc, s{sXCC}, v127\ns_mov_b32 s{sLOC}, vcc_lo')
    XLD = f'\nglobal_load_dword v127, v126, {p(sDBG)} sc1'

    def base(dst, mul, off, extra=None):
        g(f's_mul_i32 s{dst}, s{sG}, {mul}\ns_add_u32 s{dst}, s{dst}, {off}')
        if extra is not None: g(f's_add_u32 s{dst}, s{dst}, s{extra}')

    def fp24_consts(a):
        g(f's_mov_b32 s{a}, 0x0c04000c\ns_mov_b32 s{a+1}, 0x0402010c\ns_mov_b32 s{a+2}, 0x07060501\ns_mov_b32 s{a+3}, 0x07060502\ns_mov_b32 s{a+4}, 0x07060503')

    def fp24_unpack(r, a):
        g(f'v_perm_b32 v{r+3}, v{r+1}, v{r}, s{a}\nv_perm_b32 v{r+3}, v{r+2}, v{r+3}, s{a+1}')

    def fp24_pack(d, r, a):
        for i in range(3): g(f'v_perm_b32 v{d+i}, v{r+i}, v{r+3}, s{a+2+i}')

    def stream(spec, counted=False):
        g(f's_lshl_b32 s{sT}, s{sJ}, 5\nv_xor_b32 v123, s{sT}, v0' if int(opt.get('rot', 1)) else 'v_mov_b32 v123, v0')
        for it in spec.split('.'):
            if not it: continue
            if it[0] == 'V':
                off = {'a': 0, 'b': 65536, 'c': 32768, 'd': 98304, 'x': 32768, 'y': 49152}[it[1]]
                g(f's_lshl_b32 s{sT}, s{sG}, 24\ns_lshl_b32 s{sT+1}, s{sJ}, 17\ns_add_u32 s{sT}, s{sT}, s{sT+1}\ns_add_u32 s{sT}, s{sT}, {(15 << 20) + off}')
                if it[1] in 'xy':
                    g(f's_lshr_b32 s{sT+1}, s{sWAVE}, 1\ns_mul_i32 s{sT+1}, s{sT+1}, 49152\ns_add_u32 s{sT}, s{sT}, s{sT+1}')
                g(f'v_lshl_add_u32 v120, v{0 if it[1] in "xy" else 123}, 7, s{sT}\nglobal_load_dword v121, v120, {p(sV)} {NTV}')
            elif it[0] == 'W':
                g(f's_lshl4_add_u32 s{sT}, s{sG}, s{sJ}\ns_add_u32 s{sT}, s{sT}, {8 * int(it[1])}\ns_lshl_b32 s{sT}, s{sT}, 15')
                g(f'v_lshl_add_u32 v120, v123, 7, s{sT}\nglobal_load_dword v121, v120, {p(sWO)} {NTW}')
            elif it[0] == 'G':
                l = g.lab('ng')
                g(f"""
                s_cmp_eq_u32 s{sG}, 7
                {f's_cselect_b64 exec, 1, -1' if counted else f's_cbranch_scc1 {l}'}
                s_lshr_b32 s{sT}, s{sWAVE}, 1
                s_lshl1_add_u32 s{sT}, s{sJ}, s{sT}
                s_lshl_b32 s{sT}, s{sT}, 4
                s_addk_i32 s{sT}, {256 * int(it[1])}
                v_lshrrev_b32 v120, 2, v1
                v_add_u32 v120, s{sT}, v120
                v_and_b32 v122, 3, v1
                v_mad_u32_u24 v120, v120, 28, v122
                s_min_u32 s{sT}, s{sG}, 6
                s_lshl_b32 s{sT}, s{sT}, 2
                v_add_lshl_u32 v120, v120, s{sT}, 7
                s_bitcmp1_b32 s{sWAVE}, 0
                s_cselect_b64 {p(sT)}, {p(sUP)}, {p(sGATE)}
                global_load_dword v121, v120, {p(sT)} {NTG}
                {'s_mov_b64 exec, -1' if counted else ''}
                {l}:
                """)
            elif it == 'D':
                g(f"""
                s_mul_i32 s{sT}, s{sJ}, 224
                v_min_u32 v120, 223, v0
                v_add_lshl_u32 v120, v120, s{sT}, 3
                v_add_lshl_u32 v120, v120, s{sG}, 7
                global_load_dword v121, v120, {p(sDOWN)} {NTD}
                """)
            elif it == 'R':
                g(f"""
                s_lshl_b32 s{sT}, s{sJ}, 6
                v_lshrrev_b32 v120, 2, v0
                v_add_u32 v120, s{sT}, v120
                v_and_b32 v122, 3, v0
                v_mad_u32_u24 v120, v120, 48, v122
                s_lshl2_add_u32 s{sT}, s{sG}, 16
                v_add_lshl_u32 v120, v120, s{sT}, 7
                global_load_dword v121, v120, {p(sWM)} {NT}
                """)
            elif it == 'H':
                g(f's_lshr_b32 s{sT}, s{sWAVE}, 1\ns_lshl1_add_u32 s{sT}, s{sJ}, s{sT}\ns_mul_i32 s{sT}, s{sT}, {H3A_S}')
                base(sT + 1, H3A_G, H3A, sT)
                g(f'v_bfe_u32 v120, v0, 2, 5\nv_lshl_add_u32 v120, v120, 7, s{sT+1}\nglobal_load_dword v121, v120, {p(sWS)} sc1')
            elif it[0] in 'TU':
                if it[0] == 'T':
                    base(sT, H3A_G, H3A + 128 + 12)
                    g(f'v_mul_u32_u24 v120, {H3A_S}, v1\nv_add_u32 v120, s{sT}, v120')
                else:
                    base(sT, 128, MARK)
                    g(f'v_lshl_add_u32 v120, v1, 2, s{sT}')
                r, l = g.lab('retry'), g.lab('trig')
                g(f"""
                s_mov_b64 exec, 0xffff
                s_branch {l}
                {r}:
                s_sub_u32 s{sTO}, s{sTO}, 1
                s_cbranch_scc1 Lexit
                {l}:
                global_load_dword v121, v120, {p(sWS)} sc1
                s_waitcnt vmcnt(0)
                v_cmp_eq_u32 vcc, s{sTAG}, v121
                s_bcnt1_i32_b32 s{sT}, vcc_lo
                s_cmp_lt_u32 s{sT}, {int(it[1:])}
                s_cbranch_scc1 {r}
                s_mov_b64 exec, -1
                """)
            elif it == 'P':
                g(f's_lshl_b32 s{sT}, s{sJ}, 11')
                base(sT + 1, H4_REP, H4, sT)
                g(f'v_lshrrev_b32 v120, 4, v0\nv_lshl_add_u32 v120, v120, 7, s{sT+1}\nglobal_load_dword v121, v120, {p(sWS)} sc1')
            else:
                raise ValueError(it)

    g.stamp(0)
    g(f"""
    s_load_dwordx16 s[4:19], s[0:1], 0
    s_load_dwordx8 s[20:27], s[0:1], 64
    s_load_dwordx4 s[28:31], s[0:1], 96
    s_cmpk_ge_u32 s2, 256
    s_cbranch_scc1 Lexit0
    v_readfirstlane_b32 s{sWAVE}, v0
    s_and_b32 s{sG}, s2, 7
    s_lshr_b32 s{sJ}, s2, 3
    v_and_b32 v1, 63, v0
    s_lshr_b32 s{sWAVE}, s{sWAVE}, 6
    s_cmp_lt_u32 s{sWAVE}, 4
    s_cbranch_scc0 LH
    s_cmp_ge_u32 s{sJ}, 24
    s_cbranch_scc1 LM
    s_cmp_ge_u32 s{sJ}, 16
    s_cbranch_scc1 LQ
    s_branch LA
    LH:
    """)
    if LOCAL:
        l = g.lab('h')
        g(f's_cmp_lg_u32 s{sWAVE}, 7\ns_cbranch_scc1 {l}\ns_cmp_lt_u32 s{sJ}, 16\ns_cbranch_scc1 {l}')
        xcc_val()
        g(f"""
        s_lshl_b32 s{sT}, s{sG}, 5
        s_add_u32 s{sT}, s{sT}, s{sJ}
        v_mov_b32 v126, s{sT}
        v_mov_b32 v127, s{sXCC}
        s_mov_b64 exec, 1
        s_waitcnt lgkmcnt(0)
        global_store_byte v126, v127, {p(sDBG)}
        """)
        if int(opt.get('pt', 1)):
            g(f's_cmp_ge_u32 s{sJ}, 24\ns_cbranch_scc1 {l}\ns_mov_b64 exec, 0x1ffff\ns_mul_i32 s{sT}, s{sJ}, 1536')
            base(sT + 1, MOD_REP, MOD - 16 * 1536, sT)
            g(f's_mul_i32 s{sT}, s{sJ}, 640')
            base(sT + 2, H2_G, H2 - 16 * 640 - 12 * 128, sT)
            g(f"""
            v_mov_b32 v2, s{sT+1}
            v_mov_b32 v3, s{sT+2}
            v_cmp_lt_u32 vcc, 11, v1
            s_nop 1
            v_cndmask_b32 v2, v2, v3, vcc
            v_lshl_add_u32 v2, v1, 7, v2
            global_load_dword v3, v2, {p(sWS)} sc1
            """)
        g(f'{l}:')
    lq, lm = g.lab('hq'), g.lab('hm')

    def hop(targets):
        for w, t in zip((4, 5, 6), targets):
            g(f's_cmp_eq_u32 s{sWAVE}, {w}\ns_cbranch_scc1 {t}')
        g(f's_branch {targets[3]}')
    g(f's_mov_b64 exec, 0\ns_cmp_ge_u32 s{sJ}, 24\ns_cbranch_scc0 {lq}')
    hop(['LFH', 'PM1', 'PM2', 'PM3'] if WARM else ['LFH'] + ['Lexit1'] * 3)
    g(f'{lq}:\ns_cmp_ge_u32 s{sJ}, 16\ns_cbranch_scc0 {lm}')
    hop(['PQ1', 'PQ2', 'PQ3', 'PQ4'] if WARM else ['Lexit1'] * 4)
    g(f'{lm}:')
    if WARM: hop(['PA1', 'PA2', 'PA3', 'PA4'])
    g('LAres:\ns_mov_b64 exec, -1')
    if VA >= 2:
        g(f"""
        v_and_b32 v125, 3, v1
        v_lshlrev_b32 v125, 2, v125
        v_mov_b32 v4, 0xff800000
        v_mov_b32 v5, 0
        ds_write2_b32 v125, v4, v5 offset0:{L_MX // 4} offset1:{L_SM // 4}
        s_waitcnt lgkmcnt(0)
        s_barrier
        """)
    vK, vV, vVT, vQ, vP = 8, 40, 72, 104, 108
    g(f"""
    LA:
    s_lshl_b32 s{sT}, s{sG}, 24
    s_lshl_b32 s{sT+1}, s{sJ}, 16
    s_add_u32 s{sT}, s{sT}, s{sT+1}
    s_add_u32 s{sT}, s{sT}, {15 << 20}
    s_and_b32 s{sT+2}, s{sJ}, {7 if int(opt.get('rot', 1)) else 0}
    """)
    PAT = int(opt.get('pat', 1))
    if PAT == 0: g(f's_and_b32 s{sT+1}, s{sWAVE}, 4\ns_add_u32 s{sT+1}, s{sT+1}, s{sWAVE}\ns_xor_b32 s{sT+1}, s{sT+1}, s{sT+2}\ns_lshl_b32 s{sT+1}, s{sT+1}, 12')
    else: g(f's_and_b32 s{sT+1}, s{sWAVE}, 4\ns_mul_i32 s{sT+1}, s{sT+1}, 7\ns_add_u32 s{sT+1}, s{sT+1}, s{sWAVE}\ns_lshl2_add_u32 s{sT+1}, s{sT+2}, s{sT+1}\ns_lshl_b32 s{sT+1}, s{sT+1}, 10')
    g(f"""
    s_add_u32 s{sT}, s{sT}, s{sT+1}
    v_lshl_add_u32 v2, v1, 4, s{sT}
    v_and_b32 v5, 12, v0
    v_and_b32 v6, 48, v0
    v_mul_u32_u24 v5, 48, v5
    v_mul_u32_u24 v6, 12, v6
    v_add_u32 v3, v2, v5
    v_sub_u32 v3, v3, v6
    """)
    if LOCAL:
        xcc_val()
        g(f's_lshl_b32 s{sT}, s{sG}, 5\ns_add_u32 s{sT}, s{sT}, s{sJ}\nv_mov_b32 v126, s{sT}\nv_mov_b32 v127, s{sXCC}')
    if PF:
        g(f"""
        s_lshl_b32 s{sT+3}, s{sJ}, 5
        s_and_b32 s{sT+4}, s{sJ}, 1
        s_mul_i32 s{sT+4}, s{sT+4}, 24
        s_lshl4_add_u32 s{sT+5}, s{sWAVE}, s{sT+3}
        s_sub_u32 s{sT+4}, s{sT+5}, s{sT+4}
        s_cmp_eq_u32 s{sWAVE}, 0
        s_cselect_b32 s{sT+3}, s{sT+3}, s{sT+4}
        s_cselect_b32 s{sT+4}, 1, 3
        s_cselect_b32 s{sT+5}, 48, 64
        v_lshrrev_b32 v5, s{sT+4}, v1
        v_bfe_u32 v6, v1, 0, s{sT+4}
        v_add_u32 v5, s{sT+3}, v5
        s_lshl_b32 s{sT+4}, s{sG}, s{sT+4}
        v_mad_u32_u24 v5, v5, s{sT+5}, v6
        v_add_lshl_u32 v5, v5, s{sT+4}, 7
        """)
    l = g.lab('a')
    g(f's_cmp_lg_u32 s{sWAVE}, 0\ns_waitcnt lgkmcnt(0)')
    g.stamp(1)
    g(f's_cbranch_scc1 {l}')
    if LOCAL: g(f's_mov_b64 exec, 1\nglobal_store_byte v126, v127, {p(sDBG)}\ns_mov_b64 exec, -1')
    g(f's_mov_b64 {p(sWQ)}, {p(sWM)}\n{l}:')
    if PF:
        l = g.lab('a')
        g(f"""
        s_bitcmp0_b32 {PF}, s{sWAVE}
        s_cbranch_scc1 {l}
        global_load_dword v{vVT+8}, v5, {p(sWQ)} {NT}
        {l}:
        """)
    g(f's_load_dword s{sTAG}, {p(sWS)}, 0')

    def load8(b, va, vd, step):
        for n in range(8):
            g(f'global_load_dwordx4 {v4(vd + 4 * n)}, v{va}, {p(b)} offset:{-4096 if n % 2 == 0 else 0} {NTO}')
            if n % 2 == 1 and n != 7: g(f'v_add_u32 v{va}, s{step}, v{va}')

    def loadkv(b, va, vd):
        if PAT == 1:
            for n in range(8):
                g(f'global_load_dwordx4 {v4(vd + 4 * n)}, v{va}, {p(b)} {NTK}')
                if n != 7: g(f'v_xor_b32 v{va}, {((n ^ (n + 1)) & 7) << 12}, v{va}')
            return
        for n in range(8):
            g(f'global_load_dwordx4 {v4(vd + 4 * n)}, v{va}, {p(b)} offset:{1024 * (n & 3)} {NTK}')
            if n == 3: g(f'v_xor_b32 v{va}, 0x4000, v{va}')
    loadkv(sK, 3, vK)
    if VA >= 2:
        loadkv(sV, 2, vV)
        g.stamp(2)
        l, lsp, r = g.lab('y'), g.lab('sp'), g.lab('retry')
        g(f's_cmp_ge_u32 s{sWAVE}, 4\ns_cbranch_scc1 {l}\ns_barrier\n{l}:')
        if DIAG >= 0:
            g('s_waitcnt vmcnt(0)')
            g.stamp(6)
            g.end()
        consts()
        for i in range(16): g(f'v_mov_b32 v{vP+i}, 0')
    if VA == 3:
        r2, lp = g.lab('retry'), g.lab('fl')
        g(f"""
        v_lshlrev_b32 v124, 4, v1
        v_and_b32 v125, 3, v1
        v_lshlrev_b32 v125, 2, v125
        v_mov_b32 v3, 0
        s_mov_b64 s[0:1], {p(sWO)}
        s_mov_b64 s[100:101], {p(sDOWN)}
        s_waitcnt lgkmcnt(0)
        """)
        mk_tag()
        g(f"""
        s_cmp_ge_u32 s{sWAVE}, 4
        s_cbranch_scc1 {lsp}
        s_call_b64 {p(sRET)}, Lvperm
        s_lshl_b32 s{sT}, s{sG}, 5
        s_load_dwordx8 s[4:11], {p(sDBG)}, s{sT}
        """)
        base(sT + 1, H2_G, H2 + 1024)
        g(f"""
        s_lshl_b32 s{sT}, s{sWAVE}, 8
        s_lshl2_add_u32 s{sT+2}, s{sT}, s{sT+1}
        s_add_u32 s{sT}, s{sT}, s{sT+1}
        s_add_u32 s{sT+1}, s{sT+2}, {64 * int(opt.get('nc', 15))}
        s_add_u32 s{sDBG}, s{sWS}, s{sT}
        s_addc_u32 s{sDBG+1}, s{sWS+1}, 0
        s_mov_b32 s{sXCC+1}, s{sXCC}
        v_lshl_add_u32 v2, v1, 2, s{sWAVE}
        v_lshlrev_b32 v2, 4, v2
        v_lshlrev_b32_e64 v4, 2, s{sWAVE}
        v_mov_b32 v5, s{sTAG}
        s_mov_b64 exec, 1
        {r2}:
        s_cmp_lt_u32 s{sT+2}, s{sT+1}
        s_cbranch_scc0 Lfglc
        s_load_dwordx2 s[12:13], {p(sWS)}, s{sT+2}
        s_add_u32 s{sT+2}, s{sT+2}, 64
        {lp}:
        s_waitcnt lgkmcnt(0)
        s_cmp_lg_u32 s12, s{sTAG}
        s_cbranch_scc1 {r2}
        s_cmp_lg_u32 s13, s{sTAG}
        s_cbranch_scc1 {r2}
        """)
        g.stamp(7)
        g(f"""
        s_load_dwordx16 s[44:59], {p(sDBG)}, -1024
        s_load_dwordx16 s[80:95], {p(sDBG)}, {-1024 + 64}
        s_load_dwordx16 s[12:27], {p(sDBG)}, {-1024 + 128}
        s_load_dwordx4 s[60:63], {p(sDBG)}, {-1024 + 192}
        s_load_dwordx4 s[96:99], {p(sDBG)}, {-1024 + 208}
        """)
        for i in range(4): g(f's_xor_b64 {p(4+2*i)}, {p(4+2*i)}, {p(sXCC)}')
        g(f's_or_b64 s[4:5], s[4:5], s[6:7]\ns_or_b64 s[8:9], s[8:9], s[10:11]\ns_or_b64 s[4:5], s[4:5], s[8:9]\ns_or_b32 s{sLOC}, s4, s5')
        g(f's_load_dwordx8 s[4:11], {p(sDBG)}, {-1024 + 224}\nv_mov_b32 v6, s{sLOC}\nds_write_b32 v4, v6 offset:{L_LOC}\ns_waitcnt lgkmcnt(0)')
        g.stamp(1)
        srcs = [44, 48, 52, 56, 80, 84, 88, 92, 12, 16, 20, 24, 60, 96, 4, 8]
        for c, sr in enumerate(srcs):
            g(f'v_mov_b64 {v2(vV)}, {p(sr)}\nv_mov_b64 {v2(vV+2)}, {p(sr+2)}')
            g('s_lshl_b32 exec_lo, exec_lo, 1' if c != 15 else 's_mov_b32 exec_lo, 0xffff')
        g(f"""
        ds_write_b128 v2, {v4(vV)} offset:{L_Q}
        ds_write_b32 v4, v5 offset:{L_FLAG}
        s_mov_b64 exec, -1
        s_branch {lsp}
        PA1:
        s_branch LAres
        Lfglc:
        s_sub_u32 s{sTO}, s{sTO}, 1
        s_cbranch_scc1 Lexit
        s_load_dwordx2 s[12:13], {p(sWS)}, s{sT+2} glc
        s_branch {lp}
        {r}:
        s_sub_u32 s{sTO}, s{sTO}, 1
        s_cbranch_scc1 Lexit
        {lsp}:
        ds_read_b128 v[4:7], v3 offset:{L_FLAG}
        ds_read_b128 {v4(vQ)}, v124 offset:{L_Q}
        ds_read_b32 v2, v3 offset:{L_LOC}
        s_waitcnt lgkmcnt(0)
        v_bitop3_b32 v4, v4, s{sTAG}, v5 bitop3:0x7e
        v_bitop3_b32 v6, v6, s{sTAG}, v7 bitop3:0x7e
        v_or_b32 v4, v4, v6
        v_cmp_ne_u32 vcc, 0, v4
        s_cbranch_vccnz {r}
        v_readfirstlane_b32 s{sLOC}, v2
        s_mov_b32 s{sT+4}, 0x000f000f
        s_mov_b32 s{sT+5}, 0x000f000f
        """)
        g.stamp(3)
    elif VA == 2:
        base(sT, H2_G, H2)
        g(f"""
        v_lshlrev_b32 v124, 4, v1
        v_and_b32 v125, 3, v1
        v_lshrrev_b32 v4, 2, v1
        v_lshlrev_b32 v4, 5, v4
        v_lshl_add_u32 v3, v125, 9, v4
        v_lshlrev_b32 v125, 2, v125
        v_add_u32 v2, s{sT}, v124
        s_mov_b32 s{sT+4}, 0x000f000f
        s_mov_b32 s{sT+5}, 0x000f000f
        s_sub_u32 s{sDBG}, s{sDBG}, 2048
        s_subb_u32 s{sDBG+1}, s{sDBG+1}, 0
        s_movk_i32 m0, {L_Q}
        s_waitcnt lgkmcnt(0)
        """)
        mk_tag()
        xcc_addr()
        g(f"""
        v_lshlrev_b32 v127, 2, v1
        s_cmp_lg_u32 s{sWAVE}, 0
        s_cselect_b32 s63, -1, 0
        s_cmp_ge_u32 s{sWAVE}, 4
        s_cbranch_scc1 {lsp}
        s_call_b64 {p(sRET)}, Lvperm
        {r}:
        s_sub_u32 s{sTO}, s{sTO}, 1
        s_cbranch_scc1 Lexit
        s_sub_u32 s63, s63, 1
        s_cbranch_scc0 {lsp}
        s_mov_b32 s63, {int(opt.get('qn', 3))}
        global_load_lds_dword v126, {p(sDBG)} offset:2048 sc1
        global_load_lds_dwordx4 v2, {p(sWS)} sc1
        global_load_lds_dwordx4 v2, {p(sWS)} offset:1024 sc1
        {lsp}:
        ds_read_b128 {v4(vQ)}, v3 offset:{L_Q}
        ds_read_b128 v[4:7], v3 offset:{L_Q + 16}
        ds_read_b32 v0, v127 offset:{L_Q + 2048}
        s_waitcnt lgkmcnt(0)
        v_bitop3_b32 v{vQ+1}, v{vQ+1}, s{sTAG}, v{vQ+3} bitop3:0x7e
        v_bitop3_b32 v5, v5, s{sTAG}, v7 bitop3:0x7e
        v_or_b32 v5, v5, v{vQ+1}
        v_cmp_ne_u32 vcc, 0, v5
        s_cbranch_vccnz {r}
        v_mov_b32 v{vQ+1}, v{vQ+2}
        v_mov_b32 v{vQ+2}, v4
        v_mov_b32 v{vQ+3}, v6
        v_cmp_ne_u32 vcc, s{sXCC}, v0
        v_lshl_add_u32 v0, s{sWAVE}, 6, v1
        s_mov_b32 s{sLOC}, vcc_lo
        s_cmp_lt_u32 s{sWAVE}, 4
        s_cbranch_scc1 LAk
        """)
        g.stamp(3)
    else:
        g.stamp(2)
        consts()
        for i in range(16): g(f'v_mov_b32 v{vP+i}, 0')
        g(f"""
        v_lshlrev_b32 v124, 4, v1
        v_and_b32 v125, 3, v1
        v_lshlrev_b32 v125, 2, v125
        v_mov_b32 v4, 0xff800000
        ds_write2_b32 v125, v4, v{vP} offset0:{L_MX // 4} offset1:{L_SM // 4}
        s_mov_b32 s{sT+4}, 0x000f000f
        s_mov_b32 s{sT+5}, 0x000f000f
        s_waitcnt lgkmcnt(0)
        s_barrier
        """)
        mk_tag()
        lv, lsp = g.lab('v'), g.lab('sp')
        if VA:
            g(f's_mov_b32 s{sROLE}, 0\ns_cmp_lt_u32 s{sWAVE}, 4\ns_cbranch_scc1 {lv}\nLAq:\ns_mov_b32 s{sROLE}, 1')
        g(f"""
        v_mov_b32 v4, 0
        s_cmp_lg_u32 s{sWAVE}, 0
        s_cbranch_scc1 {lsp}
        """)
        base(sT, H2_G, H2)
        g(f"""
        v_add_u32 v5, s{sT}, v124
        v_bfe_u32 v6, v1, 1, 4
        v_lshrrev_b32 v7, 5, v1
        v_lshl_add_u32 v6, v6, 2, v7
        v_and_b32 v7, 1, v1
        v_lshl_add_u32 v6, v6, 1, v7
        v_lshlrev_b32 v6, 3, v6
        """)
        xcc_addr()
        g.poll(lambda: g(f'global_load_dwordx4 {v4(vVT)}, v5, {p(sWS)} sc1\nglobal_load_dwordx4 {v4(vVT+4)}, v5, {p(sWS)} offset:1024 sc1' + XLD),
               [vVT + 1, vVT + 3, vVT + 5, vVT + 7], 7)
        g(f'ds_write2_b32 v6, v{vVT}, v{vVT+2} offset0:{L_Q // 4} offset1:{L_Q // 4 + 1}\nds_write2_b32 v6, v{vVT+4}, v{vVT+6} offset0:{L_Q // 4 + 8} offset1:{L_Q // 4 + 9}')
        xcc_test()
        r = g.lab('retry')
        g(f"""
        v_mov_b32 v{vVT+8}, s{sLOC}
        ds_write2_b32 v4, v{vVT+8}, v{vVT+7} offset0:{L_FLAG // 4} offset1:{L_FLAG // 4 + 1}
        s_branch {lsp}
        {r}:
        s_sub_u32 s{sTO}, s{sTO}, 1
        s_cbranch_scc1 Lexit
        {lsp}:
        ds_read_b64 v[6:7], v4 offset:{L_FLAG}
        ds_read_b128 {v4(vQ)}, v124 offset:{L_Q}
        s_waitcnt lgkmcnt(0)
        v_cmp_ne_u32 vcc, s{sTAG}, v7
        s_cbranch_vccnz {r}
        v_readfirstlane_b32 s{sLOC}, v6
        """)
        g.stamp(3)
        if VA: g(f's_cmp_lt_u32 s{sWAVE}, 4\ns_cbranch_scc1 LAk\n{lv}:')
        loadkv(sV, 2, vV)
        if VA: g(f's_cmp_eq_u32 s{sROLE}, 0\ns_cbranch_scc1 LAq\nLAk:')
    g('s_waitcnt vmcnt(8)')
    if VA == 2: g('LAk:')
    g.stamp(4)
    for n in range(8):
        g(f'v_mfma_f32_16x16x32_bf16 {v4(vK - 4 + 4 * n)}, {v4(vK + 4 * n)}, {v4(vQ)}, 0')
    vS0 = 36
    if WARM and VA != 3: g.pad('PA1', 'LAres')
    else: g('s_nop 0')
    for half in range(2):
        for t in range(3):
            for beta in (2 * half, 2 * half + 1):
                for m in range(2):
                    n = 2 * beta + m
                    D = vK - 4 + 4 * n
                    pi = (beta + 1 + t) % 4
                    T = vS0 + m + 2 * (beta & 1)
                    g.dpp('v_add_f32', T, D + pi, D + beta if t == 0 else T, f'row_ror:{4 * ((beta - pi) % 4)}', 1 << beta)
    g('s_nop 0')
    g.dpp('v_mov_b32', vS0, vS0 + 2, None, 'quad_perm:[0,1,2,3]', 0xa)
    g.dpp('v_mov_b32', vS0 + 1, vS0 + 3, None, 'quad_perm:[0,1,2,3]', 0xa)
    g.rb2(vS0)
    g(f'v_mul_f32 v{vS0}, {SCALE:#x}, v{vS0}\nv_mul_f32 v{vS0+1}, {SCALE:#x}, v{vS0+1}')
    g.rb2(vS0)
    g(f'v_max_f32 v4, v{vS0}, v{vS0+1}\ns_lshl_b32 s{sT}, s{sWAVE}, 11\nv_add_u32 v6, s{sT}, v124')
    g.dpp('v_max_f32', 4, 4, 4, 'row_ror:8')
    g(f'v_lshlrev_b32 v7, 2, v0\nv_add_u32 v7, {L_O - 1024}, v7')
    g.dpp('v_max_f32', 4, 4, 4, 'row_ror:4')
    g(f"""
    s_mov_b64 exec, {p(sT+4)}
    ds_max_f32 v125, v4 offset:{L_MX}
    s_mov_b64 exec, -1
    s_waitcnt lgkmcnt(0)
    s_barrier
    ds_read_b32 v4, v125 offset:{L_MX}
    """)
    g.stamp(5)
    if 'U' in SM1 + SM2 + SQ:
        l = g.lab('mk')
        g(f's_cmp_lg_u32 s{sWAVE}, 0\ns_cbranch_scc1 {l}\ns_lshl_b32 s{sT}, s{sJ}, 2')
        base(sT + 1, 128, MARK, sT)
        g(f'v_mov_b32 v2, s{sT+1}\nv_mov_b32 v3, s{sTAG}\ns_mov_b64 exec, 1')
        g.store_local([f'global_store_dword v2, v3, {p(sWS)}'])
        g(f's_mov_b64 exec, -1\n{l}:')
    g(f's_mul_i32 s{sT}, s{sJ}, {H3A_S}')
    base(sT + 6, H3A_G, H3A)
    g(f"""
    s_add_u32 s{sT+7}, s{sT+6}, s{sT}
    s_sub_u32 s{sT}, s{sT+7}, 4096
    v_lshl_add_u32 v5, v0, 4, s{sT}
    v_mov_b32 v19, s{sTAG}
    s_waitcnt lgkmcnt(0)
    v_sub_f32 v{vS0}, v{vS0}, v4
    v_sub_f32 v{vS0+1}, v{vS0+1}, v4
    v_mul_f32 v{vS0}, {LOG2E:#x}, v{vS0}
    v_mul_f32 v{vS0+1}, {LOG2E:#x}, v{vS0+1}
    v_exp_f32 v{vS0}, v{vS0}
    v_exp_f32 v{vS0+1}, v{vS0+1}
    v_mul_f32 v4, {LOG2E:#x}, v4
    v_cvt_pk_bf16_f32 v{vS0+2}, v{vS0}, v{vS0+1}
    v_add_f32 v{vS0}, v{vS0}, v{vS0+1}
    s_nop 0
    """)
    for c in range(4):
        for m in range(4):
            rot = 4 * ((c - m) % 4)
            g.dpp('v_mov_b32', vP + 4 * c + m, vS0 + 2, None, f'row_ror:{rot}' if rot else 'quad_perm:[0,1,2,3]', 1 << c)
        if c < 2: g.dpp('v_add_f32', vS0, vS0, vS0, ROT[c])
    g(f's_mov_b64 exec, {p(sT+4)}\nds_add_f32 v125, v{vS0} offset:{L_SM}\ns_mov_b64 exec, -1')
    if VA != 3: g.pad('PA2', 'LAres')
    if VA >= 2:
        g(f's_cmp_lt_u32 s{sWAVE}, 4\ns_cbranch_scc1 Lpv')
        if VA == 3: g('s_branch Lpa2\nPA2:\ns_branch LAres\nLpa2:')
        g(f"""
        s_getpc_b64 {p(sRET)}
        Lpc0:
        s_add_u32 s{sRET}, s{sRET}, Lpv-Lpc0
        s_addc_u32 s{sRET+1}, s{sRET+1}, 0
        Lvperm:
        s_cmp_lt_u32 s{sWAVE}, 4
        """)
    for m in range(4):
        g(f's_waitcnt vmcnt({6 - 2 * m})')
        if m == 3: g.stamp(6)
        for c in (0, 4, 1, 5, 2, 6, 3, 7):
            g(f'v_perm_b32 v{vVT + 4 * c + m}, v{vV + 8 * m + 4 + c // 2}, v{vV + 8 * m + c // 2}, s{sSHI if c & 1 else sSLO}')
    if VA >= 2: g('s_cbranch_scc1 Lvret\nLpv:')
    for c in range(4):
        for a in range(2):
            g(f'v_mfma_f32_16x16x32_bf16 {v4(8 + 4 * a)}, {v4(vP + 4 * c)}, {v4(vVT + 16 * a + 4 * c)}, {v4(8 + 4 * a) if c else 0}')
    g(f"""
    s_cmp_lt_u32 s{sWAVE}, 4
    s_nop 5
    ds_write_b128 v6, v[8:11] offset:{L_O}
    ds_write_b128 v6, v[12:15] offset:{L_O + 1024}
    s_cbranch_scc1 LKW
    s_waitcnt lgkmcnt(0)
    s_barrier
    ds_read_b32 v18, v125 offset:{L_SM}
    """)
    regs = [16, 20, 22, 24, 26, 28, 30, 32]
    for w in range(8): g(f'ds_read2st64_b32 {v2(regs[w])}, v7 offset0:{8 * w} offset1:{8 * w + 4}')
    lgkm(8)
    g('v_rcp_f32 v34, v18\nv_log_f32 v18, v18')
    for a, b, wt in ((0, 1, 6), (2, 3, 4), (0, 2, None), (4, 5, 2), (0, 4, None), (6, 7, 0), (0, 6, None)):
        if wt is not None: lgkm(wt)
        g(f'v_pk_add_f32 {v2(regs[a])}, {v2(regs[a])}, {v2(regs[b])}')
        if wt == 6: g('v_add_f32 v18, v18, v4')
    g('v_pk_mul_f32 v[16:17], v[16:17], v[34:35] op_sel_hi:[1,0]')
    g.store_local([f'global_store_dwordx4 v5, v[16:19], {p(sWS)}'])
    g('s_barrier')
    g.stamp(7)
    fp24_consts(sT + 8)
    g(f's_add_u32 s{sT+13}, s{sTAG}, 0x40000000\ns_cmp_lt_u32 s{sWAVE}, 6\ns_cbranch_scc1 LRED')
    g(f"""
    v_mov_b32 v27, s{sT+13}
    v_bfe_u32 v2, v0, 3, 4
    v_and_b32 v3, 7, v0
    v_mul_u32_u24 v2, {H3A_S}, v2
    v_lshl_add_u32 v2, v3, 4, v2
    s_lshl_b32 s{sT}, s{sJ}, 8
    s_add_u32 s{sT}, s{sT}, s{sT+6}
    v_add_u32 v5, s{sT}, v2
    v_and_b32 v2, 1, v0
    v_bfe_u32 v3, v0, 1, 6
    v_mul_u32_u24 v2, 1152, v2
    v_lshl_add_u32 v2, v3, 4, v2
    s_and_b32 s{sT}, s{sG}, 4
    s_lshl1_add_u32 s{sT}, s{sT}, {L_W}
    v_add_u32 v2, s{sT}, v2
    v_xor_b32 v3, 8, v2
    s_barrier
    ds_read2st64_b64 v[8:11], v2 offset0:0 offset1:5
    ds_read2st64_b64 v[12:15], v2 offset0:10 offset1:15
    ds_read2st64_b64 v[28:31], v3 offset0:0 offset1:5
    ds_read2st64_b64 v[20:23], v3 offset0:10 offset1:15
    """)
    lgkm(2)
    g("""
    v_pk_add_f32 v[8:9], v[8:9], v[10:11]
    v_pk_add_f32 v[12:13], v[12:13], v[14:15]
    v_pk_add_f32 v[8:9], v[8:9], v[12:13]
    s_waitcnt lgkmcnt(0)
    v_pk_add_f32 v[28:29], v[28:29], v[30:31]
    v_pk_add_f32 v[20:21], v[20:21], v[22:23]
    v_pk_add_f32 v[10:11], v[28:29], v[20:21]
    """)
    fp24_pack(24, 8, sT + 8)
    g.store_local([f'global_store_dwordx4 v5, v[24:27], {p(sWS)}'])
    g.stamp(10)
    if STAMPS and DPF: g('s_barrier')
    g.end()
    g.pad('PA3', 'LAres')
    g(f"""
    LRED:
    v_mov_b32 v27, s{sTAG}
    v_and_b32 v2, 0x70, v0
    v_and_b32 v3, 15, v0
    v_lshl_add_u32 v4, v3, 8, v2
    v_add_u32 v4, s{sT+7}, v4
    s_lshl_b32 s{sT}, s{sJ}, 7
    """)
    base(sT + 1, 2048, H4, sT)
    g(f"""
    v_mul_u32_u24 v5, {H4_REP}, v3
    v_add3_u32 v5, v5, v2, s{sT+1}
    s_mov_b32 s{sT+4}, 0x00ff00ff
    s_mov_b32 s{sT+5}, 0x00ff00ff
    s_lshl1_add_u32 s{sT}, s{sJ}, s{sWAVE}
    s_sub_u32 s{sT}, s{sT}, 4
    s_mul_i32 s{sT}, s{sT}, 56
    v_min_u32 v6, 55, v1
    v_add_lshl_u32 v6, v6, s{sT}, 3
    v_add_lshl_u32 v6, v6, s{sG}, 7
    s_barrier
    """)
    g.poll(lambda: g(f'global_load_dwordx4 v[8:11], v4, {p(sWS)} sc1'), [11], None, tag=sT + 13)
    g.stamp(11)
    fp24_unpack(8, sT + 8)
    for s in ROT:
        for h in range(4): g.dpp('v_add_f32', 8 + h, 8 + h, 8 + h, s)
    fp24_pack(24, 8, sT + 8)
    g(f's_mov_b64 exec, {p(sT+4)}\nglobal_store_dwordx4 v5, v[24:27], {p(sWS)} sc1\ns_mov_b64 exec, -1')
    g.stamp(12)
    if DPF: g(f's_barrier\nglobal_load_dword v8, v6, {p(100 if VA == 3 else sDOWN)} {NTD}')
    g.end()
    if VA >= 2: g(f'Lvret:\ns_setpc_b64 {p(sRET)}')
    g.flush_tail()
    g('.p2align 12')
    g.pad('PA4', 'LAres')
    g(f"""
    LKW:
    s_lshl2_add_u32 s{sT+3}, s{sJ}, s{sWAVE}
    s_and_b32 s{sT}, s{sT+3}, 15
    s_lshr_b32 s{sT+1}, s{sJ}, 2
    s_lshl3_add_u32 s{sT}, s{sT}, s{sT+1}
    s_lshl_b32 s{sT+1}, s{sG}, 9
    s_add_u32 s{sT}, s{sT}, s{sT+1}
    s_add_u32 s{sT}, s{sT}, 4
    s_lshl_b32 s{sT}, s{sT}, 10
    v_add_u32 v3, s{sT}, v124
    s_mov_b32 s{sT+2}, 0x20000
    """)
    WOPOS = int(opt.get('wopos', 0))
    if WOPOS == 0: load8(0 if VA == 3 else sWO, 3, vV, sT + 2)
    g(f"""
    s_waitcnt lgkmcnt(0)
    s_barrier
    s_lshl_b32 s{sT}, s{sT+3}, 6
    s_add_u32 s{sT}, s{sT}, s{sT+6}
    v_and_b32 v4, 15, v1
    v_mul_u32_u24 v4, {H3A_S}, v4
    v_and_b32 v5, 48, v1
    v_add3_u32 v4, v4, v5, s{sT}
    s_mul_i32 s{sT}, s{sWAVE}, 2560
    s_addk_i32 s{sT}, {L_W}
    v_add_u32 v6, s{sT}, v124
    s_barrier
    """)
    if WOPOS == 1: load8(0 if VA == 3 else sWO, 3, vV, sT + 2)
    ld = f'global_load_dwordx4 v[8:11], v4, {p(sWS)} sc1'
    g(ld)
    for i in range(8): g(f'v_mov_b32 v{16+i}, 0')
    for h in range(4):
        g(f's_waitcnt vmcnt({7 - 2 * h})')
        g.pair(vVT + 8 * h, vV + 8 * h, vV + 8 * h + 4, 4)
    g.stamp(8)
    g.poll(lambda: g(ld), [11], None, issued=True)
    g.stamp(9)
    for i, s in enumerate(ROT):
        if i: g('s_nop 1')
        g.dpp('v_max_f32', 12, 10 if i == 0 else 12, 10 if i == 0 else 12, s)
    g('v_sub_f32 v10, v10, v12\nv_exp_f32 v10, v10\ns_nop 0\nv_pk_mul_f32 v[8:9], v[8:9], v[10:11] op_sel_hi:[1,0]')
    for i, s in enumerate(ROT):
        g.dpp('v_add_f32', 10, 10, 10, s)
        if i == 0: g('s_nop 0')
        if i == 3: g('v_rcp_f32 v10, v10')
        g.dpp('v_add_f32', 8, 8, 8, s)
        g.dpp('v_add_f32', 9, 9, 9, s)
    g('v_pk_mul_f32 v[8:9], v[8:9], v[10:11] op_sel_hi:[1,0]\nv_cvt_pk_bf16_f32 v8, v8, v9\ns_nop 0')
    for h in range(4): g(f'v_readlane_b32 s{sT+h}, v8, {16*h}')
    for h in range(4):
        for c in range(8): g(f'v_dot2c_f32_bf16 v{16+c}, s{sT+h}, v{vVT+8*h+c}')
    g(f"""
    ds_write_b128 v6, v[16:19]
    s_nop 1
    ds_write_b128 v6, v[20:23] offset:1152
    s_waitcnt lgkmcnt(0)
    s_barrier
    """)
    g.stamp(10)
    if STAMPS and DPF: g('s_barrier')
    g.end()
    vW, vWP, vA = 10, 8, 76
    g.pad('PQ5', 'Lexit1')
    g('Lperm64:')
    for i in range(4): g(f'v_mov_b32 v{vA+i}, 0')
    for ks, wt in ((range(0, 16), 32), (range(16, 24), 16), (range(24, 28), 8), (range(28, 32), 0)):
        g(f's_waitcnt vmcnt({wt + 4})')
        for k in ks: g.pair(vWP + 2 * k, vW + 2 * k, vW + 2 * k + 1, 1)
    g(f's_setpc_b64 {p(sRET)}')

    vT, vLW, vLR, vPA, sST = 84, 80, 81, 82, sT + 8
    g('LG1:')
    stream(SQ)
    if DIAG >= 0: g.end()
    g(f's_cmp_eq_u32 s{sG}, 7\ns_cbranch_scc1 Lexit\ns_mov_b32 s{sROLE}, 2\nv_add_u32 v2, {4096 + 2048}, v2')
    base(sT, H4_REP, H4 + 4096)
    g(f"""
    v_lshrrev_b32 v{vT}, 1, v3
    v_and_b32 v{vT+1}, 1, v3
    v_lshl_add_u32 v{vT}, v{vT}, 4, s{sT}
    v_lshl_add_u32 v3, v{vT+1}, 13, v{vT}
    v_lshrrev_b32 v{vT}, 5, v0
    v_mul_u32_u24 v{vT}, {64*3584}, v{vT}
    v_and_b32 v{vT+6}, 15, v1
    v_lshl_add_u32 v{vT}, v{vT+6}, 2, v{vT}
    s_lshl_b32 s{sT}, s{sPM}, 6
    v_add_u32 v{vT}, s{sT}, v{vT}
    v_mov_b32 v{vT+2}, s{sGATE}
    v_mov_b32 v{vT+3}, s{sGATE+1}
    v_mov_b32 v{vT+4}, s{sUP}
    v_mov_b32 v{vT+5}, s{sUP+1}
    v_cmp_lt_u32 vcc, 15, v6
    v_mov_b32 v{vT+1}, 0
    s_movk_i32 s{sST}, 3584
    v_cndmask_b32 v4, v{vT+2}, v{vT+4}, vcc
    v_cndmask_b32 v5, v{vT+3}, v{vT+5}, vcc
    v_lshl_add_u64 v[4:5], {v2(vT)}, 0, v[4:5]
    """)
    g(f"""
    v_lshrrev_b32 v{vT}, 5, v1
    v_bfe_u32 v{vT+1}, v1, 4, 1
    v_lshl_add_u32 v{vT}, v{vT}, 1, v{vT+1}
    v_lshl_add_u32 v{vT}, v{vT+6}, 2, v{vT}
    s_lshl_b32 s{sT}, s{sWAVE}, 8
    s_addk_i32 s{sT}, {L_GP}
    v_lshl_add_u32 v{vLW}, v{vT}, 2, s{sT}
    v_lshl_add_u32 v{vLR}, v{vT+6}, 1, v{vT+1}
    v_lshlrev_b32 v{vLR}, 3, v{vLR}
    v_add_u32 v{vLR}, {L_GP}, v{vLR}
    v_bfe_u32 v{vT}, v0, 4, 3
    v_mul_u32_u24 v{vT}, {H5_REP}, v{vT}
    v_lshl_add_u32 v{vPA}, v{vT+6}, 3, v{vT}
    s_lshl_b32 s{sT}, s{sPM}, 7
    s_add_u32 s{sT}, s{sT}, {H5}
    v_add_u32 v{vPA}, s{sT}, v{vPA}
    """)
    fp24_consts(sT + 12)
    g('s_barrier')
    g.stamp(8)
    g('s_branch Lload64')

    def f_setup():
        consts()
        g(f's_and_b32 s{sJ}, s{sJ}, 7\ns_lshl3_add_u32 s{sPM}, s{sG}, s{sJ}\ns_lshl_b32 s{sW8}, s{sWAVE}, 3')
    g('.p2align 12\nLM:')
    if DIAG == 0: g('s_waitcnt lgkmcnt(0)\ns_branch Lexit')
    f_setup()
    vW, vA, vT, vS = 8, 40, 48, 80
    vLW, vLR, vPA = 81, 82, 83
    g(f"""
    v_lshrrev_b32 v4, 1, v0
    v_and_b32 v5, 1, v0
    v_mul_u32_u24 v4, {4*6144}, v4
    v_lshl_add_u32 v4, v5, 4, v4
    s_lshl_b32 s{sT}, s{sPM}, 5
    s_addk_i32 s{sT}, 3072
    v_add_u32 v4, s{sT}, v4
    v_add_u32 v3, 12288, v4
    v_lshlrev_b32 v6, 2, v0
    s_lshl_b32 s{sT}, s{sJ}, 6
    v_lshrrev_b32 v120, 2, v0
    v_add_u32 v120, s{sT}, v120
    v_bfe_u32 v122, v0, 1, 1
    v_mad_u32_u24 v120, v120, 48, v122
    s_lshl_b32 s{sT}, s{sG}, 1
    v_add_lshl_u32 v120, v120, s{sT}, 7
    s_waitcnt lgkmcnt(0)
    """)
    g.stamp(1)
    if int(opt.get('mpf', 0)): g(f'global_load_dword v121, v120, {p(sWM)} {NT}')
    g(f"""
    global_load_dword v6, v6, {p(sC)}
    global_load_dwordx4 {v4(vW)}, v4, {p(sWM)} offset:-3072 {NT}
    global_load_dwordx4 {v4(vW+4)}, v4, {p(sWM)} offset:3072 {NT}
    global_load_dwordx4 {v4(vW+8)}, v3, {p(sWM)} offset:-3072 {NT}
    global_load_dwordx4 {v4(vW+12)}, v3, {p(sWM)} offset:3072 {NT}
    s_load_dword s{sTAG}, {p(sWS)}, 0
    """)
    for i in range(8): g(f'v_mov_b32 v{vA+i}, 0')
    g(f"""
    v_lshrrev_b32 v{vT}, 4, v1
    v_lshl_add_u32 v{vT}, v{vT}, 1, v5
    v_lshl_add_u32 v{vLW}, v{vT}, 5, s{sW8}
    v_and_b32 v{vT}, 3, v1
    v_bfe_u32 v{vT+1}, v1, 2, 1
    v_lshl_add_u32 v{vT}, v{vT}, 1, v{vT+1}
    v_lshlrev_b32 v{vLR}, 5, v{vT}
    v_and_b32 v{vT}, 7, v1
    v_lshrrev_b32 v{vT+1}, 3, v1
    v_mul_u32_u24 v{vT+1}, {MOD_REP}, v{vT+1}
    v_lshl_add_u32 v{vPA}, v{vT}, 3, v{vT+1}
    s_lshl_b32 s{sT}, s{sPM}, 6
    s_add_u32 s{sT}, s{sT}, {MOD}
    v_add_u32 v{vPA}, s{sT}, v{vPA}
    s_waitcnt vmcnt(4)
    """)
    g.unpack(vT, 6)
    g.silu2(vT, vT + 2)
    g(f'v_cvt_pk_bf16_f32 v{vS}, v{vT}, v{vT+1}')
    g('s_waitcnt lgkmcnt(0)')
    mk_tag()
    g(f'v_mov_b32 v85, s{sTAG}')
    for k in range(2):
        g(f's_waitcnt vmcnt({2 - 2 * k})')
        if k: g.stamp(2)
        g.pair(vT + 8 * k, vW + 8 * k, vW + 8 * k + 4, 4)
        for c in range(8): g.dpp('v_dot2c_f32_bf16', vA + c, vS, vT + 8 * k + c, f'quad_perm:[{k},{k},{k+2},{k+2}]')
    g.red8(vA, 2)

    def fin_pairs(lds, nw):
        l = g.lab('nm')
        g(f"""
        ds_write_b64 v{vLW}, {v2(vA)} offset:{lds}
        s_waitcnt lgkmcnt(0)
        s_barrier
        s_cmp_ge_u32 s{sWAVE}, {nw}
        s_cbranch_scc1 {l}
        ds_read_b128 {v4(vT)}, v{vLR} offset:{lds}
        ds_read_b128 {v4(vT+4)}, v{vLR} offset:{lds+16}
        s_waitcnt lgkmcnt(0)
        """)
        g.sum4(vT)
        g(f"""
        v_cvt_pk_bf16_f32 v84, v{vT}, v{vT+1}
        global_store_dwordx2 v{vPA}, v[84:85], {p(sWS)} sc1
        {l}:
        s_barrier
        """)
    fin_pairs(L_MP, 1)
    g.stamp(3)
    if 0 <= DIAG <= 2: g.end()
    stream(SM1 + '.R')
    g.pad('PM1', 'Lexit1')
    g(f"""
    v_lshrrev_b32 v4, 2, v0
    v_and_b32 v5, 3, v0
    v_mul_u32_u24 v4, {8*6144}, v4
    v_lshl_add_u32 v4, v5, 4, v4
    s_lshl_b32 s{sT}, s{sPM}, 6
    s_addk_i32 s{sT}, {2048 + 3072}
    v_add_u32 v4, s{sT}, v4
    s_movk_i32 s{sT}, 12288
    """)
    for k in range(4):
        g(f'global_load_dwordx4 {v4(vW+8*k)}, v4, {p(sWM)} offset:-3072 {NT}\nglobal_load_dwordx4 {v4(vW+8*k+4)}, v4, {p(sWM)} offset:3072 {NT}')
        if k != 3: g(f'v_add_u32 v4, s{sT}, v4')
    SMB = [x for x in opt.get('smb', '').split('.') if x]
    if SMB:
        g('s_barrier')
        stream('.'.join(SMB), True)
    for i in range(8): g(f'v_mov_b32 v{vA+i}, 0')
    g(f"""
    v_lshrrev_b32 v{vT}, 4, v1
    v_lshl_add_u32 v{vT}, v{vT}, 2, v5
    v_lshl_add_u32 v{vLW}, v{vT}, 5, s{sW8}
    v_bfe_u32 v{vT}, v1, 2, 2
    v_lshl_add_u32 v{vT}, v5, 2, v{vT}
    v_lshlrev_b32 v{vLR}, 5, v{vT}
    v_and_b32 v{vT}, 15, v1
    v_bfe_u32 v{vT+1}, v0, 4, 3
    v_mul_u32_u24 v{vT+1}, {MOD_REP}, v{vT+1}
    v_lshl_add_u32 v{vPA}, v{vT}, 3, v{vT+1}
    s_lshl_b32 s{sT}, s{sPM}, 7
    s_add_u32 s{sT}, s{sT}, {MOD + 4096}
    v_add_u32 v{vPA}, s{sT}, v{vPA}
    """)
    for k in range(4):
        g(f's_waitcnt vmcnt({6 - 2 * k + len(SMB)})')
        if k == 3: g.stamp(4)
        g.pair(vT + 8 * k, vW + 8 * k, vW + 8 * k + 4, 4)
        for c in range(8): g.dpp('v_dot2c_f32_bf16', vA + c, vS, vT + 8 * k + c, f'quad_perm:[{k},{k},{k},{k}]')
    g.red8(vA, 4)
    g.pad('PM2', 'Lexit1')
    fin_pairs(L_RP, 2)
    g.stamp(5)
    stream(SM2)
    if DIAG >= 0: g.end()
    vW, vWP, vA, vT = 16, 48, 80, 88
    l = g.lab('d1')
    g(f"""
    s_lshl_b32 s{sT}, s{sPM}, 4
    v_lshl_add_u32 v4, v0, 12, s{sT}
    v_add_u32 v5, 0x100000, v4
    """)
    for i in range(16): g(f'v_mov_b32 v{vW+16+i}, 0')
    g('s_barrier')
    g.stamp(6)
    for n in range(4): g(f'global_load_dwordx4 {v4(vW + 4 * n)}, v4, {p(sDOWN)} offset:{1024 * n} {opt.get("ntdr", NTD)}')
    base(sT, H5_REP, H5)
    g(f'v_lshl_add_u32 v2, v0, 4, s{sT}\nv_mov_b32 v3, v2\ns_cmp_eq_u32 s{sWAVE}, 3\ns_cbranch_scc1 {l}')
    for n in range(4): g(f'global_load_dwordx4 {v4(vW + 16 + 4 * n)}, v5, {p(sDOWN)} offset:{1024 * n} {opt.get("ntdr", NTD)}')
    g(f'v_add_u32 v3, 4096, v2\n{l}:\nv_lshrrev_b32 v6, 4, v1\nv_lshl_add_u32 v6, v6, 5, s{sW8}')
    for i in range(8): g(f'v_mov_b32 v{vA+i}, 0')
    g.pad('PM3', 'Lexit1')
    g('s_waitcnt vmcnt(0)')
    for k in range(4): g.pair(vWP + 8 * k, vW + 8 * k, vW + 8 * k + 4, 4)
    g.stamp(8)
    g.poll(lambda: g(f'global_load_dwordx4 {v4(vT)}, v2, {p(sWS)} sc1\nglobal_load_dwordx4 {v4(vT+4)}, v3, {p(sWS)} sc1'),
           [vT + 1, vT + 3, vT + 5, vT + 7], vT + 8)
    g.stamp(9)
    for k in range(4):
        for c in range(8): g(f'v_dot2c_f32_bf16 v{vA+c}, v{vT+2*k}, v{vWP+8*k+c}')
    g.red8(vA, 1)
    g(f'ds_write_b64 v6, {v2(vA)} offset:{L_D}\ns_waitcnt lgkmcnt(0)\ns_barrier')
    g.stamp(10)
    g.end()
    if DIAG >= 0: g('LFH:\ns_endpgm')
    g(f'LFH{"x" if DIAG >= 0 else ""}:\ns_mov_b64 exec, -1\ns_waitcnt lgkmcnt(0)\ns_load_dword s{sTAG}, {p(sWS)}, 0')
    f_setup()
    g(f"""
    v_bfe_u32 v2, v1, 3, 1
    v_bfe_u32 v3, v1, 4, 1
    v_lshl_add_u32 v5, v2, 1, v3
    v_lshlrev_b32 v6, 5, v5
    v_lshl_add_u32 v5, s{sPM}, 2, v5
    v_lshlrev_b32 v7, 2, v5
    v_bfe_u32 v4, v1, 2, 1
    v_cmp_ne_u32 {p(sT+4)}, v4, v3
    """)
    base(sT, MOD_REP, MOD + 4096 + 3072)
    g(f'v_lshl_add_u32 v3, v5, 3, s{sT}')
    base(sT, H4_REP, H4)
    g(f"""
    v_lshl_add_u32 v2, s{sPM}, 1, v2
    v_lshl_add_u32 v2, v2, 4, s{sT}
    v_and_b32 v4, 7, v1
    v_lshl_add_u32 v4, v4, 11, v2
    s_waitcnt lgkmcnt(0)
    """)
    mk_tag()
    fp24_consts(sT + 8)
    g('s_barrier\n' * (6 if SMB else 5))
    g(f'global_load_dword v8, v7, {p(sX)}')
    g.poll(lambda: g(f"""
        global_load_dwordx2 v[10:11], v3, {p(sWS)} offset:-3072 sc1
        global_load_dwordx2 v[12:13], v3, {p(sWS)} offset:3072 sc1
        global_load_dwordx4 v[16:19], v4, {p(sWS)} sc1"""), [11, 13, 19], 14)
    g.stamp(8)
    for r in (8, 10, 12): g.unpack(r, r)
    fp24_unpack(16, sT + 8)
    g(f'v_cndmask_b32 v14, v16, v18, {p(sT+4)}\nv_cndmask_b32 v15, v17, v19, {p(sT+4)}')
    for s in ('quad_perm:[1,0,3,2]', 'quad_perm:[2,3,0,1]', 'row_half_mirror'):
        g('s_nop 0')
        g.dpp('v_add_f32', 14, 14, 14, s)
        g.dpp('v_add_f32', 15, 15, 15, s)
    g.rb2(14)
    g('v_pk_mul_f32 v[14:15], v[14:15], v[10:11]')
    g.rb2(14)
    g('v_pk_add_f32 v[14:15], v[14:15], v[8:9]')
    g.rb2(14)
    g(f"""
    s_mov_b64 exec, 0x01010101
    s_barrier
    ds_read_b128 v[16:19], v6 offset:{L_D}
    ds_read_b128 v[20:23], v6 offset:{L_D+16}
    s_waitcnt lgkmcnt(0)
    """)
    g.sum4(16)
    g.rb2(16)
    g('v_pk_mul_f32 v[16:17], v[16:17], v[12:13]')
    g.rb2(16)
    g(f"""
    v_pk_add_f32 v[16:17], v[16:17], v[14:15]
    """)
    if opt.get('perturb'):
        import struct
        kind, val = opt['perturb'].split(':')
        u = struct.unpack('<I', struct.pack('<f', float(val)))[0]
        if kind == 'one':
            g(f'v_cmp_eq_u32 vcc, 4, v7\nv_add_f32 v18, {u:#x}, v16\ns_nop 0\nv_cndmask_b32 v16, v16, v18, vcc')
        elif kind == 'all':
            g(f'v_add_f32 v16, {u:#x}, v16\nv_subrev_f32 v17, {u:#x}, v17')
        else:
            g(f'v_mul_f32 v16, {u:#x}, v16\nv_mul_f32 v17, {u:#x}, v17')
    g(f"""
    v_cvt_pk_bf16_f32 v16, v16, v17
    global_store_dword v7, v16, {p(sOUT)}
    """)
    g.stamp(10)
    g(f"""
    s_cmp_lg_u32 s{sPM}, 0
    s_cbranch_scc1 Ldend
    v_mov_b32 v2, 0
    v_mov_b32 v3, s{sTAG}
    global_store_dword v2, v3, {p(sWS)} sc1
    Ldend:
    """)
    g.end()
    vW, vWP, vA, vT = 10, 8, 76, 84
    vLW, vLR, vPA, vSS = 80, 81, 82, 83
    vX, vGA, vSB, vCB, vY = 104, 106, 108, 110, 112
    sST = sT + 8
    g('.p2align 12\nLQ:')
    if 0 <= DIAG <= 1: g('s_waitcnt lgkmcnt(0)\ns_branch Lexit')
    f_setup()
    l = g.lab('qp')
    g(f"""
    s_mov_b32 s{sROLE}, 0
    v_and_b32 v7, 7, v0
    v_bfe_u32 v{vT+1}, v0, 3, 1
    v_lshl_add_u32 v{vT}, v7, 1, v{vT+1}
    v_and_or_b32 v3, v0, -16, v{vT}
    v_lshlrev_b32 v116, 2, v3
    v_lshrrev_b32 v4, 5, v0
    v_and_b32 v6, 31, v0
    v_lshlrev_b32 v4, 19, v4
    v_lshl_add_u32 v4, v6, 2, v4
    s_lshl_b32 s{sT}, s{sPM}, 7
    v_add_u32 v4, s{sT}, v4
    v_mov_b32 v5, 0
    s_movk_i32 s{sST}, 0x2000
    s_mov_b32 s{sST+1}, 0
    v_lshrrev_b32 v120, 3, v0
    v_lshl_add_u32 v120, v120, 6, v7
    s_lshl_b32 s{sT}, s{sJ}, 12
    s_lshl3_add_u32 s{sT}, s{sG}, s{sT}
    v_add_lshl_u32 v120, v120, s{sT}, 7
    s_cmp_ge_u32 s{sWAVE}, {int(opt.get('qpf', 2))}
    s_waitcnt lgkmcnt(0)
    """)
    g.stamp(1)
    if int(opt.get('qpf', 2)):
        g(f's_cbranch_scc1 {l}\nglobal_load_dword v121, v120, {p(sWQ)} {NT}\n{l}:')
    g(f"""
    s_load_dword s{sTAG}, {p(sWS)}, 0
    global_load_dword v{vY}, v116, {p(sX)}
    v_lshl_add_u64 v[4:5], {p(sWQ)}, 0, v[4:5]
    Lload64:
    """)
    for n in range(64):
        g(f'global_load_dword v{vW + n}, v[4:5], off {opt.get("nt64", NT)}')
        if n == 50: g.pad('PQ1', 'Lexit1')
        if n != 63: g(f'v_lshl_add_u64 v[4:5], {p(sST)}, 0, v[4:5]')
    g(f's_cmp_lg_u32 s{sROLE}, 0\ns_cbranch_scc1 LG2')
    g.stamp(2)
    QX = int(opt.get('qx', 0))
    if QX == 1: g.end()
    xcc_addr()
    g(f's_lshl_b32 s{sT}, s{sJ}, {7 if VA == 3 else 8}')
    base(sT + 1, H2_G, H2, sT)
    g(f'v_lshl_add_u32 v{vPA}, v6, {2 if VA == 3 else 3}, s{sT+1}')
    if VA == 3:
        g(f's_lshr_b32 s{sT}, s{sJ}, 1\ns_lshl_b32 s{sT}, s{sT}, 10\ns_and_b32 s{sT+1}, s{sJ}, 1\ns_lshl2_add_u32 s{sT}, s{sT+1}, s{sT}')
        base(sT + 1, H2_G, H2 + 1024, sT)
        g(f'v_and_b32 v117, 15, v0\nv_lshl_add_u32 v117, v117, 6, s{sT+1}')
    base(sT, MOD_REP, MOD)
    g(f'v_lshl_add_u32 v2, v3, 3, s{sT}\nglobal_load_dword v121, v{vPA}, {p(sWS)} sc1')
    H1F = opt.get('h1f', 'sc1').replace('_', ' ')
    h1 = lambda: g(f'global_load_dwordx2 {v2(vSB)}, v2, {p(sWS)} {H1F}\nglobal_load_dwordx2 {v2(vCB)}, v2, {p(sWS)} offset:2048 {H1F}' + (XLD if not opt.get('noxld') else f'\nglobal_load_dword v127, v2, {p(sWS)} {H1F}'))
    h1()
    g(f"""
    v_lshrrev_b32 v{vT+2}, 5, v1
    v_bfe_u32 v{vT+3}, v1, 4, 1
    v_lshlrev_b32 v{vT+4}, 5, v{vT+2}
    v_lshl_add_u32 v{vT+4}, v{vT+3}, 2, v{vT+4}
    v_add_u32 v{vSS}, s{sW8}, v{vT+4}
    s_lshl_b32 s{sT}, s{sWAVE}, 8
    s_addk_i32 s{sT}, {L_QP}
    v_lshl_add_u32 v{vLW}, v6, 1, v{vT+2}
    v_lshl_add_u32 v{vLW}, v{vLW}, 2, s{sT}
    v_lshlrev_b32 v{vLR}, 3, v6
    v_add_u32 v{vLR}, {L_QP}, v{vLR}
    s_waitcnt vmcnt(63)
    """)
    g.unpack(vY, vY)
    g.stats_wave(vY, vT)
    g(f'ds_write_b32 v{vSS}, v{vT} offset:{L_XS}\nv_mov_b32 v7, 0\ns_waitcnt lgkmcnt(0)\ns_barrier')
    for i in range(4): g(f'ds_read_b128 {v4(vT + 4 * i)}, v7 offset:{L_XS + 16 * i}')
    mk_tag()
    g(f'v_mov_b32 v115, s{sTAG}\ns_waitcnt lgkmcnt(0)')
    g.stats_fin(vT)
    g.ln_apply(vY, vT)
    g(f's_call_b64 {p(sRET)}, Lperm64')
    g.stamp(4)
    if QX == 2: g.end()
    g.poll(h1, [vSB + 1, vCB + 1], vT, issued=True)
    g.stamp(5)
    if QX == 3: g.end()
    g.unpack(vCB, vCB)
    g(f'v_add_f32 v{vCB}, 1.0, v{vCB}\nv_add_f32 v{vCB+1}, 1.0, v{vCB+1}')
    xcc_test()
    g.rb2(vCB)
    g.unpack(vSB, vSB)
    g('s_branch Lmodulate')
    g.pad('PQ2', 'Lexit1')
    l = g.lab('nq')
    g(f"""
    LQ2:
    s_cmp_lg_u32 s{sWAVE}, 0
    s_cbranch_scc1 {l}
    v_cvt_pk_bf16_f32 v114, v{vT}, v{vT+1}
    s_mov_b32 exec_hi, 0
    """)
    if VA == 3:
        g.store_local([f'global_store_dword v{vPA}, v114, {p(sWS)}'])
        g(f's_mov_b64 exec, 0xffff\ns_waitcnt vmcnt(0)')
        g.store_local([f'global_store_dword v117, v115, {p(sWS)}'])
    else:
        g.store_local([f'global_store_dwordx2 v{vPA}, v[114:115], {p(sWS)}'])
    g(f's_mov_b64 exec, -1\n{l}:\ns_barrier')
    g.stamp(6)
    g('s_branch LG1')
    g.pad('PQ3', 'PQ5')
    hr = lambda: g(f"""
        global_load_dwordx2 {v2(vGA)}, v2, {p(sWS)} offset:-2048 sc1
        global_load_dwordx2 {v2(vSB)}, v2, {p(sWS)} sc1
        global_load_dwordx2 {v2(vCB)}, v2, {p(sWS)} offset:2048 sc1""")
    g(f'LG2:\nglobal_load_dword v{vX}, v116, {p(sX)}')
    hr()
    g(f's_call_b64 {p(sRET)}, Lperm64')
    g.stamp(9)
    g.poll(hr, [vGA + 1, vSB + 1, vCB + 1], vT, issued=True)
    g.stamp(7)

    def h4loads():
        for i in range(4):
            g(f'global_load_dwordx4 {v4(vT + 4 * i)}, v3, {p(sWS)} offset:{i * 2048 - 4096} sc1')
    h4loads()
    for r in (vX, vGA, vSB, vCB): g.unpack(r, r)
    g(f'v_add_f32 v{vCB}, 1.0, v{vCB}\nv_add_f32 v{vCB+1}, 1.0, v{vCB+1}')
    g.rb2(vCB)
    g.poll(h4loads, [vT + 4 * i + 3 for i in range(4)], vT + 16, issued=True)
    g.stamp(11)
    for i in range(4): fp24_unpack(vT + 4 * i, sT + 12)
    for a, b in ((2, 6), (10, 14), (0, 4), (2, 10), (8, 12)):
        g(f'v_pk_add_f32 {v2(vT+a)}, {v2(vT+a)}, {v2(vT+b)}')
    g('s_nop 0')
    g.dpp('v_add_f32', vY, vT + 2, vT, 'row_ror:8')
    g.dpp('v_add_f32', vY + 1, vT + 3, vT + 1, 'row_ror:8')
    g(f'v_pk_add_f32 {v2(vY)}, {v2(vY)}, {v2(vT+8)}')
    g.rb2(vY)
    g(f'v_pk_mul_f32 {v2(vY)}, {v2(vY)}, {v2(vGA)}')
    g.rb2(vY)
    g(f'v_pk_add_f32 {v2(vY)}, {v2(vY)}, {v2(vX)}')
    g.rb2(vY)
    g.stats_wave(vY, vT)
    g(f'ds_write_b32 v{vSS}, v{vT} offset:{L_GS}\ns_waitcnt lgkmcnt(0)\ns_barrier')
    for i in range(4): g(f'ds_read_b128 {v4(vT + 4 * i)}, v7 offset:{L_GS + 16 * i}')
    g('s_waitcnt lgkmcnt(0)')
    g.stats_fin(vT)
    g.ln_apply(vY, vT)
    g.stamp(12)
    g('Lmodulate:')
    g(f'v_pk_mul_f32 {v2(vY)}, {v2(vY)}, {v2(vCB)}')
    g.rb2(vY)
    g(f"""
    v_pk_add_f32 {v2(vT)}, {v2(vY)}, {v2(vSB)}
    v_cvt_pk_bf16_f32 v{vY}, v{vT}, v{vT+1}
    v_cvt_pk_bf16_f32 v{vY+1}, v{vT}, v{vT+1}
    s_nop 1
    v_permlane16_swap_b32 v{vY}, v{vY+1}
    s_nop {0 if WARM else 1}
    """)
    g.pad('PQ4', 'Lexit1')
    for k in range(16):
        lam = (k >> 1) + 8 * (k & 1)
        for a in range(4): g.dpp('v_dot2c_f32_bf16', vA + a, vY + (a >> 1), vWP + 32 * (a >> 1) + 2 * k + (a & 1), f'row_newbcast:{lam}')
    g(f"""
    s_nop 2
    v_pk_add_f32 {v2(vA)}, {v2(vA)}, {v2(vA+2)}
    s_nop 1
    v_permlane32_swap_b32 v{vA}, v{vA+1}
    v_add_f32 v{vA}, v{vA}, v{vA+1}
    ds_write_b32 v{vLW}, v{vA}
    s_waitcnt lgkmcnt(0)
    s_barrier
    ds_read2_b64 {v4(vT)}, v{vLR} offset0:0 offset1:32
    ds_read2_b64 {v4(vT+4)}, v{vLR} offset0:64 offset1:96
    s_cmp_eq_u32 s{sROLE}, 0
    s_waitcnt lgkmcnt(0)
    """)
    g.sum4(vT)
    g('s_cbranch_scc1 LQ2')
    g.rb2(vT)
    g(f"""
    v_mul_f32 v{vT+2}, 0xbfb8aa3b, v{vT}
    v_exp_f32 v{vT+2}, v{vT+2}
    s_cmp_ge_u32 s{sWAVE}, 2
    v_add_f32 v{vT+2}, 1.0, v{vT+2}
    v_rcp_f32 v{vT+2}, v{vT+2}
    s_cbranch_scc1 Lexit
    v_mul_f32 v{vT}, v{vT}, v{vT+2}
    """)
    g.rb1(vT)
    g(f'v_pk_mul_f32 {v2(vT)}, {v2(vT)}, {v2(vT)} op_sel:[0,1] op_sel_hi:[0,1]\ns_nop 1\nv_permlane16_swap_b32 v{vT}, v{vT+1}')
    g(f'v_cvt_pk_bf16_f32 v114, v{vT}, v{vT+1}\nglobal_store_dwordx2 v{vPA}, v[114:115], {p(sWS)} sc1')
    g.stamp(13)
    g.end()
    g.flush_tail()
    if opt.get('stamps'):
        g(f"""
        Lexit1:
        s_endpgm
        Lexit:
        Lfin:
        s_memrealtime {p(sSTAMP + 28)}
        s_sleep 127
        s_sleep 127
        s_sleep 127
        s_mov_b32 s{sSTAMP + 30}, s{sLOC}
        s_mov_b64 exec, 1
        s_lshl3_add_u32 s{sT}, s2, s{sWAVE}
        s_lshl_b32 s{sT}, s{sT}, 6
        s_add_u32 s{sT}, s{sT}, {STAMP_OFF}
        v_mov_b32 v2, s{sT}
        s_waitcnt lgkmcnt(0)
        """)
        if opt.get('probe'):
            wg, wv, st, T0, mult = map(int, opt['probe'].split(':'))
            g(f"""
            s_cmp_lg_u32 s2, {wg}
            s_cbranch_scc1 Lexit0
            s_cmp_lg_u32 s{sWAVE}, {wv}
            s_cbranch_scc1 Lexit0
            s_sub_u32 s{sT}, s{sSTAMP + 2 * st}, s{sSTAMP}
            s_mul_i32 s{sT}, s{sT}, {mult}
            s_add_u32 s{sT}, s{sT}, {T0}
            s_min_u32 s{sT}, s{sT}, 100000
            Lpad:
            s_memrealtime {p(sT + 2)}
            s_waitcnt lgkmcnt(0)
            s_sub_u32 s{sT+2}, s{sT+2}, s{sSTAMP}
            s_cmp_lt_u32 s{sT+2}, s{sT}
            s_cbranch_scc1 Lpad
            """)
        else:
            for i in range(16):
                g(f'v_mov_b32 v3, s{sSTAMP + 2 * i}\nglobal_store_dword v2, v3, {p(sWS)} offset:{4 * i}')
    else:
        g('Lexit1:\nLexit:')
    g('Lexit0:\ns_endpgm')
    g(f"""
    .section .rodata,"a"
    .p2align 6
    .amdhsa_kernel {K}
    """)
    for d in ('next_free_vgpr 128', 'next_free_sgpr 102', 'accum_offset 128', 'group_segment_fixed_size 0', 'kernarg_size 112',
              'user_sgpr_count 2', 'user_sgpr_kernarg_segment_ptr 1', 'system_sgpr_workgroup_id_x 1', 'float_denorm_mode_32 3'):
        g.L.append('  .amdhsa_' + d)
    g('.end_amdhsa_kernel')
    return '\n'.join(g.L) + '\n'


if __name__ == '__main__':
    opt = {}
    out = sys.argv[1]
    for a in sys.argv[2:]:
        k, _, v = a.partition('=')
        opt[k] = v if _ else True
    open(out, 'w').write(gen(opt))
```

```python
import sys

NAME = 'adaLN_cond__sliding_block_cached__swiglu_ffn__decode'
K = NAME + '_kernel'

MARK = 0x1f000
MOD = 0x01000
MOD_REP = 0x3100
H2 = 0xd4000
H2_G = 73 * 128
H3A = 0x20000
H3A_S = 4224
H3A_G = 16 * H3A_S
H4 = 0xa4000
H4_REP = 0x4100
H5 = 0xc5000
H5_REP = 0x1d00
STAMP_OFF = 0x1000000
assert MOD + 8 * MOD_REP <= MARK and H5 + 8 * H5_REP <= H2 and H3A + 8 * H3A_G <= H4 and H4 + 8 * H4_REP <= H5

L_FLAG = 0
L_MX = 16
L_SM = 32
L_LOC = 48
L_Q = 64
L_O = 1536
L_W = L_O + 16384
L_MP = 0
L_RP = 256
L_D = 768
L_XS = 0
L_GS = 64
L_QP = 256
L_GP = 1280
LDS_BYTES = L_W + 512

sX, sK, sV, sWQ, sWO, sGATE, sUP, sDOWN, sC, sWM, sOUT, sDBG, sWS = 4, 6, 8, 10, 12, 16, 18, 20, 22, 24, 26, 28, 30
sWAVE = 3
sTAG, sG, sJ, sTO, sSLO, sSHI, sXCC, sLOC, sPM, sROLE = 32, 33, 34, 35, 36, 37, 38, 39, 40, 41
sT = 42
sRET = 60
sW8 = 62
sSTAMP = 64

LOG2E = 0x3fb8aa3b
SCALE = 0x3db504f3
EPS = 0x3727c5ac
INV512 = 0x3b000000


def p(r): return f's[{r}:{r+1}]'
def v2(r): return f'v[{r}:{r+1}]'
def v4(r): return f'v[{r}:{r+3}]'


class G:
    def __init__(self, opt):
        self.L = []
        self.o = opt
        self.nlab = 0

    def __call__(self, s):
        for line in s.strip('\n').split('\n'):
            line = line.strip()
            if line:
                self.L.append(line if line.endswith(':') or line.startswith('.') else '    ' + line)

    def lab(self, n):
        self.nlab += 1
        return f'L{n}{self.nlab}'

    def stamp(self, i):
        if self.o.get('stamps'):
            self(f's_memrealtime {p(sSTAMP + 2 * i)}')

    def dpp(self, op, d, s0, s1, ctrl, bank=0xf):
        if s1 is None:
            self(f'{op}_dpp v{d}, v{s0} {ctrl} row_mask:0xf bank_mask:{bank:#x}')
        else:
            self(f'{op}_dpp v{d}, v{s0}, v{s1} {ctrl} row_mask:0xf bank_mask:{bank:#x}')

    def poll(self, loads, tags, tmp, issued=False, tag=sTAG, mid=None, pad='', mask=0, pre=None, first=0):
        r, l = self.lab('retry'), self.lab('poll')
        if first: self(f's_waitcnt vmcnt({first})')
        self(f's_branch {l}\n{pad}\n{r}:\ns_sub_u32 s{sTO}, s{sTO}, 1\ns_cbranch_scc1 Lexit')
        if self.o.get('nomask'): mask = 0
        if pre: pre()
        if mask: self('s_mov_b64 exec, vcc')
        if not issued: self(f'{l}:')
        loads()
        if mask == 1: self('s_mov_b64 exec, -1')
        if issued and not first: self(f'{l}:')
        self('s_waitcnt vmcnt(0)')
        if first: self(f'{l}:')
        if len(tags) == 1:
            self(f'v_cmp_ne_u32 vcc, s{tag}, v{tags[0]}')
        else:
            self(f'v_bitop3_b32 v{tmp}, v{tags[0]}, s{sTAG}, v{tags[1]} bitop3:0x7e')
            for t in tags[2:]:
                self(f'v_bitop3_b32 v{tmp}, v{t}, s{sTAG}, v{tmp} bitop3:0xbe')
            self(f'v_cmp_ne_u32 vcc, 0, v{tmp}')
        if mid: mid()
        if mask == 2: self('s_mov_b64 exec, -1')
        self(f's_cbranch_vccnz {r}')

    def pair(self, dst, a, b, W):
        for c in range(2 * W):
            self(f'v_perm_b32 v{dst + c}, v{b + c // 2}, v{a + c // 2}, s{sSHI if c & 1 else sSLO}')

    def red8(self, a, lpr):
        self('s_nop 1')
        for i in range(4): self(f'v_permlane32_swap_b32 v{a+i}, v{a+4+i}')
        for i in (0, 2, 1, 3): self(f'v_add_f32 v{a+i}, v{a+i}, v{a+4+i}')
        self(f'v_permlane16_swap_b32 v{a}, v{a+2}')
        self('s_nop 0')
        self(f'v_permlane16_swap_b32 v{a+1}, v{a+3}')
        self(f'v_add_f32 v{a}, v{a}, v{a+2}\nv_add_f32 v{a+1}, v{a+1}, v{a+3}')
        steps = ['row_ror:8', 'row_ror:4']
        if lpr <= 2: steps.append('quad_perm:[2,3,0,1]')
        if lpr == 1: steps.append('quad_perm:[1,0,3,2]')
        for s in steps:
            self('s_nop 0')
            self.dpp('v_add_f32', a, a, a, s)
            self.dpp('v_add_f32', a + 1, a + 1, a + 1, s)

    def red4(self, a):
        self('s_nop 1')
        self(f'v_permlane32_swap_b32 v{a}, v{a+2}\nv_permlane32_swap_b32 v{a+1}, v{a+3}')
        self(f'v_add_f32 v{a}, v{a}, v{a+2}\nv_add_f32 v{a+1}, v{a+1}, v{a+3}')
        self('s_nop 1')
        self(f'v_permlane16_swap_b32 v{a}, v{a+1}')
        self(f'v_add_f32 v{a}, v{a}, v{a+1}')

    def sum4(self, r):
        self(f'v_pk_add_f32 {v2(r)}, {v2(r)}, {v2(r+2)}\nv_pk_add_f32 {v2(r+4)}, {v2(r+4)}, {v2(r+6)}\nv_pk_add_f32 {v2(r)}, {v2(r)}, {v2(r+4)}')

    def unpack(self, d, s):
        self(f'v_and_b32 v{d+1}, 0xffff0000, v{s}\nv_lshlrev_b32 v{d}, 16, v{s}')

    def rb2(self, d):
        self(f'v_cvt_pk_bf16_f32 v{d}, v{d}, v{d+1}')
        self.unpack(d, d)

    def rb1(self, d):
        self(f'v_cvt_pk_bf16_f32 v{d}, v{d}, v{d}\nv_lshlrev_b32 v{d}, 16, v{d}')

    def silu2(self, x, t):
        self(f'v_mul_f32 v{t}, 0xbfb8aa3b, v{x}\nv_mul_f32 v{t+1}, 0xbfb8aa3b, v{x+1}')
        self(f'v_exp_f32 v{t}, v{t}\nv_exp_f32 v{t+1}, v{t+1}')
        self(f'v_add_f32 v{t}, 1.0, v{t}\nv_add_f32 v{t+1}, 1.0, v{t+1}')
        self(f'v_rcp_f32 v{t}, v{t}\nv_rcp_f32 v{t+1}, v{t+1}')
        self(f'v_mul_f32 v{x}, v{x}, v{t}\nv_mul_f32 v{x+1}, v{x+1}, v{t+1}')

    def stats_wave(self, x, t):
        self(f'v_mul_f32 v{t+1}, v{x}, v{x}\nv_add_f32 v{t}, v{x}, v{x+1}\nv_fmac_f32 v{t+1}, v{x+1}, v{x+1}')
        self('s_nop 1')
        self(f'v_permlane32_swap_b32 v{t}, v{t+1}\nv_add_f32 v{t}, v{t}, v{t+1}')
        for s in ('row_ror:8', 'row_ror:4', 'row_ror:2', 'row_ror:1'):
            self('s_nop 1')
            self.dpp('v_add_f32', t, t, t, s)

    def stats_fin(self, r):
        self(f'v_mul_f32 v{r}, {INV512:#x}, v{r}\nv_mul_f32 v{r+1}, {INV512:#x}, v{r+1}')
        self(f'v_fma_f32 v{r+1}, -v{r}, v{r}, v{r+1}\nv_max_f32 v{r+1}, 0, v{r+1}')
        self.rb2(r)
        self(f'v_add_f32 v{r+1}, {EPS:#x}, v{r+1}')
        self.rb1(r + 1)
        self(f'v_sqrt_f32 v{r+1}, v{r+1}\ns_nop 0')
        self.rb1(r + 1)
        self(f'v_rcp_f32 v{r+1}, v{r+1}')

    def ln_apply(self, x, m):
        self(f'v_sub_f32 v{x}, v{x}, v{m}\nv_sub_f32 v{x+1}, v{x+1}, v{m}')
        self.rb2(x)
        self(f'v_mul_f32 v{x}, v{x}, v{m+1}\nv_mul_f32 v{x+1}, v{x+1}, v{m+1}')
        self.rb2(x)

    def store_local(self, insts):
        a, b = self.lab('far'), self.lab('sd')
        if self.o.get('nolocal'):
            for i in insts: self(i + ' sc1')
            return
        self(f's_cmp_eq_u32 s{sLOC}, 0\ns_cbranch_scc0 {a}')
        for i in insts: self(i)
        self(f'{b}:')
        self.tail.append((a, [i + ' sc1' for i in insts], b))

    def store_masked(self, inst, ml, full):
        a, b = self.lab('far'), self.lab('sd')
        self(f's_mov_b64 exec, {p(ml)}\n{inst}\ns_cbranch_execz {a}\n{b}:')
        self.tail.append((a, [f's_mov_b64 exec, {full}', inst + ' sc1'], b))

    def flush_tail(self):
        for a, insts, b in self.tail:
            self(f'{a}:')
            for i in insts: self(i)
            self(f's_branch {b}')
        self.tail = []

    def pad(self, name, target):
        if self.o.get('warm', '1') != '0':
            self(f'{name}:\ns_cbranch_execz {target}')

    def end(self):
        self('s_branch Lfin' if self.o.get('stamps') else 's_endpgm')


def gen(opt):
    g = G(opt)
    g.tail = []
    NT = opt.get('nt', '')
    NTK = opt.get('ntk', 'nt')
    NTO = opt.get('nto', '')
    LOCAL = not opt.get('nolocal')
    NTG, NTD, NTW, NTV = (opt.get(k, d).replace('_', ' ') for k, d in (('ntg', ''), ('ntd', ''), ('ntw', ''), ('ntv', '')))
    PF = int(opt.get('pf', 13))
    VA = int(opt.get('va', 3))
    WARM = opt.get('warm', '1') != '0'
    STAMPS = opt.get('stamps')
    DX = int(opt.get('dx', 4))
    RF = int(opt.get('rf', 2))
    DIAG = int(opt.get('diag', -1))
    DPF = int(opt.get('dpf', 0))
    SM1 = opt.get('sm1', 'Vc.Vd'); SM2 = opt.get('sm2', 'D'); SQ = opt.get('sq', 'P.H.W0.W1.G0')
    hdr = open('cdna_kernels/' + NAME + '.s.ref').read().split('; Override launch')[0] if opt.get('hdr', True) else ''
    g.L.append(hdr.rstrip('\n'))
    g.L.append(f'; @launch grid=(256,1,1) block=(512,1,1) lds={LDS_BYTES}')
    g(f'.amdgcn_target "amdgcn-amd-amdhsa--gfx950"\n.text\n.globl {K}\n.p2align 12\n.fill 832, 4, 0xbf810000\n.p2align 8\n.type {K},@function\n{K}:')
    ROT = ('row_ror:8', 'row_ror:4', 'row_ror:2', 'row_ror:1')

    def lgkm(n):
        g(f's_waitcnt lgkmcnt({0 if STAMPS else n})')

    def consts():
        g(f's_mov_b32 s{sTO}, 0x100000\ns_mov_b32 s{sSLO}, 0x05040100\ns_mov_b32 s{sSHI}, 0x07060302')

    def mk_tag():
        g(f's_mul_i32 s{sTAG}, s{sTAG}, 0x9e3779b1\ns_add_u32 s{sTAG}, s{sTAG}, 0x7f4a7c15')

    def xcc_val():
        g(f's_getreg_b32 s{sXCC}, hwreg(HW_REG_XCC_ID, 0, 4)\ns_or_b32 s{sXCC}, s{sXCC}, 0x80\ns_mul_i32 s{sXCC}, s{sXCC}, 0x01010101')

    def xcc_addr():
        xcc_val()
        g(f'v_and_b32 v126, 7, v0\nv_lshlrev_b32 v126, 2, v126\nv_lshl_add_u32 v126, s{sG}, 5, v126')

    def xcc_test():
        g(f'v_cmp_ne_u32 vcc, s{sXCC}, v127\ns_mov_b32 s{sLOC}, vcc_lo')
    XLD = f'\nglobal_load_dword v127, v126, {p(sDBG)} sc1'

    def base(dst, mul, off, extra=None):
        g(f's_mul_i32 s{dst}, s{sG}, {mul}\ns_add_u32 s{dst}, s{dst}, {off}')
        if extra is not None: g(f's_add_u32 s{dst}, s{dst}, s{extra}')

    def fp24_consts(a):
        g(f's_mov_b32 s{a}, 0x0c04000c\ns_mov_b32 s{a+1}, 0x0402010c\ns_mov_b32 s{a+2}, 0x07060501\ns_mov_b32 s{a+3}, 0x07060502\ns_mov_b32 s{a+4}, 0x07060503')

    def fp24_unpack(r, a):
        g(f'v_perm_b32 v{r+3}, v{r+1}, v{r}, s{a}\nv_perm_b32 v{r+3}, v{r+2}, v{r+3}, s{a+1}')

    def fp24_pack(d, r, a):
        for i in range(3): g(f'v_perm_b32 v{d+i}, v{r+i}, v{r+3}, s{a+2+i}')

    def stream(spec, counted=False):
        g(f's_lshl_b32 s{sT}, s{sJ}, 5\nv_xor_b32 v123, s{sT}, v0' if int(opt.get('rot', 1)) else 'v_mov_b32 v123, v0')
        for it in spec.split('.'):
            if not it: continue
            if it[0] == 'V':
                off = {'a': 0, 'b': 65536, 'c': 32768, 'd': 98304, 'x': 32768, 'y': 49152}[it[1]]
                g(f's_lshl_b32 s{sT}, s{sG}, 24\ns_lshl_b32 s{sT+1}, s{sJ}, 17\ns_add_u32 s{sT}, s{sT}, s{sT+1}\ns_add_u32 s{sT}, s{sT}, {(15 << 20) + off}')
                if it[1] in 'xy':
                    g(f's_lshr_b32 s{sT+1}, s{sWAVE}, 1\ns_mul_i32 s{sT+1}, s{sT+1}, 49152\ns_add_u32 s{sT}, s{sT}, s{sT+1}')
                g(f'v_lshl_add_u32 v120, v{0 if it[1] in "xy" else 123}, 7, s{sT}\nglobal_load_dword v121, v120, {p(sV)} {NTV}')
            elif it[0] == 'W':
                g(f's_and_b32 s{sT}, s{sJ}, 6\ns_add_u32 s{sT}, s{sT}, s{sJ}\ns_lshl4_add_u32 s{sT}, s{sG}, s{sT}\ns_add_u32 s{sT}, s{sT}, {2 * int(it[1])}\ns_lshl_b32 s{sT}, s{sT}, 15')
                g(f'v_lshl_add_u32 v120, v123, 7, s{sT}\nglobal_load_dword v121, v120, {p(sWO)} {NTW}')
            elif it[0] == 'G':
                l = g.lab('ng')
                g(f"""
                s_cmp_eq_u32 s{sG}, 7
                {f's_cselect_b64 exec, 1, -1' if counted else f's_cbranch_scc1 {l}'}
                s_lshr_b32 s{sT}, s{sWAVE}, 1
                s_lshl1_add_u32 s{sT}, s{sJ}, s{sT}
                s_lshl_b32 s{sT}, s{sT}, 4
                s_addk_i32 s{sT}, {256 * int(it[1])}
                v_lshrrev_b32 v120, 2, v1
                v_add_u32 v120, s{sT}, v120
                v_and_b32 v122, 3, v1
                v_mad_u32_u24 v120, v120, 28, v122
                s_min_u32 s{sT}, s{sG}, 6
                s_lshl_b32 s{sT}, s{sT}, 2
                v_add_lshl_u32 v120, v120, s{sT}, 7
                s_bitcmp1_b32 s{sWAVE}, 0
                s_cselect_b64 {p(sT)}, {p(sUP)}, {p(sGATE)}
                global_load_dword v121, v120, {p(sT)} {NTG}
                {'s_mov_b64 exec, -1' if counted else ''}
                {l}:
                """)
            elif it == 'D':
                g(f"""
                s_mul_i32 s{sT}, s{sJ}, 224
                v_min_u32 v120, 223, v0
                v_add_lshl_u32 v120, v120, s{sT}, 3
                s_xor_b32 s{sT}, s{sG}, {DX}
                v_add_lshl_u32 v120, v120, s{sT}, 7
                global_load_dword v121, v120, {p(sDOWN)} {NTD}
                """)
            elif it == 'R':
                g(f"""
                s_lshl_b32 s{sT}, s{sJ}, 6
                v_lshrrev_b32 v120, 2, v0
                v_add_u32 v120, s{sT}, v120
                v_and_b32 v122, 3, v0
                v_mad_u32_u24 v120, v120, 48, v122
                s_lshl2_add_u32 s{sT}, s{sG}, 16
                v_add_lshl_u32 v120, v120, s{sT}, 7
                global_load_dword v121, v120, {p(sWM)} {NT}
                """)
            elif it == 'H':
                g(f's_lshr_b32 s{sT}, s{sWAVE}, 1\ns_lshl1_add_u32 s{sT}, s{sJ}, s{sT}\ns_mul_i32 s{sT}, s{sT}, {H3A_S}')
                base(sT + 1, H3A_G, H3A, sT)
                g(f's_and_b32 s{sT}, s{sWAVE}, 1\nv_min_u32 v120, 16, v1\nv_lshl_add_u32 v120, s{sT}, 4, v120\nv_lshl_add_u32 v120, v120, 7, s{sT+1}\nglobal_load_dword v121, v120, {p(sWS)} sc1')
            elif it[0] in 'TU':
                if it[0] == 'T':
                    base(sT, H3A_G, H3A + 128 + 12)
                    g(f'v_mul_u32_u24 v120, {H3A_S}, v1\nv_add_u32 v120, s{sT}, v120')
                else:
                    base(sT, 128, MARK)
                    g(f'v_lshl_add_u32 v120, v1, 2, s{sT}')
                r, l = g.lab('retry'), g.lab('trig')
                g(f"""
                s_mov_b64 exec, 0xffff
                s_branch {l}
                {r}:
                s_sub_u32 s{sTO}, s{sTO}, 1
                s_cbranch_scc1 Lexit
                {l}:
                global_load_dword v121, v120, {p(sWS)} sc1
                s_waitcnt vmcnt(0)
                v_cmp_eq_u32 vcc, s{sTAG}, v121
                s_bcnt1_i32_b32 s{sT}, vcc_lo
                s_cmp_lt_u32 s{sT}, {int(it[1:])}
                s_cbranch_scc1 {r}
                s_mov_b64 exec, -1
                """)
            elif it == 'P':
                g(f's_lshl_b32 s{sT}, s{sJ}, 11')
                base(sT + 1, H4_REP, H4, sT)
                g(f'v_lshrrev_b32 v120, 4, v0\nv_lshl_add_u32 v120, v120, 7, s{sT+1}\nglobal_load_dword v121, v120, {p(sWS)} sc1')
            else:
                raise ValueError(it)

    g.stamp(0)
    g(f"""
    s_load_dwordx16 s[4:19], s[0:1], 0
    s_load_dwordx8 s[20:27], s[0:1], 64
    s_load_dwordx4 s[28:31], s[0:1], 96
    s_cmpk_ge_u32 s2, 256
    s_cbranch_scc1 Lexit0
    v_readfirstlane_b32 s{sWAVE}, v0
    s_and_b32 s{sG}, s2, 7
    s_lshr_b32 s{sJ}, s2, 3
    v_and_b32 v1, 63, v0
    s_lshr_b32 s{sWAVE}, s{sWAVE}, 6
    s_cmp_lt_u32 s{sWAVE}, 4
    s_cbranch_scc0 LH
    s_cmp_ge_u32 s{sJ}, 24
    s_cbranch_scc1 LM
    s_cmp_ge_u32 s{sJ}, 16
    s_cbranch_scc1 LQ
    s_branch LA
    LH:
    """)
    if LOCAL:
        l = g.lab('h')
        g(f's_cmp_lg_u32 s{sWAVE}, 7\ns_cbranch_scc1 {l}\ns_cmp_lt_u32 s{sJ}, 16\ns_cbranch_scc1 {l}')
        xcc_val()
        g(f"""
        s_lshl_b32 s{sT}, s{sG}, 5
        s_add_u32 s{sT}, s{sT}, s{sJ}
        v_mov_b32 v126, s{sT}
        v_mov_b32 v127, s{sXCC}
        s_mov_b64 exec, 1
        s_waitcnt lgkmcnt(0)
        global_store_byte v126, v127, {p(sDBG)}
        """)
        if int(opt.get('pt', 1)):
            g(f's_cmp_ge_u32 s{sJ}, 24\ns_cbranch_scc1 {l}\ns_mov_b64 exec, 0x1fffff\ns_mul_i32 s{sT}, s{sJ}, 1536')
            base(sT + 1, MOD_REP, MOD - 16 * 1536, sT)
            g(f's_mul_i32 s{sT}, s{sJ}, 1152')
            base(sT + 2, H2_G, H2 - 16 * 1152 - 12 * 128, sT)
            g(f"""
            v_mov_b32 v2, s{sT+1}
            v_mov_b32 v3, s{sT+2}
            v_cmp_lt_u32 vcc, 11, v1
            s_nop 1
            v_cndmask_b32 v2, v2, v3, vcc
            v_lshl_add_u32 v2, v1, 7, v2
            global_load_dword v3, v2, {p(sWS)} sc1
            """)
        g(f'{l}:')
    lq, lm = g.lab('hq'), g.lab('hm')

    def hop(targets):
        for w, t in zip((4, 5, 6), targets):
            g(f's_cmp_eq_u32 s{sWAVE}, {w}\ns_cbranch_scc1 {t}')
        g(f's_branch {targets[3]}')
    g(f's_mov_b64 exec, 0\ns_cmp_ge_u32 s{sJ}, 24\ns_cbranch_scc0 {lq}')
    hop(['LFH', 'PM1', 'PM2', 'PM3'] if WARM else ['LFH'] + ['Lexit1'] * 3)
    g(f'{lq}:\ns_cmp_ge_u32 s{sJ}, 16\ns_cbranch_scc0 {lm}')
    hop(['PQ1', 'PQ2', 'PQ5', 'PQ4'] if WARM else ['Lexit1'] * 4)
    g(f'{lm}:')
    if WARM: hop(['PA1', 'PA2', 'PA3', 'PA4'])
    g('LAres:\ns_mov_b64 exec, -1')
    vK, vV, vVT, vQ, vP = 8, 40, 72, 104, 108
    g(f"""
    LA:
    s_lshl_b32 s{sT}, s{sG}, 24
    s_lshl_b32 s{sT+1}, s{sJ}, 16
    s_add_u32 s{sT}, s{sT}, s{sT+1}
    s_add_u32 s{sT}, s{sT}, {15 << 20}
    s_and_b32 s{sT+2}, s{sJ}, {7 if int(opt.get('rot', 1)) else 0}
    """)
    PAT = int(opt.get('pat', 1))
    if PAT == 0: g(f's_and_b32 s{sT+1}, s{sWAVE}, 4\ns_add_u32 s{sT+1}, s{sT+1}, s{sWAVE}\ns_xor_b32 s{sT+1}, s{sT+1}, s{sT+2}\ns_lshl_b32 s{sT+1}, s{sT+1}, 12')
    else: g(f's_and_b32 s{sT+1}, s{sWAVE}, 4\ns_mul_i32 s{sT+1}, s{sT+1}, 7\ns_add_u32 s{sT+1}, s{sT+1}, s{sWAVE}\ns_lshl2_add_u32 s{sT+1}, s{sT+2}, s{sT+1}\ns_lshl_b32 s{sT+1}, s{sT+1}, 10')
    g(f"""
    s_add_u32 s{sT}, s{sT}, s{sT+1}
    v_lshl_add_u32 v2, v1, 4, s{sT}
    v_and_b32 v5, 12, v0
    v_and_b32 v6, 48, v0
    v_mul_u32_u24 v5, 48, v5
    v_mul_u32_u24 v6, 12, v6
    v_add_u32 v3, v2, v5
    v_sub_u32 v3, v3, v6
    """)
    if LOCAL:
        xcc_val()
        g(f's_lshl_b32 s{sT}, s{sG}, 5\ns_add_u32 s{sT}, s{sT}, s{sJ}\nv_mov_b32 v126, s{sT}\nv_mov_b32 v127, s{sXCC}')
    if PF:
        g(f"""
        s_lshl_b32 s{sT+3}, s{sJ}, 5
        s_and_b32 s{sT+4}, s{sJ}, 1
        s_mul_i32 s{sT+4}, s{sT+4}, 24
        s_lshl4_add_u32 s{sT+5}, s{sWAVE}, s{sT+3}
        s_sub_u32 s{sT+4}, s{sT+5}, s{sT+4}
        s_cmp_eq_u32 s{sWAVE}, 0
        s_cselect_b32 s{sT+3}, s{sT+3}, s{sT+4}
        s_cselect_b32 s{sT+4}, 1, 3
        s_cselect_b32 s{sT+5}, 48, 64
        v_lshrrev_b32 v5, s{sT+4}, v1
        v_bfe_u32 v6, v1, 0, s{sT+4}
        v_add_u32 v5, s{sT+3}, v5
        s_lshl_b32 s{sT+4}, s{sG}, s{sT+4}
        v_mad_u32_u24 v5, v5, s{sT+5}, v6
        v_add_lshl_u32 v5, v5, s{sT+4}, 7
        """)
    l = g.lab('a')
    g(f's_cmp_lg_u32 s{sWAVE}, 0\ns_waitcnt lgkmcnt(0)')
    g.stamp(1)
    g(f's_cbranch_scc1 {l}')
    if LOCAL: g(f's_mov_b64 exec, 1\nglobal_store_byte v126, v127, {p(sDBG)}\ns_mov_b64 exec, -1')
    g(f's_mov_b64 {p(sWQ)}, {p(sWM)}\n{l}:')
    if PF:
        l = g.lab('a')
        g(f"""
        s_bitcmp0_b32 {PF}, s{sWAVE}
        s_cbranch_scc1 {l}
        global_load_dword v{vVT+8}, v5, {p(sWQ)} {NT}
        {l}:
        """)
    g(f's_load_dword s{sTAG}, {p(sWS)}, 0')

    def loadkv(b, va, vd):
        if PAT == 1:
            for n in range(8):
                g(f'global_load_dwordx4 {v4(vd + 4 * n)}, v{va}, {p(b)} {NTK}')
                if n != 7: g(f'v_xor_b32 v{va}, {((n ^ (n + 1)) & 7) << 12}, v{va}')
            return
        for n in range(8):
            g(f'global_load_dwordx4 {v4(vd + 4 * n)}, v{va}, {p(b)} offset:{1024 * (n & 3)} {NTK}')
            if n == 3: g(f'v_xor_b32 v{va}, 0x4000, v{va}')
    loadkv(sK, 3, vK)
    g.stamp(2)
    VY = int(opt.get('vy', 1))
    sVP, sWP, sML, sML4, sM4 = 100, 0, 60, 62, 58
    consts()
    for i in range(16): g(f'v_mov_b32 v{vP+i}, 0')
    ly, lsp, r, r2, lp = g.lab('y'), g.lab('sp'), g.lab('retry'), g.lab('retry'), g.lab('fl')
    g(f"""
    v_lshlrev_b32 v124, 4, v1
    v_and_b32 v125, 3, v1
    v_lshlrev_b32 v125, 2, v125
    v_mov_b32 v3, 0
    v_mov_b32 v4, 0xff800000
    ds_write2_b32 v125, v4, v3 offset0:{L_MX // 4} offset1:{L_SM // 4}
    s_mov_b64 {p(sWP)}, {p(sWO)}
    s_mov_b64 {p(sVP)}, {p(sV)}
    s_waitcnt lgkmcnt(0)
    s_barrier
    """)
    mk_tag()
    if DIAG >= 0:
        loadkv(sVP, 2, vV)
        g('s_waitcnt vmcnt(0)')
        g.stamp(6)
        g.end()
    xl = f's_lshl_b32 s{sT}, s{sG}, 5\ns_load_dwordx8 s[4:11], {p(sDBG)}, s{sT}\ns_mov_b32 s{sXCC+1}, s{sXCC}'
    if VY == 3:
        l = g.lab('xo')
        g(f's_cmp_lt_u32 s{sWAVE}, 4\ns_cbranch_scc1 {l}\n{xl}\n{l}:')
        loadkv(sVP, 2, vV)
        g(f's_cmp_ge_u32 s{sWAVE}, 4\ns_cbranch_scc1 {ly}\ns_mov_b32 s{sT+3}, s{sWAVE}')
    else:
        g(f's_cmp_lt_u32 s{sWAVE}, 4\ns_cbranch_scc1 {ly}\ns_setprio {opt.get("prio", 1)}\ns_and_b32 s{sT+3}, s{sWAVE}, 3\ns_waitcnt vmcnt({opt.get("kw", 6)})')

    def xtest():
        for i in range(4): g(f's_xor_b64 {p(4+2*i)}, {p(4+2*i)}, {p(sXCC)}')
        g(f's_or_b64 s[4:5], s[4:5], s[6:7]\ns_or_b64 s[8:9], s[8:9], s[10:11]\ns_or_b64 s[4:5], s[4:5], s[8:9]\ns_or_b32 s{sLOC}, s4, s5')
        if not LOCAL: g(f's_mov_b32 s{sLOC}, 1')
    if VY != 3: g(xl)
    base(sT + 1, H2_G, H2 + 1024)
    g(f"""
    s_lshl_b32 s{sT}, s{sT+3}, 8
    s_lshl3_add_u32 s{sT+2}, s{sT}, s{sT+1}
    s_add_u32 s{sT}, s{sT}, s{sT+1}
    s_add_u32 s{sT+1}, s{sT+2}, {64 * int(opt.get('nc', 31))}
    s_add_u32 s{sDBG}, s{sWS}, s{sT}
    s_addc_u32 s{sDBG+1}, s{sWS+1}, 0
    v_lshl_add_u32 v7, v1, 2, s{sT+3}
    v_lshlrev_b32 v7, 4, v7
    s_mov_b64 exec, 1
    {r2}:
    s_cmp_lt_u32 s{sT+2}, s{sT+1}
    s_cbranch_scc0 Lfglc
    s_load_dwordx2 s[12:13], {p(sWS)}, s{sT+2}
    s_add_u32 s{sT+2}, s{sT+2}, 64
    {lp}:
    s_waitcnt lgkmcnt(0)
    s_cmp_lg_u32 s12, s{sTAG}
    s_cbranch_scc1 {r2}
    s_cmp_lg_u32 s13, s{sTAG}
    s_cbranch_scc1 {r2}
    """)
    g.stamp(3)
    g(f"""
    s_load_dwordx16 s[44:59], {p(sDBG)}, -1024
    s_load_dwordx16 s[80:95], {p(sDBG)}, {-1024 + 64}
    s_load_dwordx16 s[12:27], {p(sDBG)}, {-1024 + 128}
    s_load_dwordx4 s[60:63], {p(sDBG)}, {-1024 + 192}
    s_load_dwordx4 s[96:99], {p(sDBG)}, {-1024 + 208}
    """)
    if VY != 3: xtest()
    g(f's_load_dwordx8 s[4:11], {p(sDBG)}, {-1024 + 224}\ns_waitcnt lgkmcnt(0)')
    g.stamp(1)
    for c, sr in enumerate([44, 48, 52, 56, 80, 84, 88, 92, 12, 16, 20, 24, 60, 96, 4, 8]):
        g(f'v_mov_b64 {v2(vVT)}, {p(sr)}\nv_mov_b64 {v2(vVT+2)}, {p(sr+2)}')
        g('s_lshl_b32 exec_lo, exec_lo, 1' if c != 15 else 's_mov_b32 exec_lo, 0xffff')
    g(f"""
    ds_write_b128 v7, {v4(vVT)} offset:{L_Q}
    s_mov_b64 exec, -1
    {'' if VY == 3 else 's_waitcnt vmcnt(0)'}
    s_branch {lsp}
    PA1:
    s_branch LAres
    Lfglc:
    s_sub_u32 s{sTO}, s{sTO}, 1
    s_cbranch_scc1 Lexit
    s_load_dwordx2 s[12:13], {p(sWS)}, s{sT+2} glc
    s_branch {lp}
    {ly}:
    """)
    if VY == 3: g(f's_setprio {opt.get("prio", 1)}')
    else: loadkv(sVP, 2, vV)
    g.stamp(3)
    g(f"""
    {lsp}:
    s_waitcnt lgkmcnt(0)
    s_barrier
    ds_read_b128 {v4(vQ)}, v124 offset:{L_Q}
    s_mov_b32 s{sT+4}, 0x000f000f
    s_mov_b32 s{sT+5}, 0x000f000f
    """)

    def vyoung(k):
        if VY == k:
            l = g.lab('vy')
            g(f's_cmp_lt_u32 s{sWAVE}, 4\ns_cbranch_scc1 {l}')
            loadkv(sVP, 2, vV)
            g(f'{l}:')
    vyoung(0)
    g('s_waitcnt vmcnt(8) lgkmcnt(0)')
    g.stamp(4)
    for n in range(8):
        g(f'v_mfma_f32_16x16x32_bf16 {v4(vK - 4 + 4 * n)}, {v4(vK + 4 * n)}, {v4(vQ)}, 0')
    vS0 = 36
    g('s_nop 0')
    for half in range(2):
        for t in range(3):
            for beta in (2 * half, 2 * half + 1):
                for m in range(2):
                    n = 2 * beta + m
                    D = vK - 4 + 4 * n
                    pi = (beta + 1 + t) % 4
                    T = vS0 + m + 2 * (beta & 1)
                    g.dpp('v_add_f32', T, D + pi, D + beta if t == 0 else T, f'row_ror:{4 * ((beta - pi) % 4)}', 1 << beta)
    g('s_nop 0')
    g.dpp('v_mov_b32', vS0, vS0 + 2, None, 'quad_perm:[0,1,2,3]', 0xa)
    g.dpp('v_mov_b32', vS0 + 1, vS0 + 3, None, 'quad_perm:[0,1,2,3]', 0xa)
    g.rb2(vS0)
    g(f'v_mul_f32 v{vS0}, {SCALE:#x}, v{vS0}\nv_mul_f32 v{vS0+1}, {SCALE:#x}, v{vS0+1}')
    g.rb2(vS0)
    g(f'v_max_f32 v4, v{vS0}, v{vS0+1}\ns_lshl_b32 s{sT}, s{sWAVE}, 11\nv_add_u32 v6, s{sT}, v124')
    g.dpp('v_max_f32', 4, 4, 4, 'row_ror:8')
    g(f'v_lshlrev_b32 v7, 2, v0\nv_add_u32 v7, {L_O - 1024}, v7')
    g.dpp('v_max_f32', 4, 4, 4, 'row_ror:4')
    g(f"""
    s_mov_b64 exec, {p(sT+4)}
    ds_max_f32 v125, v4 offset:{L_MX}
    s_mov_b64 exec, -1
    s_mul_i32 s{sT}, s{sJ}, {H3A_S}
    """)
    base(sT + 6, H3A_G, H3A)
    g(f"""
    s_add_u32 s{sT}, s{sT}, s{sT+6}
    s_sub_u32 s{sT}, s{sT}, 4096
    v_lshl_add_u32 v5, v0, 4, s{sT}
    v_mov_b32 v19, s{sTAG}
    s_waitcnt lgkmcnt(0)
    s_barrier
    ds_read_b32 v4, v125 offset:{L_MX}
    """)
    g.stamp(5)
    if 'U' in SM1 + SM2 + SQ:
        l = g.lab('mk')
        g(f's_cmp_lg_u32 s{sWAVE}, 4\ns_cbranch_scc1 {l}\ns_lshl_b32 s{sT}, s{sJ}, 2')
        base(sT + 1, 128, MARK, sT)
        g(f'v_mov_b32 v126, s{sT+1}\ns_mov_b64 exec, 1')
        g.store_local([f'global_store_dword v126, v19, {p(sWS)}'])
        g(f's_mov_b64 exec, -1\n{l}:')
    vyoung(1)
    if VY == 3: xtest()
    g(f"""
    s_mov_b32 s{sM4}, 0x00010001
    s_mov_b32 s{sM4+1}, 0x00010001
    s_cmp_eq_u32 s{sLOC}, 0
    s_cselect_b64 {p(sML)}, -1, 0
    s_cselect_b64 {p(sML4)}, {p(sM4)}, 0
    s_waitcnt lgkmcnt(0)
    v_sub_f32 v{vS0}, v{vS0}, v4
    v_sub_f32 v{vS0+1}, v{vS0+1}, v4
    v_mul_f32 v{vS0}, {LOG2E:#x}, v{vS0}
    v_mul_f32 v{vS0+1}, {LOG2E:#x}, v{vS0+1}
    v_exp_f32 v{vS0}, v{vS0}
    v_exp_f32 v{vS0+1}, v{vS0+1}
    v_mul_f32 v4, {LOG2E:#x}, v4
    v_cvt_pk_bf16_f32 v{vS0+2}, v{vS0}, v{vS0+1}
    v_add_f32 v{vS0}, v{vS0}, v{vS0+1}
    s_nop 0
    """)
    for c in range(4):
        for m in range(4):
            rot = 4 * ((c - m) % 4)
            g.dpp('v_mov_b32', vP + 4 * c + m, vS0 + 2, None, f'row_ror:{rot}' if rot else 'quad_perm:[0,1,2,3]', 1 << c)
        if c < 2: g.dpp('v_add_f32', vS0, vS0, vS0, ROT[c])
    g(f's_mov_b64 exec, {p(sT+4)}\nds_add_f32 v125, v{vS0} offset:{L_SM}\ns_mov_b64 exec, -1')
    l = g.lab('yy')
    g(f's_cmp_lt_u32 s{sWAVE}, 4\ns_cbranch_scc1 {l}')
    if VY == 2: loadkv(sVP, 2, vV)
    g(f"""
    s_lshl2_add_u32 s{sT}, s{sJ}, s{sWAVE}
    s_sub_u32 s{sT}, s{sT}, 4
    s_lshl_b32 s{sT+1}, s{sT}, 6
    s_add_u32 s{sT+1}, s{sT+1}, s{sT+6}
    v_and_b32 v126, 15, v1
    v_mul_u32_u24 v126, {H3A_S}, v126
    v_and_b32 v127, 48, v1
    v_add3_u32 v126, v126, v127, s{sT+1}
    s_lshr_b32 s{sT+1}, s{sJ}, 2
    s_mul_i32 s{sT+1}, s{sT+1}, {H3A_S}
    s_and_b32 s{sT}, s{sT}, 15
    s_lshl3_add_u32 s{sT}, s{sT}, s{sT+1}
    s_add_u32 s{sT}, s{sT}, s{sT+6}
    s_addk_i32 s{sT}, 4096
    v_mul_u32_u24 v127, {H3A_S // 4}, v127
    v_add_u32 v127, s{sT}, v127
    v_mov_b32 v39, s{sTAG}
    s_branch {l}
    PA2:
    s_branch LAres
    {l}:
    s_cmp_lt_u32 s{sWAVE}, 4
    """)
    for m in range(4):
        g(f's_waitcnt vmcnt({6 - 2 * m})')
        if m == 3: g.stamp(6)
        for c in (0, 4, 1, 5, 2, 6, 3, 7):
            g(f'v_perm_b32 v{vVT + 4 * c + m}, v{vV + 8 * m + 4 + c // 2}, v{vV + 8 * m + c // 2}, s{sSHI if c & 1 else sSLO}')
    for c in range(4):
        for a in range(2):
            g(f'v_mfma_f32_16x16x32_bf16 {v4(8 + 4 * a)}, {v4(vP + 4 * c)}, {v4(vVT + 16 * a + 4 * c)}, {v4(8 + 4 * a) if c else 0}')
    g(f"""
    s_nop 6
    ds_write_b128 v6, v[8:11] offset:{L_O}
    ds_write_b128 v6, v[12:15] offset:{L_O + 1024}
    s_cbranch_scc1 LNW
    s_waitcnt lgkmcnt(0)
    s_barrier
    ds_read_b32 v18, v125 offset:{L_SM}
    """)
    regs = [16, 20, 22, 24, 26, 28, 30, 32]
    for w in range(8): g(f'ds_read2st64_b32 {v2(regs[w])}, v7 offset0:{8 * w} offset1:{8 * w + 4}')
    lgkm(8)
    g('v_rcp_f32 v34, v18\nv_log_f32 v18, v18')
    for a, b, wt in ((0, 1, 6), (2, 3, 4), (0, 2, None), (4, 5, 2), (0, 4, None), (6, 7, 0), (0, 6, None)):
        if wt is not None: lgkm(wt)
        g(f'v_pk_add_f32 {v2(regs[a])}, {v2(regs[a])}, {v2(regs[b])}')
        if wt == 6: g('v_add_f32 v18, v18, v4')
    g('v_pk_mul_f32 v[16:17], v[16:17], v[34:35] op_sel_hi:[1,0]')
    g.store_masked(f'global_store_dwordx4 v5, v[16:19], {p(sWS)}', sML, -1)
    WO = [int(x) for x in opt.get('wo', '16.0.16').split('.')]
    assert sum(WO) == 32
    if WO[1]: g('s_barrier')
    g.stamp(7)
    ld = f'global_load_dwordx4 v[8:11], v126, {p(sWS)} sc1'
    g(ld)
    fp24_consts(sT + 8)
    g(f's_lshl_b32 s{sT}, s{sJ}, 7')
    base(sT + 1, 2048, H4, sT)
    g(f"""
    v_and_b32 v2, 7, v1
    v_lshlrev_b32 v2, 4, v2
    v_lshrrev_b32 v3, 3, v1
    v_mul_u32_u24 v3, {H4_REP}, v3
    v_add3_u32 v3, v3, v2, s{sT+1}
    v_mov_b32 v27, s{sTAG}
    """)

    def cmid():
        for i in range(2):
            g.dpp('v_max_f32', 12, 10 if i == 0 else 12, 10 if i == 0 else 12, ROT[i])
            g('s_nop 1' if i == 0 else 's_nop 0')
    g.poll(lambda: g(ld), [11], None, issued=True, mid=cmid, mask=1)
    g.stamp(9)
    g.dpp('v_max_f32', 12, 12, 12, ROT[2])
    g('s_nop 1')
    g.dpp('v_max_f32', 12, 12, 12, ROT[3])
    g('v_sub_f32 v10, v10, v12\nv_exp_f32 v10, v10\ns_nop 0\nv_pk_mul_f32 v[8:9], v[8:9], v[10:11] op_sel_hi:[1,0]')
    for i, s_ in enumerate(ROT):
        g.dpp('v_add_f32', 10, 10, 10, s_)
        if i == 0: g('s_nop 0')
        if i == 3: g('v_rcp_f32 v10, v10')
        g.dpp('v_add_f32', 8, 8, 8, s_)
        g.dpp('v_add_f32', 9, 9, 9, s_)
    g('v_pk_mul_f32 v[8:9], v[8:9], v[10:11] op_sel_hi:[1,0]\nv_cvt_pk_bf16_f32 v38, v8, v9')
    g.store_masked(f'global_store_dwordx2 v127, v[38:39], {p(sWS)}', sML4, p(sM4))
    if WO[2]: g('s_barrier')
    g.stamp(10)
    g(f's_mov_b64 exec, -1\ns_cmp_lg_u32 s{sWAVE}, 4')
    if STAMPS: g(f's_barrier\ns_cbranch_scc1 {"LAe2" if RF else "Lexit"}')
    else: g('s_cbranch_scc1 LAend\ns_barrier')
    for w in range(4): g(f'ds_read_b128 {v4(8 + 4 * w)}, v2 offset:{L_W + 128 * w}')
    lgkm(2)
    g('v_pk_add_f32 v[8:9], v[8:9], v[12:13]\nv_pk_add_f32 v[10:11], v[10:11], v[14:15]')
    lgkm(1)
    g('v_pk_add_f32 v[8:9], v[8:9], v[16:17]\nv_pk_add_f32 v[10:11], v[10:11], v[18:19]')
    lgkm(0)
    g('v_pk_add_f32 v[10:11], v[10:11], v[22:23]\nv_pk_add_f32 v[8:9], v[8:9], v[20:21]')
    fp24_pack(24, 8, sT + 8)
    g(f'global_store_dwordx4 v3, v[24:27], {p(sWS)} sc1')
    g.stamp(12)
    if RF: g('LAe2:\ns_barrier')
    g('LAend:')
    g.end()
    g('PA3:\ns_branch PA5')
    g.flush_tail()
    vW, vWP, vA = 42, 40, 16
    g('.p2align 12\nPA4:\ns_branch LAres')
    g(f"""
    LNW:
    s_lshl2_add_u32 s{sT}, s{sG}, s{sWAVE}
    s_lshl_b32 s{sT}, s{sT}, 17
    s_lshl_b32 s{sT+1}, s{sJ}, 6
    s_add_u32 s{sT}, s{sT}, s{sT+1}
    s_addk_i32 s{sT}, 4096
    v_and_b32 v4, 15, v1
    v_lshrrev_b32 v5, 4, v1
    v_lshlrev_b32 v3, 10, v5
    v_lshl_add_u32 v3, v4, 2, v3
    v_add_u32 v3, s{sT}, v3
    s_movk_i32 s{sT+2}, 0x2000
    """)

    def wo_issue(a=0, b=32):
        for n in range(a, b):
            g(f'global_load_dword v{vW + n}, v3, {p(sWP)} offset:{-4096 if n % 2 == 0 else 0} {NTO}')
            if n % 2 == 1 and n != 31: g(f'v_add_u32 v3, s{sT+2}, v3')
    wo_issue(0, WO[0])
    g('s_waitcnt lgkmcnt(0)\ns_barrier')
    g(f"""
    v_lshrrev_b32 v2, 4, v0
    v_mul_u32_u24 v2, {H3A_S}, v2
    v_lshl_add_u32 v2, v4, 3, v2
    s_add_u32 s{sT}, s{sT+6}, 4096
    v_add_u32 v2, s{sT}, v2
    v_lshrrev_b32 v5, 5, v1
    v_lshl_add_u32 v6, v4, 1, v5
    s_and_b32 s{sT}, s{sG}, 4
    s_lshr_b32 s{sT}, s{sT}, 1
    v_xor_b32 v6, s{sT}, v6
    s_lshl_b32 s{sT}, s{sWAVE}, 7
    v_lshl_add_u32 v6, v6, 2, s{sT}
    """)
    wl = f'global_load_dwordx2 v[8:9], v2, {p(sWS)} sc1'
    for i in range(4): g(f'v_mov_b32 v{vA+i}, 0')
    def wo_pair(a, b, extra):
        ks = list(range(a // 2, b // 2))
        while ks:
            n = 4 if len(ks) > 4 else 2
            g(f's_waitcnt vmcnt({b - 2 * ks[:n][-1] - 2 + extra})')
            for k in ks[:n]: g.pair(vWP + 2 * k, vW + 2 * k, vW + 2 * k + 1, 1)
            ks = ks[n:]
    if WO[1]:
        g('s_barrier')
        wo_issue(WO[0], WO[0] + WO[1])
    wo_pair(0, WO[0] + WO[1], 0)
    if WO[2]:
        g('s_barrier')
        wo_issue(32 - WO[2], 32)
        g(wl)
        wo_pair(32 - WO[2], 32, 1)
    g.stamp(8)

    def dots(ks):
        for k in ks:
            for c in range(2): g.dpp('v_dot2c_f32_bf16', vA + 2 * (k & 1) + c, 8, vWP + 2 * k + c, f'row_newbcast:{k}')

    g.poll(lambda: g(wl), [9], None, mask=1, pre=lambda: [g(f'v_mov_b32 v{vA+i}, 0') for i in range(4)], issued=WO[2] > 0, mid=lambda: dots(range(2)), pad='PA5:\ns_branch LAres')
    g.stamp(11)
    dots(range(2, 16))
    g(f"""
    s_nop 2
    v_pk_add_f32 {v2(vA)}, {v2(vA)}, {v2(vA+2)}
    s_nop 1
    v_permlane32_swap_b32 v{vA}, v{vA+1}
    v_pk_add_f32 {v2(vA)}, {v2(vA)}, {v2(vA)} op_sel:[0,1] op_sel_hi:[0,1]
    s_nop 1
    v_permlane16_swap_b32 v{vA}, v{vA+1}
    v_add_f32 v{vA}, v{vA}, v{vA+1}
    ds_write_b32 v6, v{vA} offset:{L_W}
    s_waitcnt lgkmcnt(0)
    s_barrier
    """)
    g.stamp(10)
    if RF:
        g(f's_lshl2_add_u32 s{sT+2}, s{sJ}, s{sWAVE}\ns_lshl_b32 s{sT}, s{sT+2}, 8')
        base(sT + 1, H4_REP, H4 + 12, sT)
        g(f'v_lshl_add_u32 v2, v4, 4, s{sT+1}\ns_lshl_b32 s{sT}, s{sT+2}, 7')
        base(sT + 1, MOD_REP, MOD + 4096 + 4, sT)
        g(f'v_lshl_add_u32 v3, v4, 3, s{sT+1}\nv_cmp_lt_u32 vcc, 31, v1\ns_min_u32 s{sT}, s{sT}, {55 * 128}')
        base(sT + 1, H5_REP, H5 + 12, sT)
        g(f'v_cndmask_b32 v2, v2, v3, vcc\nv_and_b32 v3, 7, v1\nv_lshl_add_u32 v3, v3, 4, s{sT+1}\ns_barrier')
        if RF & 1: g.poll(lambda: g(f'global_load_dword v8, v2, {p(sWS)} sc1'), [8], None, mask=1)
        if RF & 2: g.poll(lambda: g(f'global_load_dword v8, v3, {p(sWS)} sc1'), [8], None)
    g.end()
    vW, vWP, vA, sST = 10, 8, 76, sT + 8
    g.pad('PQ5', 'Lexit1')
    g('Lload64:')
    LAG = int(opt.get('lag', 40))
    for i in range(4): g(f'v_mov_b32 v{vA+i}, 0')
    for n in range(64):
        g(f'global_load_dword v{vW + n}, v[4:5], off {opt.get("nt64", NT)}')
        if n != 63: g(f'v_lshl_add_u64 v[4:5], {p(sST)}, 0, v[4:5]')
        if n == 38: g.pad('PQ1', 'Lexit1')
        if n == 31: g(f's_swappc_b64 {p(sRET)}, {p(sRET)}')
        if n >= LAG + 7 and n % 8 == 7 and n != 63:
            g(f's_waitcnt vmcnt({LAG})')
            for k in range((n - LAG - 7) // 2, (n - LAG - 7) // 2 + 4): g.pair(vWP + 2 * k, vW + 2 * k, vW + 2 * k + 1, 1)
    g(f's_setpc_b64 {p(sRET)}')

    def pair_tail(extra):
        for ks in [range(k, k + 4) for k in range(28 - LAG // 2, 28, 4)] + [range(28, 30), range(30, 32)]:
            g(f's_waitcnt vmcnt({min(63, 62 - 2 * ks[-1] + extra)})')
            for k in ks: g.pair(8 + 2 * k, 10 + 2 * k, 11 + 2 * k, 1)

    def f_setup():
        consts()
        g(f's_and_b32 s{sJ}, s{sJ}, 7\ns_lshl3_add_u32 s{sPM}, s{sG}, s{sJ}\ns_lshl_b32 s{sW8}, s{sWAVE}, 3')
    g('.p2align 12\nLM:')
    if DIAG == 0: g('s_waitcnt lgkmcnt(0)\ns_branch Lexit')
    f_setup()
    vW, vA, vT, vS = 8, 40, 48, 80
    vLW, vLR, vPA = 81, 82, 83
    g(f"""
    v_lshrrev_b32 v4, 1, v0
    v_and_b32 v5, 1, v0
    v_mul_u32_u24 v4, {4*6144}, v4
    v_lshl_add_u32 v4, v5, 4, v4
    s_lshl_b32 s{sT}, s{sPM}, 5
    s_addk_i32 s{sT}, 3072
    v_add_u32 v4, s{sT}, v4
    v_add_u32 v3, 12288, v4
    v_lshlrev_b32 v6, 2, v0
    s_lshl_b32 s{sT}, s{sJ}, 6
    v_lshrrev_b32 v120, 2, v0
    v_add_u32 v120, s{sT}, v120
    v_bfe_u32 v122, v0, 1, 1
    v_mad_u32_u24 v120, v120, 48, v122
    s_lshl_b32 s{sT}, s{sG}, 1
    v_add_lshl_u32 v120, v120, s{sT}, 7
    s_waitcnt lgkmcnt(0)
    """)
    g.stamp(1)
    if int(opt.get('mpf', 0)): g(f'global_load_dword v121, v120, {p(sWM)} {NT}')
    g(f"""
    global_load_dword v6, v6, {p(sC)}
    global_load_dwordx4 {v4(vW)}, v4, {p(sWM)} offset:-3072 {NT}
    global_load_dwordx4 {v4(vW+4)}, v4, {p(sWM)} offset:3072 {NT}
    global_load_dwordx4 {v4(vW+8)}, v3, {p(sWM)} offset:-3072 {NT}
    global_load_dwordx4 {v4(vW+12)}, v3, {p(sWM)} offset:3072 {NT}
    s_load_dword s{sTAG}, {p(sWS)}, 0
    """)
    for i in range(8): g(f'v_mov_b32 v{vA+i}, 0')
    g(f"""
    v_lshrrev_b32 v{vT}, 4, v1
    v_lshl_add_u32 v{vT}, v{vT}, 1, v5
    v_lshl_add_u32 v{vLW}, v{vT}, 5, s{sW8}
    v_and_b32 v{vT}, 3, v1
    v_bfe_u32 v{vT+1}, v1, 2, 1
    v_lshl_add_u32 v{vT}, v{vT}, 1, v{vT+1}
    v_lshlrev_b32 v{vLR}, 5, v{vT}
    v_and_b32 v{vT}, 7, v1
    v_lshrrev_b32 v{vT+1}, 3, v1
    v_mul_u32_u24 v{vT+1}, {MOD_REP}, v{vT+1}
    v_lshl_add_u32 v{vPA}, v{vT}, 3, v{vT+1}
    s_lshl_b32 s{sT}, s{sPM}, 6
    s_add_u32 s{sT}, s{sT}, {MOD}
    v_add_u32 v{vPA}, s{sT}, v{vPA}
    s_waitcnt vmcnt(4)
    """)
    g.unpack(vT, 6)
    g.silu2(vT, vT + 2)
    g(f'v_cvt_pk_bf16_f32 v{vS}, v{vT}, v{vT+1}')
    g('s_waitcnt lgkmcnt(0)')
    mk_tag()
    g(f'v_mov_b32 v85, s{sTAG}')
    for k in range(2):
        g(f's_waitcnt vmcnt({2 - 2 * k})')
        if k: g.stamp(2)
        g.pair(vT + 8 * k, vW + 8 * k, vW + 8 * k + 4, 4)
        for c in range(8): g.dpp('v_dot2c_f32_bf16', vA + c, vS, vT + 8 * k + c, f'quad_perm:[{k},{k},{k+2},{k+2}]')
    g.red8(vA, 2)

    def fin_pairs(lds, nw):
        l = g.lab('nm')
        g(f"""
        ds_write_b64 v{vLW}, {v2(vA)} offset:{lds}
        s_waitcnt lgkmcnt(0)
        s_barrier
        s_cmp_ge_u32 s{sWAVE}, {nw}
        s_cbranch_scc1 {l}
        ds_read_b128 {v4(vT)}, v{vLR} offset:{lds}
        ds_read_b128 {v4(vT+4)}, v{vLR} offset:{lds+16}
        s_waitcnt lgkmcnt(0)
        """)
        g.sum4(vT)
        g(f"""
        v_cvt_pk_bf16_f32 v84, v{vT}, v{vT+1}
        global_store_dwordx2 v{vPA}, v[84:85], {p(sWS)} sc1
        {l}:
        s_barrier
        """)
    fin_pairs(L_MP, 1)
    g.stamp(3)
    if 0 <= DIAG <= 2: g.end()
    stream(SM1 + '.R')
    g.pad('PM1', 'Lexit1')
    g(f"""
    v_lshrrev_b32 v4, 2, v0
    v_and_b32 v5, 3, v0
    v_mul_u32_u24 v4, {8*6144}, v4
    v_lshl_add_u32 v4, v5, 4, v4
    s_lshl_b32 s{sT}, s{sPM}, 6
    s_addk_i32 s{sT}, {2048 + 3072}
    v_add_u32 v4, s{sT}, v4
    s_movk_i32 s{sT}, 12288
    """)
    for k in range(4):
        g(f'global_load_dwordx4 {v4(vW+8*k)}, v4, {p(sWM)} offset:-3072 {NT}\nglobal_load_dwordx4 {v4(vW+8*k+4)}, v4, {p(sWM)} offset:3072 {NT}')
        if k != 3: g(f'v_add_u32 v4, s{sT}, v4')
    SMB = [x for x in opt.get('smb', 'G1').split('.') if x]
    if SMB:
        g('s_barrier')
        stream('.'.join(SMB), True)
    for i in range(8): g(f'v_mov_b32 v{vA+i}, 0')
    g(f"""
    v_lshrrev_b32 v{vT}, 4, v1
    v_lshl_add_u32 v{vT}, v{vT}, 2, v5
    v_lshl_add_u32 v{vLW}, v{vT}, 5, s{sW8}
    v_bfe_u32 v{vT}, v1, 2, 2
    v_lshl_add_u32 v{vT}, v5, 2, v{vT}
    v_lshlrev_b32 v{vLR}, 5, v{vT}
    v_and_b32 v{vT}, 15, v1
    v_bfe_u32 v{vT+1}, v0, 4, 3
    v_mul_u32_u24 v{vT+1}, {MOD_REP}, v{vT+1}
    v_lshl_add_u32 v{vPA}, v{vT}, 3, v{vT+1}
    s_lshl_b32 s{sT}, s{sPM}, 7
    s_add_u32 s{sT}, s{sT}, {MOD + 4096}
    v_add_u32 v{vPA}, s{sT}, v{vPA}
    """)
    for k in range(4):
        g(f's_waitcnt vmcnt({6 - 2 * k + len(SMB)})')
        if k == 3: g.stamp(4)
        g.pair(vT + 8 * k, vW + 8 * k, vW + 8 * k + 4, 4)
        for c in range(8): g.dpp('v_dot2c_f32_bf16', vA + c, vS, vT + 8 * k + c, f'quad_perm:[{k},{k},{k},{k}]')
    g.red8(vA, 4)
    g.pad('PM2', 'Lexit1')
    fin_pairs(L_RP, 2)
    g.stamp(5)
    stream(SM2)
    if DIAG >= 0: g.end()
    vW, vWP, vA, vT = 16, 48, 80, 88
    l = g.lab('d1')
    g(f"""
    s_xor_b32 s{sT}, s{sPM}, {DX * 8}
    s_lshl_b32 s{sT}, s{sT}, 4
    v_lshl_add_u32 v4, v0, 12, s{sT}
    v_add_u32 v5, 0x100000, v4
    """)
    for i in range(16): g(f'v_mov_b32 v{vW+16+i}, 0')
    g('s_barrier')
    g.stamp(6)
    for n in range(4): g(f'global_load_dwordx4 {v4(vW + 4 * n)}, v4, {p(sDOWN)} offset:{1024 * n} {opt.get("ntdr", NTD)}')
    base(sT, H5_REP, H5)
    g(f'v_lshl_add_u32 v2, v0, 4, s{sT}\nv_mov_b32 v3, v2\ns_cmp_eq_u32 s{sWAVE}, 3\ns_cbranch_scc1 {l}')
    for n in range(4): g(f'global_load_dwordx4 {v4(vW + 16 + 4 * n)}, v5, {p(sDOWN)} offset:{1024 * n} {opt.get("ntdr", NTD)}')
    g(f'v_add_u32 v3, 4096, v2\n{l}:\nv_lshrrev_b32 v6, 4, v1\nv_lshl_add_u32 v6, v6, 5, s{sW8}')
    g.pad('PM3', 'Lexit1')
    h5 = lambda: g(f'global_load_dwordx4 {v4(vT)}, v2, {p(sWS)} sc1\nglobal_load_dwordx4 {v4(vT+4)}, v3, {p(sWS)} sc1')
    DB = int(opt.get('db', 1))
    if DB: g('s_barrier')
    h5()
    g('s_waitcnt vmcnt(2)')
    for k in range(4): g.pair(vWP + 8 * k, vW + 8 * k, vW + 8 * k + 4, 4)
    g.stamp(8)
    g.poll(h5, [vT + 3, vT + 7], vT + 8, mask=1, issued=True, mid=lambda: [g(f'v_dot2_f32_bf16 v{vA+c}, v{vT}, v{vWP+c}, 0') for c in range(8)])
    g.stamp(9)
    for k in range(1, 4):
        for c in range(8): g(f'v_dot2_f32_bf16 v{vA+c}, v{vT+(k&1)+4*(k>>1)}, v{vWP+8*k+c}, v{vA+c}')
    g.red8(vA, 1)
    g(f'ds_write_b64 v6, {v2(vA)} offset:{L_D}\ns_waitcnt lgkmcnt(0)\ns_barrier')
    g.stamp(10)
    g.end()
    if DIAG >= 0: g('LFH:\ns_endpgm')
    g(f'LFH{"x" if DIAG >= 0 else ""}:\ns_mov_b64 exec, -1\ns_waitcnt lgkmcnt(0)\ns_load_dword s{sTAG}, {p(sWS)}, 0')
    f_setup()
    g(f"""
    s_xor_b32 s{sPM}, s{sPM}, {DX * 8}
    v_bfe_u32 v2, v1, 3, 1
    v_bfe_u32 v3, v1, 4, 1
    v_lshl_add_u32 v5, v2, 1, v3
    v_lshlrev_b32 v6, 5, v5
    v_lshl_add_u32 v5, s{sPM}, 2, v5
    v_lshlrev_b32 v7, 2, v5
    v_bfe_u32 v4, v1, 2, 1
    v_cmp_ne_u32 {p(sT+4)}, v4, v3
    """)
    base(sT, MOD_REP, MOD + 4096 + 3072)
    g(f'v_lshl_add_u32 v3, v5, 3, s{sT}')
    base(sT, H4_REP, H4)
    g(f"""
    v_lshl_add_u32 v2, s{sPM}, 1, v2
    v_lshl_add_u32 v2, v2, 4, s{sT}
    v_and_b32 v4, 7, v1
    v_lshl_add_u32 v4, v4, 11, v2
    s_waitcnt lgkmcnt(0)
    """)
    mk_tag()
    fp24_consts(sT + 8)
    g('s_barrier\n' * ((6 if SMB else 5) + DB))
    g(f'global_load_dword v8, v7, {p(sX)}')
    g.poll(lambda: g(f"""
        global_load_dwordx2 v[10:11], v3, {p(sWS)} offset:-3072 sc1
        global_load_dwordx2 v[12:13], v3, {p(sWS)} offset:3072 sc1
        global_load_dwordx4 v[16:19], v4, {p(sWS)} sc1"""), [11, 13, 19], 14)
    g.stamp(8)
    for r in (8, 10, 12): g.unpack(r, r)
    fp24_unpack(16, sT + 8)
    g(f'v_cndmask_b32 v14, v16, v18, {p(sT+4)}\nv_cndmask_b32 v15, v17, v19, {p(sT+4)}')
    for s in ('quad_perm:[1,0,3,2]', 'quad_perm:[2,3,0,1]', 'row_half_mirror'):
        g('s_nop 0')
        g.dpp('v_add_f32', 14, 14, 14, s)
        g.dpp('v_add_f32', 15, 15, 15, s)
    g.rb2(14)
    g('v_pk_mul_f32 v[14:15], v[14:15], v[10:11]')
    g.rb2(14)
    g('v_pk_add_f32 v[14:15], v[14:15], v[8:9]')
    g.rb2(14)
    g(f"""
    s_mov_b64 exec, 0x01010101
    s_barrier
    ds_read_b128 v[16:19], v6 offset:{L_D}
    ds_read_b128 v[20:23], v6 offset:{L_D+16}
    s_waitcnt lgkmcnt(0)
    """)
    g.sum4(16)
    g('v_pk_fma_f32 v[16:17], v[16:17], v[12:13], v[14:15]')
    if opt.get('perturb'):
        import struct
        kind, val = opt['perturb'].split(':')
        u = struct.unpack('<I', struct.pack('<f', float(val)))[0]
        if kind == 'one':
            g(f'v_cmp_eq_u32 vcc, 4, v7\nv_add_f32 v18, {u:#x}, v16\ns_nop 0\nv_cndmask_b32 v16, v16, v18, vcc')
        elif kind == 'all':
            g(f'v_add_f32 v16, {u:#x}, v16\nv_subrev_f32 v17, {u:#x}, v17')
        else:
            g(f'v_mul_f32 v16, {u:#x}, v16\nv_mul_f32 v17, {u:#x}, v17')
    g(f"""
    v_cvt_pk_bf16_f32 v16, v16, v17
    global_store_dword v7, v16, {p(sOUT)}
    """)
    g.stamp(10)
    g(f"""
    s_cmp_lg_u32 s{sPM}, 0
    s_cbranch_scc1 Ldend
    v_mov_b32 v2, 0
    v_mov_b32 v3, s{sTAG}
    global_store_dword v2, v3, {p(sWS)} sc1
    Ldend:
    """)
    g.end()
    vW, vWP, vA, vT = 10, 8, 76, 84
    vLW, vLR, vPA, vSS = 80, 81, 82, 83
    vX, vGA, vSB, vCB, vY = 104, 106, 108, 110, 112
    sST = sT + 8
    g('.p2align 12\nLQ:')
    if 0 <= DIAG <= 1: g('s_waitcnt lgkmcnt(0)\ns_branch Lexit')
    f_setup()
    l = g.lab('qp')
    g(f"""
    s_mov_b32 s{sROLE}, 0
    v_and_b32 v7, 7, v0
    v_bfe_u32 v{vT+1}, v0, 3, 1
    v_lshl_add_u32 v{vT}, v7, 1, v{vT+1}
    v_and_or_b32 v3, v0, -16, v{vT}
    v_lshlrev_b32 v116, 2, v3
    v_lshlrev_b32 v2, 4, v1
    v_lshrrev_b32 v4, 5, v0
    v_and_b32 v6, 31, v0
    v_lshlrev_b32 v4, 19, v4
    v_lshl_add_u32 v4, v6, 2, v4
    s_lshl_b32 s{sT}, s{sPM}, 7
    v_add_u32 v4, s{sT}, v4
    v_mov_b32 v5, 0
    s_movk_i32 s{sST}, 0x2000
    s_mov_b32 s{sST+1}, 0
    v_lshrrev_b32 v120, 3, v0
    v_lshl_add_u32 v120, v120, 6, v7
    s_lshl_b32 s{sT}, s{sJ}, 12
    s_lshl3_add_u32 s{sT}, s{sG}, s{sT}
    v_add_lshl_u32 v120, v120, s{sT}, 7
    s_cmp_ge_u32 s{sWAVE}, {int(opt.get('qpf', 4))}
    s_waitcnt lgkmcnt(0)
    """)
    g.stamp(1)
    g(f'global_load_dword v{vY}, v116, {p(sX)}\nglobal_load_dwordx4 {v4(vX)}, v2, {p(sX)}')
    if int(opt.get('qpf', 4)):
        g(f's_cbranch_scc1 {l}\nglobal_load_dword v121, v120, {p(sWQ)} {NT}\n{l}:')
    g(f"""
    v_lshl_add_u64 v[4:5], {p(sWQ)}, 0, v[4:5]
    {'s_waitcnt lgkmcnt(0)' if STAMPS else ''}
    s_call_b64 {p(sRET)}, Lload64
    s_load_dword s{sTAG}, {p(sWS)}, 0
    """)
    QX = 0
    xcc_addr()
    g(f's_lshl_b32 s{sT}, s{sJ}, {7 if VA == 3 else 8}')
    base(sT + 1, H2_G, H2, sT)
    g(f'v_lshl_add_u32 v{vPA}, v6, {2 if VA == 3 else 3}, s{sT+1}')
    if VA == 3:
        g(f's_lshr_b32 s{sT}, s{sJ}, 1\ns_lshl_b32 s{sT}, s{sT}, 11\ns_and_b32 s{sT+1}, s{sJ}, 1\ns_lshl2_add_u32 s{sT}, s{sT+1}, s{sT}')
        base(sT + 1, H2_G, H2 + 1024, sT)
        g(f'v_lshl_add_u32 v117, v6, 6, s{sT+1}')
    base(sT, MOD_REP, MOD)
    g(f'v_lshl_add_u32 v2, v3, 3, s{sT}')
    H1F = opt.get('h1f', 'sc1').replace('_', ' ')
    h1 = lambda: g(f'global_load_dwordx2 {v2(vSB)}, v2, {p(sWS)} {H1F}\nglobal_load_dwordx2 {v2(vCB)}, v2, {p(sWS)} offset:2048 {H1F}' + (XLD if not opt.get('noxld') else f'\nglobal_load_dword v127, v2, {p(sWS)} {H1F}'))
    g(f"""
    v_lshrrev_b32 v{vT+2}, 5, v1
    s_lshl_b32 s{sT}, s{sWAVE}, 8
    s_addk_i32 s{sT}, {L_QP}
    v_lshl_add_u32 v{vLW}, v6, 1, v{vT+2}
    v_lshl_add_u32 v{vLW}, v{vLW}, 2, s{sT}
    v_lshlrev_b32 v{vLR}, 3, v6
    v_add_u32 v{vLR}, {L_QP}, v{vLR}
    v_mov_b32 v7, 0
    v_mov_b32 v{vT}, 0
    v_mov_b32 v{vT+1}, 0
    s_mov_b32 s{sT}, 0x3f803f80
    s_waitcnt vmcnt({33 if int(opt.get('qpf', 4)) == 4 else 32})
    """)
    for i in range(4): g(f'v_dot2c_f32_bf16 v{vT}, s{sT}, v{vX+i}\nv_dot2c_f32_bf16 v{vT+1}, v{vX+i}, v{vX+i}')
    g.unpack(vY, vY)
    g(f's_nop 0\nv_permlane32_swap_b32 v{vT}, v{vT+1}\nv_add_f32 v{vT}, v{vT}, v{vT+1}')
    for s_ in ROT:
        g('s_nop 1')
        g.dpp('v_add_f32', vT, vT, vT, s_)
    g(f"""
    s_nop 1
    v_add_f32_dpp v{vT}, v{vT}, v{vT} row_bcast:15 row_mask:0xa bank_mask:0xf
    s_nop 0
    v_readlane_b32 s{sT}, v{vT}, 31
    v_readlane_b32 s{sT+1}, v{vT}, 63
    s_nop 0
    v_mov_b32 v{vT}, s{sT}
    v_mov_b32 v{vT+1}, s{sT+1}
    """)
    g.stats_fin(vT)
    g.ln_apply(vY, vT)
    g('s_waitcnt lgkmcnt(0)')
    mk_tag()
    g(f'v_mov_b32 v115, s{sTAG}\ns_swappc_b64 {p(sRET)}, {p(sRET)}')
    g.stamp(2)
    h1()
    pair_tail(3)
    g.stamp(4)
    if QX == 2: g.end()
    g.poll(h1, [vSB + 1, vCB + 1], vT, issued=True, mask=int(opt.get('h1m', 1)), pad='PQ2:\ns_branch PQ3')
    g.stamp(5)
    if QX == 3: g.end()
    g.unpack(vCB, vCB)
    g(f'v_add_f32 v{vCB}, 1.0, v{vCB}\nv_add_f32 v{vCB+1}, 1.0, v{vCB+1}')
    xcc_test()
    g.rb2(vCB)
    g(f'v_pk_mul_f32 {v2(vY)}, {v2(vY)}, {v2(vCB)}')
    g.rb2(vY)
    g.unpack(vSB, vSB)
    g(f'v_pk_add_f32 {v2(vT)}, {v2(vY)}, {v2(vSB)}\ns_branch Lgemv')
    l = g.lab('nq')
    g(f"""
    LQ2:
    s_mov_b32 exec_hi, 0
    s_waitcnt lgkmcnt(0)
    """)
    g.sum4(vT)
    g(f'v_cvt_pk_bf16_f32 v114, v{vT}, v{vT+1}')
    if VA == 3:
        g.store_local([f'global_store_dword v{vPA}, v114, {p(sWS)}'])
        g('s_waitcnt vmcnt(0)')
        g.store_local([f'global_store_dword v117, v115, {p(sWS)}'])
    else:
        g.store_local([f'global_store_dwordx2 v{vPA}, v[114:115], {p(sWS)}'])
    g(f's_mov_b64 exec, -1\nLQ3:\ns_barrier')
    g.stamp(6)
    stream(SQ)
    if DIAG >= 0: g.end()
    g(f's_cmp_eq_u32 s{sG}, 7\ns_cbranch_scc1 Lexit\ns_mov_b32 s{sROLE}, 2\nv_add_u32 v2, {4096 + 2048}, v2')
    base(sT, H4_REP, H4 + 4096)
    g(f"""
    v_lshrrev_b32 v{vT}, 1, v3
    v_and_b32 v{vT+1}, 1, v3
    v_lshl_add_u32 v{vT}, v{vT}, 4, s{sT}
    v_lshl_add_u32 v3, v{vT+1}, 13, v{vT}
    v_lshrrev_b32 v{vT}, 5, v0
    v_mul_u32_u24 v{vT}, {64*3584}, v{vT}
    v_and_b32 v{vT+6}, 15, v1
    v_lshl_add_u32 v{vT}, v{vT+6}, 2, v{vT}
    s_lshl_b32 s{sT}, s{sPM}, 6
    v_add_u32 v{vT}, s{sT}, v{vT}
    v_mov_b32 v{vT+2}, s{sGATE}
    v_mov_b32 v{vT+3}, s{sGATE+1}
    v_mov_b32 v{vT+4}, s{sUP}
    v_mov_b32 v{vT+5}, s{sUP+1}
    v_cmp_lt_u32 vcc, 15, v6
    v_mov_b32 v{vT+1}, 0
    s_movk_i32 s{sST}, 3584
    v_cndmask_b32 v4, v{vT+2}, v{vT+4}, vcc
    v_cndmask_b32 v5, v{vT+3}, v{vT+5}, vcc
    v_lshl_add_u64 v[4:5], {v2(vT)}, 0, v[4:5]
    """)
    g(f"""
    v_lshrrev_b32 v{vT}, 5, v1
    v_bfe_u32 v{vT+1}, v1, 4, 1
    v_lshl_add_u32 v{vT}, v{vT}, 1, v{vT+1}
    v_lshl_add_u32 v{vT}, v{vT+6}, 2, v{vT}
    s_lshl_b32 s{sT}, s{sWAVE}, 8
    s_addk_i32 s{sT}, {L_GP}
    v_lshl_add_u32 v{vLW}, v{vT}, 2, s{sT}
    v_bfe_u32 v{vLR}, v116, 2, 4
    v_lshl_add_u32 v{vLR}, v{vLR}, 1, v{vT+1}
    v_lshlrev_b32 v{vLR}, 3, v{vLR}
    v_add_u32 v{vLR}, {L_GP}, v{vLR}
    v_lshrrev_b32 v{vT}, 3, v1
    v_mul_u32_u24 v{vT}, {H5_REP}, v{vT}
    v_and_b32 v{vT+1}, 7, v1
    v_lshl_add_u32 v{vPA}, v{vT+1}, 4, v{vT}
    v_lshrrev_b32 v{vT}, 5, v1
    v_lshl_add_u32 v83, v{vT}, 2, s{sW8}
    s_mov_b32 s{sT+2}, 0x80000000
    s_mov_b32 s{sT+3}, 0x80000000
    s_mov_b32 s{sT+4}, {INV512:#x}
    s_mov_b32 s{sT+5}, {INV512:#x}
    v_mov_b32 v118, 0
    v_mov_b32 v119, {EPS:#x}
    s_lshl_b32 s{sT}, s{sPM}, 7
    s_add_u32 s{sT}, s{sT}, {H5}
    v_add_u32 v{vPA}, s{sT}, v{vPA}
    """)
    fp24_consts(sT + 12)
    g('s_barrier')
    g.stamp(8)

    hr = lambda: g(f"""
        global_load_dwordx2 {v2(vGA)}, v2, {p(sWS)} offset:-2048 sc1
        global_load_dwordx2 {v2(vSB)}, v2, {p(sWS)} sc1
        global_load_dwordx2 {v2(vCB)}, v2, {p(sWS)} offset:2048 sc1""")

    def h4loads():
        for i in range(4):
            g(f'global_load_dwordx4 {v4(vT + 4 * i)}, v3, {p(sWS)} offset:{i * 2048 - 4096} sc1')
    g(f's_branch LG2\nPQ3:\ns_endpgm\nLG2:\nglobal_load_dword v{vX}, v116, {p(sX)}\ns_call_b64 {p(sRET)}, Lload64\ns_swappc_b64 {p(sRET)}, {p(sRET)}')
    hr()
    h4loads()
    pair_tail(7)
    g.stamp(9)
    g.poll(hr, [vGA + 1, vSB + 1, vCB + 1], vT + 16, issued=True, first=4)
    g.stamp(7)
    for r in (vX, vGA, vSB, vCB): g.unpack(r, r)
    g(f'v_add_f32 v{vCB}, 1.0, v{vCB}\nv_add_f32 v{vCB+1}, 1.0, v{vCB+1}')
    g.rb2(vCB)
    g.poll(h4loads, [vT + 4 * i + 3 for i in range(4)], vT + 16, issued=True, mid=lambda: [fp24_unpack(vT + 4 * i, sT + 12) for i in range(2)], mask=2)
    g.stamp(11)
    for i in range(2, 4): fp24_unpack(vT + 4 * i, sT + 12)
    for a, b in ((2, 6), (10, 14), (0, 4), (2, 10), (8, 12)):
        g(f'v_pk_add_f32 {v2(vT+a)}, {v2(vT+a)}, {v2(vT+b)}')
    g(f'v_pk_fma_f32 {v2(vX)}, {v2(vT+8)}, {v2(vGA)}, {v2(vX)}')
    g.dpp('v_add_f32', vY, vT + 2, vT, 'row_ror:8')
    g.dpp('v_add_f32', vY + 1, vT + 3, vT + 1, 'row_ror:8')
    g(f'v_pk_fma_f32 {v2(vY)}, {v2(vY)}, {v2(vGA)}, {v2(vX)}')
    g.stats_wave(vY, vT)
    g(f"""
    s_nop 1
    v_add_f32_dpp v{vT}, v{vT}, v{vT} row_bcast:15 row_mask:0xa bank_mask:0xf
    s_mov_b64 exec, {p(sT+2)}
    ds_write_b32 v{vSS}, v{vT} offset:{L_GS}
    s_mov_b64 exec, -1
    s_branch Lpq4
    PQ4:
    s_endpgm
    Lpq4:
    s_waitcnt lgkmcnt(0)
    s_barrier
    ds_read_b128 {v4(vT)}, v7 offset:{L_GS}
    ds_read_b128 {v4(vT+4)}, v7 offset:{L_GS+16}
    v_pk_mul_f32 {v2(vY)}, {v2(vY)}, {v2(vCB)}
    s_waitcnt lgkmcnt(0)
    """)
    g.sum4(vT)
    g(f"""
    v_pk_fma_f32 {v2(vT)}, {v2(vT)}, {p(sT+4)}, v[118:119]
    v_fma_f32 v{vT+1}, -v{vT}, v{vT}, v{vT+1}
    v_max_f32 v{vT+1}, v{vT+1}, v119
    v_rsq_f32 v{vT+2}, v{vT+1}
    v_pk_fma_f32 {v2(vY)}, {v2(vCB)}, {v2(vT)}, {v2(vY)} op_sel_hi:[1,0,1] neg_lo:[0,1,0] neg_hi:[0,1,0]
    v_pk_fma_f32 {v2(vT)}, {v2(vY)}, {v2(vT+2)}, {v2(vSB)} op_sel_hi:[1,0,1]
    """)
    g.stamp(12)
    g(f"""
    Lgemv:
    v_cvt_pk_bf16_f32 v{vY}, v{vT}, v{vT+1}
    v_cvt_pk_bf16_f32 v{vY+1}, v{vT}, v{vT+1}
    s_nop 1
    v_permlane16_swap_b32 v{vY}, v{vY+1}
    s_nop 1
    """)
    for k in range(16):
        lam = (k >> 1) + 8 * (k & 1)
        for a in range(4): g.dpp('v_dot2c_f32_bf16', vA + a, vY + (a >> 1), vWP + 32 * (a >> 1) + 2 * k + (a & 1), f'row_newbcast:{lam}')
    g(f"""
    s_nop 2
    v_pk_add_f32 {v2(vA)}, {v2(vA)}, {v2(vA+2)}
    s_nop 1
    v_permlane32_swap_b32 v{vA}, v{vA+1}
    v_add_f32 v{vA}, v{vA}, v{vA+1}
    ds_write_b32 v{vLW}, v{vA}
    s_cmp_lg_u32 s{sWAVE}, 0
    s_cbranch_scc1 LGw
    s_cmp_eq_u32 s{sROLE}, 0
    s_waitcnt lgkmcnt(0)
    s_barrier
    ds_read2_b64 {v4(vT)}, v{vLR} offset0:0 offset1:32
    ds_read2_b64 {v4(vT+4)}, v{vLR} offset0:64 offset1:96
    s_cbranch_scc1 LQ2
    s_waitcnt lgkmcnt(0)
    """)
    g.sum4(vT)
    g(f"""
    v_mul_f32 v{vT+2}, 0xbfb8aa3b, v{vT}
    v_exp_f32 v{vT+2}, v{vT+2}
    v_mul_f32 v{vT}, v{vT}, v{vT+1}
    v_add_f32 v{vT+2}, 1.0, v{vT+2}
    v_rcp_f32 v{vT+1}, v{vT+2}
    s_nop 0
    v_pk_mul_f32 {v2(vT)}, {v2(vT)}, {v2(vT)} op_sel:[0,1] op_sel_hi:[0,1]
    s_nop 1
    v_permlane16_swap_b32 v{vT}, v{vT+1}
    v_cvt_pk_bf16_f32 v112, v{vT}, v{vT+1}
    v_cvt_pk_bf16_f32 v113, v{vT}, v{vT+1}
    s_nop 0
    """)
    g.dpp('v_mov_b32', 112, 112, None, 'row_ror:8', 0xc)
    g.dpp('v_mov_b32', 113, 113, None, 'row_ror:8', 0x3)
    g(f'global_store_dwordx4 v{vPA}, v[112:115], {p(sWS)} sc1')
    g.stamp(13)
    g.end()
    g(f'LGw:\ns_waitcnt lgkmcnt(0)\ns_barrier\ns_cmp_eq_u32 s{sROLE}, 0\ns_cbranch_scc1 LQ3')
    g.end()
    g.flush_tail()
    if opt.get('stamps'):
        g(f"""
        Lexit1:
        s_endpgm
        Lexit:
        Lfin:
        s_memrealtime {p(sSTAMP + 28)}
        s_sleep 127
        s_sleep 127
        s_sleep 127
        s_mov_b32 s{sSTAMP + 30}, s{sLOC}
        s_mov_b64 exec, 1
        s_lshl3_add_u32 s{sT}, s2, s{sWAVE}
        s_lshl_b32 s{sT}, s{sT}, 6
        s_add_u32 s{sT}, s{sT}, {STAMP_OFF}
        v_mov_b32 v2, s{sT}
        s_waitcnt lgkmcnt(0)
        """)
        if opt.get('probe'):
            wg, wv, st, T0, mult = map(int, opt['probe'].split(':'))
            g(f"""
            s_cmp_lg_u32 s2, {wg}
            s_cbranch_scc1 Lexit0
            s_cmp_lg_u32 s{sWAVE}, {wv}
            s_cbranch_scc1 Lexit0
            s_sub_u32 s{sT}, s{sSTAMP + 2 * st}, s{sSTAMP}
            s_mul_i32 s{sT}, s{sT}, {mult}
            s_add_u32 s{sT}, s{sT}, {T0}
            s_min_u32 s{sT}, s{sT}, 100000
            Lpad:
            s_memrealtime {p(sT + 2)}
            s_waitcnt lgkmcnt(0)
            s_sub_u32 s{sT+2}, s{sT+2}, s{sSTAMP}
            s_cmp_lt_u32 s{sT+2}, s{sT}
            s_cbranch_scc1 Lpad
            """)
        else:
            for i in range(16):
                g(f'v_mov_b32 v3, s{sSTAMP + 2 * i}\nglobal_store_dword v2, v3, {p(sWS)} offset:{4 * i}')
    else:
        g('Lexit1:\nLexit:')
    g('Lexit0:\ns_endpgm')
    g(f"""
    .section .rodata,"a"
    .p2align 6
    .amdhsa_kernel {K}
    """)
    for d in ('next_free_vgpr 128', 'next_free_sgpr 102', 'accum_offset 128', 'group_segment_fixed_size 0', 'kernarg_size 112',
              'user_sgpr_count 2', 'user_sgpr_kernarg_segment_ptr 1', 'system_sgpr_workgroup_id_x 1', 'float_denorm_mode_32 3'):
        g.L.append('  .amdhsa_' + d)
    g('.end_amdhsa_kernel')
    return '\n'.join(g.L) + '\n'


if __name__ == '__main__':
    opt = {}
    out = sys.argv[1]
    for a in sys.argv[2:]:
        k, _, v = a.partition('=')
        opt[k] = v if _ else True
    open(out, 'w').write(gen(opt))
```

```python
import sys

NAME = 'adaLN_cond__sliding_block_cached__swiglu_ffn__decode'
K = NAME + '_kernel'

MARK = 0x1f000
MOD = 0x01000
MOD_REP = 0x3100
H2 = 0xd4000
H2_G = 73 * 128
H3A = 0x20000
H3A_S = 2176
H3A_G = 16 * H3A_S
H4 = 0xa4000
H4_REP = 0x4100
H5 = 0xc5000
H5_REP = 0x1d00
H1 = 0xe8000
H1_REP = 0x2100
S4 = 0xfa000
STAMP_OFF = 0x1000000
assert MOD + 8 * MOD_REP <= MARK and H5 + 8 * H5_REP <= H2 and H3A + 8 * H3A_G <= H4 and H4 + 8 * H4_REP <= H5

L_FLAG = 0
L_MX = 16
L_SM = 32
L_LOC = 48
L_Q = 64
L_O = 1536
L_W = L_O + 16384
L_MP = 0
L_RP = 256
L_D = 768
L_XS = 0
L_GS = 64
L_QP = 256
L_GP = 2048
LDS_BYTES = L_W + 512

sX, sK, sV, sWQ, sWO, sGATE, sUP, sDOWN, sC, sWM, sOUT, sDBG, sWS = 4, 6, 8, 10, 12, 16, 18, 20, 22, 24, 26, 28, 30
sWAVE = 3
sTAG, sG, sJ, sTO, sSLO, sSHI, sXCC, sLOC, sPM, sROLE = 32, 33, 34, 35, 36, 37, 38, 39, 40, 41
sT = 42
sRET = 60
sW8 = 62
sSTAMP = 64

LOG2E = 0x3fb8aa3b
SCALE = 0x3db504f3
EPS = 0x3727c5ac
INV512 = 0x3b000000


def p(r): return f's[{r}:{r+1}]'
def v2(r): return f'v[{r}:{r+1}]'
def v4(r): return f'v[{r}:{r+3}]'


class G:
    def __init__(self, opt):
        self.L = []
        self.o = opt
        self.nlab = 0

    def __call__(self, s):
        for line in s.strip('\n').split('\n'):
            line = line.strip()
            if line:
                self.L.append(line if line.endswith(':') or line.startswith('.') else '    ' + line)

    def lab(self, n):
        self.nlab += 1
        return f'L{n}{self.nlab}'

    def stamp(self, i):
        if self.o.get('stamps'):
            self(f's_memrealtime {p(sSTAMP + 2 * i)}')

    def dpp(self, op, d, s0, s1, ctrl, bank=0xf):
        if s1 is None:
            self(f'{op}_dpp v{d}, v{s0} {ctrl} row_mask:0xf bank_mask:{bank:#x}')
        else:
            self(f'{op}_dpp v{d}, v{s0}, v{s1} {ctrl} row_mask:0xf bank_mask:{bank:#x}')

    def poll(self, loads, tags, tmp, issued=False, tag=sTAG, mid=None, pad='', mask=0, pre=None, first=0, fill=''):
        r, l = self.lab('retry'), self.lab('poll')
        if first: self(f's_waitcnt vmcnt({first})')
        TO = f's_sub_u32 s{sTO}, s{sTO}, 1\ns_cbranch_scc1 Lexit'
        self(f's_branch {l}\n{pad}\n{r}:')
        if self.o.get('toe'): self(TO)
        if self.o.get('nomask'): mask = 0
        if pre: pre()
        if mask: self('s_mov_b64 exec, vcc')
        if not issued: self(f'{l}:')
        loads()
        if mask == 1: self('s_mov_b64 exec, -1')
        if not self.o.get('toe'): self(TO)
        self(fill)
        if issued and not first: self(f'{l}:')
        self('s_waitcnt vmcnt(0)')
        if first: self(f'{l}:')
        if len(tags) == 1:
            self(f'v_cmp_ne_u32 vcc, s{tag}, v{tags[0]}')
        else:
            self(f'v_bitop3_b32 v{tmp}, v{tags[0]}, s{sTAG}, v{tags[1]} bitop3:0x7e')
            for t in tags[2:]:
                self(f'v_bitop3_b32 v{tmp}, v{t}, s{sTAG}, v{tmp} bitop3:0xbe')
            self(f'v_cmp_ne_u32 vcc, 0, v{tmp}')
        if mid: mid()
        if mask == 2: self('s_mov_b64 exec, -1')
        self(f's_cbranch_vccnz {r}')

    def pair(self, dst, a, b, W):
        for c in range(2 * W):
            self(f'v_perm_b32 v{dst + c}, v{b + c // 2}, v{a + c // 2}, s{sSHI if c & 1 else sSLO}')

    def red8(self, a, lpr):
        self('s_nop 1')
        for i in range(4): self(f'v_permlane32_swap_b32 v{a+i}, v{a+4+i}')
        for i in (0, 2, 1, 3): self(f'v_add_f32 v{a+i}, v{a+i}, v{a+4+i}')
        self(f'v_permlane16_swap_b32 v{a}, v{a+2}')
        self('s_nop 0')
        self(f'v_permlane16_swap_b32 v{a+1}, v{a+3}')
        self(f'v_add_f32 v{a}, v{a}, v{a+2}\nv_add_f32 v{a+1}, v{a+1}, v{a+3}')
        steps = ['row_ror:8', 'row_ror:4']
        if lpr <= 2: steps.append('quad_perm:[2,3,0,1]')
        if lpr == 1: steps.append('quad_perm:[1,0,3,2]')
        for s in steps:
            self('s_nop 0')
            self.dpp('v_add_f32', a, a, a, s)
            self.dpp('v_add_f32', a + 1, a + 1, a + 1, s)

    def red4(self, a):
        self('s_nop 1')
        self(f'v_permlane32_swap_b32 v{a}, v{a+2}\nv_permlane32_swap_b32 v{a+1}, v{a+3}')
        self(f'v_add_f32 v{a}, v{a}, v{a+2}\nv_add_f32 v{a+1}, v{a+1}, v{a+3}')
        self('s_nop 1')
        self(f'v_permlane16_swap_b32 v{a}, v{a+1}')
        self(f'v_add_f32 v{a}, v{a}, v{a+1}')

    def sum4(self, r):
        self(f'v_pk_add_f32 {v2(r)}, {v2(r)}, {v2(r+2)}\nv_pk_add_f32 {v2(r+4)}, {v2(r+4)}, {v2(r+6)}\nv_pk_add_f32 {v2(r)}, {v2(r)}, {v2(r+4)}')

    def unpack(self, d, s):
        self(f'v_and_b32 v{d+1}, 0xffff0000, v{s}\nv_lshlrev_b32 v{d}, 16, v{s}')

    def rb2(self, d):
        self(f'v_cvt_pk_bf16_f32 v{d}, v{d}, v{d+1}')
        self.unpack(d, d)

    def rb1(self, d):
        self(f'v_cvt_pk_bf16_f32 v{d}, v{d}, v{d}\nv_lshlrev_b32 v{d}, 16, v{d}')

    def silu2(self, x, t):
        self(f'v_mul_f32 v{t}, 0xbfb8aa3b, v{x}\nv_mul_f32 v{t+1}, 0xbfb8aa3b, v{x+1}')
        self(f'v_exp_f32 v{t}, v{t}\nv_exp_f32 v{t+1}, v{t+1}')
        self(f'v_add_f32 v{t}, 1.0, v{t}\nv_add_f32 v{t+1}, 1.0, v{t+1}')
        self(f'v_rcp_f32 v{t}, v{t}\nv_rcp_f32 v{t+1}, v{t+1}')
        self(f'v_mul_f32 v{x}, v{x}, v{t}\nv_mul_f32 v{x+1}, v{x+1}, v{t+1}')

    def stats_wave(self, x, t):
        self(f'v_mul_f32 v{t+1}, v{x}, v{x}\nv_add_f32 v{t}, v{x}, v{x+1}\nv_fmac_f32 v{t+1}, v{x+1}, v{x+1}')
        self('s_nop 1')
        self(f'v_permlane32_swap_b32 v{t}, v{t+1}\nv_add_f32 v{t}, v{t}, v{t+1}')
        for s in ('row_ror:8', 'row_ror:4', 'row_ror:2', 'row_ror:1'):
            self('s_nop 1')
            self.dpp('v_add_f32', t, t, t, s)

    def stats_fin(self, r):
        self(f'v_mul_f32 v{r}, {INV512:#x}, v{r}\nv_mul_f32 v{r+1}, {INV512:#x}, v{r+1}')
        self(f'v_fma_f32 v{r+1}, -v{r}, v{r}, v{r+1}\nv_max_f32 v{r+1}, 0, v{r+1}')
        self.rb2(r)
        self(f'v_add_f32 v{r+1}, {EPS:#x}, v{r+1}')
        self.rb1(r + 1)
        self(f'v_sqrt_f32 v{r+1}, v{r+1}\ns_nop 0')
        self.rb1(r + 1)
        self(f'v_rcp_f32 v{r+1}, v{r+1}')

    def ln_apply(self, x, m):
        self(f'v_sub_f32 v{x}, v{x}, v{m}\nv_sub_f32 v{x+1}, v{x+1}, v{m}')
        self.rb2(x)
        self(f'v_mul_f32 v{x}, v{x}, v{m+1}\nv_mul_f32 v{x+1}, v{x+1}, v{m+1}')
        self.rb2(x)

    def store_local(self, insts):
        a, b = self.lab('far'), self.lab('sd')
        if self.o.get('nolocal'):
            for i in insts: self(i + ' sc1')
            return
        self(f's_cmp_eq_u32 s{sLOC}, 0\ns_cbranch_scc0 {a}')
        for i in insts: self(i)
        self(f'{b}:')
        self.tail.append((a, [i + ' sc1' for i in insts], b))

    def store_masked(self, inst, ml, full):
        a, b = self.lab('far'), self.lab('sd')
        self(f's_mov_b64 exec, {p(ml)}\n{inst}\ns_cbranch_execz {a}\n{b}:')
        self.tail.append((a, [f's_mov_b64 exec, {full}', inst + ' sc1'], b))

    def flush_tail(self):
        for a, insts, b in self.tail:
            self(f'{a}:')
            for i in insts: self(i)
            self(f's_branch {b}')
        self.tail = []

    def pad(self, name, target):
        if self.o.get('warm', '1') != '0':
            self(f'{name}:\ns_cbranch_execz {target}')

    def end(self):
        self('s_branch Lfin' if self.o.get('stamps') else 's_endpgm')


def gen(opt):
    g = G(opt)
    g.tail = []
    NT = opt.get('nt', '')
    NTK = opt.get('ntk', 'nt')
    NTO = opt.get('nto', '')
    LOCAL = not opt.get('nolocal')
    NTG, NTD, NTW, NTV = (opt.get(k, d).replace('_', ' ') for k, d in (('ntg', ''), ('ntd', ''), ('ntw', ''), ('ntv', '')))
    PF = int(opt.get('pf', 271))
    VA = int(opt.get('va', 3))
    WARM = opt.get('warm', '1') != '0'
    STAMPS = opt.get('stamps')
    PS = int(opt.get('ps', 128))
    H1X4 = int(opt.get('h1x4', 1))
    PT = int(opt.get('pt', 3))
    KA = int(opt.get('ka', 0))
    SE4 = int(opt.get('se4', 0))
    OWN = int(opt.get('own', 15)) if LOCAL else 0
    PAT = int(opt.get('pat', 2))
    WH = int(opt.get('wh', 0))
    DX = int(opt.get('dx', 4))
    RF = int(opt.get('rf', 0))
    HB = int(opt.get('hb', 19))
    DIAG = int(opt.get('diag', -1))
    DPF = int(opt.get('dpf', 0))
    SM1 = opt.get('sm1', 'N.Vc.Vd'); SM2 = opt.get('sm2', 'D'); SQ = opt.get('sq', 'P.H.W0.W1.G0')
    hdr = open('cdna_kernels/' + NAME + '.s.ref').read().split('; Override launch')[0] if opt.get('hdr', True) else ''
    g.L.append(hdr.rstrip('\n'))
    g.L.append(f'; @launch grid=(256,1,1) block=(512,1,1) lds={LDS_BYTES}')
    g(f'.amdgcn_target "amdgcn-amd-amdhsa--gfx950"\n.text\n.globl {K}\n.p2align 12\n.fill 832, 4, 0xbf810000\n.p2align 8\n.type {K},@function\n{K}:')
    ROT = ('row_ror:8', 'row_ror:4', 'row_ror:2', 'row_ror:1')

    def ka(bit, n, r=120):
        return '\n'.join([f'v_mfma_f32_16x16x32_bf16 {v4(r)}, {v4(r+4)}, {v4(r+4)}, 0'] * n) if KA & bit else ''

    def own_masks(bit, m, width, full, sh=None):
        if OWN & bit:
            if sh is None: g(f's_mul_i32 s{m}, s{sG}, {width}')
            else: g(sh)
            g(f's_bfm_b64 {p(m+2)}, {width}, s{m}\ns_cmp_eq_u32 s{sLOC}, 0\ns_cselect_b64 {p(m+2)}, {p(m+2)}, 0\ns_andn2_b64 {p(m)}, {full}, {p(m+2)}')

    def own_store(bit, inst, m):
        if OWN & bit:
            l = g.lab('ow')
            g(f's_mov_b64 exec, {p(m)}\n{inst} sc1\ns_mov_b64 exec, {p(m+2)}\ns_cbranch_execz {l}\n{inst}\n{l}:\ns_mov_b64 exec, -1')
        else: g(inst + ' sc1')

    def bslot(k):
        return 8 * ((k >> 1) & 1) + 4 * (k >> 3) + 2 * ((k >> 2) & 1) + (k & 1)

    def lgkm(n):
        g(f's_waitcnt lgkmcnt({0 if STAMPS else n})')

    def consts():
        g(f's_mov_b32 s{sTO}, 0x100000\ns_mov_b32 s{sSLO}, 0x05040100\ns_mov_b32 s{sSHI}, 0x07060302')

    def mk_tag():
        g(f's_mul_i32 s{sTAG}, s{sTAG}, 0x9e3779b1\ns_add_u32 s{sTAG}, s{sTAG}, 0x7f4a7c15')

    def xcc_val():
        g(f's_getreg_b32 s{sXCC}, hwreg(HW_REG_XCC_ID, 0, 4)\ns_or_b32 s{sXCC}, s{sXCC}, 0x80\ns_mul_i32 s{sXCC}, s{sXCC}, 0x01010101')

    def xcc_addr():
        xcc_val()
        g(f'v_and_b32 v126, 7, v0\nv_lshlrev_b32 v126, 2, v126\nv_lshl_add_u32 v126, s{sG}, 5, v126')

    def xcc_test():
        g(f'v_cmp_ne_u32 vcc, s{sXCC}, v127\ns_mov_b32 s{sLOC}, vcc_lo')
        if opt.get('mixed'): g(f's_and_b32 s{sXCC}, s2, {opt["mixed"]}\ns_or_b32 s{sLOC}, s{sLOC}, s{sXCC}')
    XLD = f'\nglobal_load_dword v127, v126, {p(sDBG)} sc1'

    def base(dst, mul, off, extra=None):
        g(f's_mul_i32 s{dst}, s{sG}, {mul}\ns_add_u32 s{dst}, s{dst}, {off}')
        if extra is not None: g(f's_add_u32 s{dst}, s{dst}, s{extra}')

    def fp24_consts(a):
        g(f's_mov_b32 s{a}, 0x0c04000c\ns_mov_b32 s{a+1}, 0x0402010c\ns_mov_b32 s{a+2}, 0x07060501\ns_mov_b32 s{a+3}, 0x07060502\ns_mov_b32 s{a+4}, 0x07060503')

    def fp24_unpack(r, a):
        g(f'v_perm_b32 v{r+3}, v{r+1}, v{r}, s{a}\nv_perm_b32 v{r+3}, v{r+2}, v{r+3}, s{a+1}')

    def fp24_pack(d, r, a):
        for i in range(3): g(f'v_perm_b32 v{d+i}, v{r+i}, v{r+3}, s{a+2+i}')

    def stream(spec, counted=False):
        g(f's_lshl_b32 s{sT}, s{sJ}, 5\nv_xor_b32 v123, s{sT}, v0' if int(opt.get('rot', 1)) else 'v_mov_b32 v123, v0')
        for it in spec.split('.'):
            if not it: continue
            if it[0] == 'V':
                off = {'a': 0, 'b': 65536, 'c': 32768, 'd': 98304, 'x': 32768, 'y': 49152}[it[1]]
                if HB != 15: off = {'a': 0, 'b': 1 << 18, 'c': 2 << 18, 'd': 3 << 18}[it[1]]
                g(f's_lshl_b32 s{sT}, s{sG}, 24\ns_lshl_b32 s{sT+1}, s{sJ}, {17 if HB == 15 else 15}\ns_add_u32 s{sT}, s{sT}, s{sT+1}\ns_add_u32 s{sT}, s{sT}, {(15 << 20) + off}')
                if int(opt.get('hs', 0)): g(f's_bfe_u32 s{sT+1}, s{sG}, {0x10000 + int(opt["hs"]) - 1}\ns_lshl_b32 s{sT+1}, s{sT+1}, 19\ns_xor_b32 s{sT}, s{sT}, s{sT+1}')
                if it[1] in 'xy':
                    g(f's_lshr_b32 s{sT+1}, s{sWAVE}, 1\ns_mul_i32 s{sT+1}, s{sT+1}, 49152\ns_add_u32 s{sT}, s{sT}, s{sT+1}')
                g(f'v_lshl_add_u32 v120, v{0 if it[1] in "xy" else 123}, 7, s{sT}\nglobal_load_dword v121, v120, {p(sV)} {NTV}')
            elif it[0] == 'v':
                g(f's_lshl_b32 s{sT}, s{sG}, 24\ns_lshl_b32 s{sT+1}, s{sJ}, 14\ns_add_u32 s{sT}, s{sT}, s{sT+1}\ns_add_u32 s{sT}, s{sT}, {(15 << 20) + (int(it[1]) << 17)}')
                g(f'v_lshrrev_b32 v120, 1, v123\nv_lshl_add_u32 v120, v120, 7, s{sT}\nglobal_load_dword v121, v120, {p(sV)} {NTV}')
            elif it[0] == 'w':
                g(f's_lshr_b32 s{sT}, s{sJ}, 1\ns_lshl2_add_u32 s{sT}, s{sG}, s{sT}\ns_lshl_b32 s{sT}, s{sT}, 3\ns_and_b32 s{sT+1}, s{sJ}, 1\ns_add_u32 s{sT}, s{sT}, s{sT+1}\ns_add_u32 s{sT}, s{sT}, {2 * int(it[1])}\ns_lshl_b32 s{sT}, s{sT}, 14')
                g(f'v_lshrrev_b32 v120, 1, v123\nv_lshl_add_u32 v120, v120, 7, s{sT}\nglobal_load_dword v121, v120, {p(sWO)} {NTW}')
            elif it[0] == 'W':
                if WH: g(f's_lshl4_add_u32 s{sT}, s{sG}, s{sJ}\ns_add_u32 s{sT}, s{sT}, {8 * int(it[1])}\ns_lshl_b32 s{sT}, s{sT}, 15')
                else: g(f's_and_b32 s{sT}, s{sJ}, 6\ns_add_u32 s{sT}, s{sT}, s{sJ}\ns_lshl4_add_u32 s{sT}, s{sG}, s{sT}\ns_add_u32 s{sT}, s{sT}, {2 * int(it[1])}\ns_lshl_b32 s{sT}, s{sT}, 15')
                g(f'v_lshl_add_u32 v120, v123, 7, s{sT}\nglobal_load_dword v121, v120, {p(sWO)} {NTW}')
            elif it[0] in 'Gg':
                l = g.lab('ng')
                hf = it[0] == 'g'
                g(f"""
                s_cmp_eq_u32 s{sG}, 7
                {f's_cselect_b64 exec, 1, -1' if counted else f's_cbranch_scc1 {l}'}
                s_lshr_b32 s{sT}, s{sWAVE}, 1
                s_lshl1_add_u32 s{sT}, s{sJ}, s{sT}
                s_lshl_b32 s{sT}, s{sT}, {3 if hf else 4}
                s_addk_i32 s{sT}, {(128 if hf else 256) * int(it[1])}
                v_lshrrev_b32 v120, {3 if hf else 2}, v1
                v_add_u32 v120, s{sT}, v120
                v_bfe_u32 v122, v1, {1 if hf else 0}, 2
                v_mad_u32_u24 v120, v120, 28, v122
                s_min_u32 s{sT}, s{sG}, 6
                s_lshl_b32 s{sT}, s{sT}, 2
                v_add_lshl_u32 v120, v120, s{sT}, 7
                s_bitcmp1_b32 s{sWAVE}, 0
                s_cselect_b64 {p(sT)}, {p(sUP)}, {p(sGATE)}
                global_load_dword v121, v120, {p(sT)} {NTG}
                {'s_mov_b64 exec, -1' if counted else ''}
                {l}:
                """)
            elif it == 'D':
                g(f"""
                s_mul_i32 s{sT}, s{sJ}, 224
                v_min_u32 v120, 223, v0
                v_add_lshl_u32 v120, v120, s{sT}, 3
                s_xor_b32 s{sT}, s{sG}, {DX}
                v_add_lshl_u32 v120, v120, s{sT}, 7
                global_load_dword v121, v120, {p(sDOWN)} {NTD}
                """)
            elif it == 'R':
                g(f"""
                s_lshl_b32 s{sT}, s{sJ}, 6
                v_lshrrev_b32 v120, 2, v0
                v_add_u32 v120, s{sT}, v120
                v_and_b32 v122, 3, v0
                v_mad_u32_u24 v120, v120, 48, v122
                s_lshl2_add_u32 s{sT}, s{sG}, 16
                v_add_lshl_u32 v120, v120, s{sT}, 7
                global_load_dword v121, v120, {p(sWM)} {NT}
                """)
            elif it == 'H':
                g(f's_lshr_b32 s{sT}, s{sWAVE}, 1\ns_lshl1_add_u32 s{sT}, s{sJ}, s{sT}\ns_mul_i32 s{sT}, s{sT}, {H3A_S}')
                base(sT + 1, H3A_G, H3A, sT)
                g(f's_and_b32 s{sT}, s{sWAVE}, 1\nv_min_u32 v120, 8, v1\nv_lshl_add_u32 v120, s{sT}, 3, v120\nv_lshl_add_u32 v120, v120, 7, s{sT+1}\nglobal_load_dword v121, v120, {p(sWS)} sc1')
            elif it[0] in 'TU':
                if it[0] == 'T':
                    base(sT, H3A_G, H3A + 128 + 12)
                    g(f'v_mul_u32_u24 v120, {H3A_S}, v1\nv_add_u32 v120, s{sT}, v120')
                else:
                    base(sT, 128, MARK)
                    g(f'v_lshl_add_u32 v120, v1, 2, s{sT}')
                r, l = g.lab('retry'), g.lab('trig')
                g(f"""
                s_mov_b64 exec, 0xffff
                s_branch {l}
                {r}:
                s_sub_u32 s{sTO}, s{sTO}, 1
                s_cbranch_scc1 Lexit
                {l}:
                global_load_dword v121, v120, {p(sWS)} sc1
                s_waitcnt vmcnt(0)
                v_cmp_eq_u32 vcc, s{sTAG}, v121
                s_bcnt1_i32_b32 s{sT}, vcc_lo
                s_cmp_lt_u32 s{sT}, {int(it[1:])}
                s_cbranch_scc1 {r}
                s_mov_b64 exec, -1
                """)
            elif it == 'N':
                g(f's_lshl_b32 s{sT}, s{sPM}, 7')
                base(sT + 1, MOD_REP, MOD + 4096, sT)
                g(f'v_mov_b32 v120, s{sT+1}\nglobal_load_dword v121, v120, {p(sWS)} sc1')
            elif it == 'P':
                g(f's_lshl_b32 s{sT}, s{sJ}, 11')
                base(sT + 1, H4_REP, H4, sT)
                g(f'v_lshrrev_b32 v120, 4, v0\nv_lshl_add_u32 v120, v120, 7, s{sT+1}\nglobal_load_dword v121, v120, {p(sWS)} sc1')
            else:
                raise ValueError(it)

    vK, vV, vVT, vQ, vP = 8, 40, 72, 104, 108
    g.stamp(0)
    g(f"""
    s_load_dwordx16 s[4:19], s[0:1], 0
    s_load_dwordx8 s[20:27], s[0:1], 64
    s_load_dwordx4 s[28:31], s[0:1], 96
    v_readfirstlane_b32 s{sWAVE}, v0
    s_and_b32 s{sG}, s2, 7
    s_lshr_b32 s{sJ}, s2, 3
    v_and_b32 v1, 63, v0
    s_lshr_b32 s{sWAVE}, s{sWAVE}, 6
    s_lshr_b32 s{sT}, s2, 5
    s_or_b32 s{sT}, s{sT}, s{sWAVE}
    s_cmp_ge_u32 s{sT}, 4
    s_cbranch_scc1 Ldisp
    """)
    g(f"""
    s_getreg_b32 s{sXCC}, hwreg(HW_REG_XCC_ID, 0, 4)
    v_lshrrev_b32 v4, 3, v0
    v_bfe_u32 v5, v0, 2, 1
    v_lshl_add_u32 v4, s{sJ}, 5, v4
    s_lshl_b32 s{sT}, s{sG}, 1
    v_mad_u32_u24 v5, v4, 48, v5
    v_add_lshl_u32 v5, v5, s{sT}, 7
    s_lshl4_add_u32 s{sT+1}, s{sT}, s{sJ}
    s_bitset1_b32 s{sXCC}, 7
    v_mov_b32 v126, s{sT+1}
    v_mov_b32 v127, s{sXCC}
    v_and_b32 v6, 7, v0
    v_lshl_add_u32 v6, v4, 6, v6
    s_lshl_b32 s{sT}, s{sG}, 3
    v_add_lshl_u32 v6, v6, s{sT}, 7
    s_cmp_lg_u32 s{sWAVE}, 0
    s_cbranch_scc1 LA0
    s_mov_b64 exec, 1
    s_waitcnt lgkmcnt(0)
    {f'global_store_byte v126, v127, {p(sDBG)}' if LOCAL else ''}
    s_mov_b64 exec, -1
    LA0:
    s_waitcnt lgkmcnt(0)
    """)
    g.stamp(1)
    g(f"""
    global_load_dword v{vVT+8}, v5, {p(sWM)} {NT}
    global_load_dword v{vVT+9}, v6, {p(sWQ)} {NT}
    LA:
    s_lshl_b32 s{sT}, s{sG}, 12
    s_add_u32 s{sT}, s{sT}, s{sJ}
    s_lshl2_add_u32 s{sT}, s{sT}, s{sWAVE}
    s_and_b32 s{sT+1}, s{sWAVE}, 4
    s_mulk_i32 s{sT+1}, 127
    s_add_u32 s{sT}, s{sT}, s{sT+1}
    s_addk_i32 s{sT}, {15 << 10}
    s_lshl_b32 s{sT}, s{sT}, 10
    v_lshl_add_u32 v2, v1, 4, s{sT}
    v_and_b32 v5, 12, v0
    v_and_b32 v6, 48, v0
    v_mad_u32_u24 v3, v5, 48, v2
    v_mad_i32_i24 v3, v6, -12, v3
    """)
    g(f's_load_dword s{sTAG}, {p(sWS)}, 0')

    def loadkv(b, va, vd):
        for n in range(8):
            g(f'global_load_dwordx4 {v4(vd + 4 * n)}, v{va}, {p(b)} {NTK}')
            if n != 7: g(f'v_add_u32 v{va}, 0x10000, v{va}')
    loadkv(sK, 3, vK)
    g(f"""
    s_branch LA2
    Ldisp:
    s_cmpk_ge_u32 s2, 256
    s_cbranch_scc1 Lexit0
    s_cmp_lt_u32 s{sWAVE}, 4
    s_cbranch_scc0 LH
    s_cmp_ge_u32 s{sJ}, 24
    s_cbranch_scc1 LM
    s_branch LQ
    LH:
    """)
    if LOCAL:
        l = g.lab('h')
        g(f's_cmp_lg_u32 s{sWAVE}, 7\ns_cbranch_scc1 {l}\ns_cmp_lt_u32 s{sJ}, 16\ns_cbranch_scc1 {l}')
        xcc_val()
        g(f"""
        s_lshl_b32 s{sT}, s{sG}, 5
        s_add_u32 s{sT}, s{sT}, s{sJ}
        v_mov_b32 v126, s{sT}
        v_mov_b32 v127, s{sXCC}
        s_mov_b64 exec, 1
        s_waitcnt lgkmcnt(0)
        global_store_byte v126, v127, {p(sDBG)}
        global_load_ubyte v127, v126, {p(sDBG)} sc1
        """)
        if PT:
            m = (((1 << (PS // 16)) - 1) if PT & 1 else 0) | (0x1ff00 if PT & 2 else 0)
            g(f's_cmp_ge_u32 s{sJ}, 24\ns_cbranch_scc1 {l}\ns_mov_b64 exec, {m:#x}\ns_mul_i32 s{sT}, s{sJ}, {8 * PS}')
            base(sT + 1, H1_REP, H1 - 16 * 8 * PS, sT)
            g(f's_mul_i32 s{sT}, s{sJ}, 1152')
            base(sT + 2, H2_G, H2 - 16 * 1152 - 8 * 128, sT)
            g(f"""
            v_mov_b32 v2, s{sT+1}
            v_mov_b32 v3, s{sT+2}
            v_cmp_lt_u32 vcc, 7, v1
            s_nop 1
            v_cndmask_b32 v2, v2, v3, vcc
            v_lshl_add_u32 v2, v1, 7, v2
            global_load_dword v3, v2, {p(sWS)} sc1
            """)
        g(f'{l}:')
    lq, lm = g.lab('hq'), g.lab('hm')

    def hop(targets):
        for w, t in zip((4, 5, 6), targets):
            g(f's_cmp_eq_u32 s{sWAVE}, {w}\ns_cbranch_scc1 {t}')
        g(f's_branch {targets[3]}')
    g(f's_mov_b64 exec, 0\ns_cmp_ge_u32 s{sJ}, 24\ns_cbranch_scc0 {lq}')
    hop(['LFH'] + opt.get('hm', 'PM3.PM2.PM1').split('.') if WARM else ['LFH'] + ['Lexit1'] * 3)
    g(f'{lq}:\ns_cmp_ge_u32 s{sJ}, 16\ns_cbranch_scc0 {lm}')
    hop(opt.get('hq', 'PQ5.PQ4.PQ2.PQ3').split('.') if WARM else ['Lexit1'] * 4)
    g(f'{lm}:')
    if WARM: hop(opt.get('ha', 'PA3.PA2.PA6.PA1').split('.'))
    g('LAres:\ns_mov_b64 exec, -1')
    xcc_val()
    g('v_mov_b32 v126, 0\nv_mov_b32 v127, 0\ns_waitcnt lgkmcnt(0)\ns_branch LA\nLA2:')
    g.stamp(2)
    VY = int(opt.get('vy', 1))
    sVP, sWP, sML, sML4, sM4, sM8 = 100, 0, 60, 62, 58, 56
    consts()
    for i in range(16): g(f'v_mov_b32 v{vP+i}, 0')
    ly, lsp, r, r2, lp = g.lab('y'), g.lab('sp'), g.lab('retry'), g.lab('retry'), g.lab('fl')
    g(f"""
    v_lshlrev_b32 v124, 4, v1
    v_and_b32 v125, 3, v1
    v_lshlrev_b32 v125, 2, v125
    v_mov_b32 v3, 0
    v_mov_b32 v4, 0xff800000
    ds_write2_b32 v125, v4, v3 offset0:{L_MX // 4} offset1:{L_SM // 4}
    s_mov_b64 {p(sWP)}, {p(sWO)}
    s_mov_b64 {p(sVP)}, {p(sV)}
    s_mov_b64 s[40:41], {p(sDOWN)}
    s_waitcnt lgkmcnt(0)
    s_barrier
    """)
    mk_tag()
    if DIAG >= 0:
        loadkv(sVP, 2, vV)
        g('s_waitcnt vmcnt(0)')
        g.stamp(6)
        g.end()
    xl = f's_lshl_b32 s{sT}, s{sG}, 5\ns_load_dwordx8 s[4:11], {p(sDBG)}, s{sT}\ns_mov_b32 s{sXCC+1}, s{sXCC}'
    if VY == 3:
        l = g.lab('xo')
        g(f's_cmp_lt_u32 s{sWAVE}, 4\ns_cbranch_scc1 {l}\n{xl}\n{l}:')
        loadkv(sVP, 2, vV)
        g(f's_cmp_ge_u32 s{sWAVE}, 4\ns_cbranch_scc1 {ly}\ns_mov_b32 s{sT+3}, s{sWAVE}')
    else:
        g(f's_cmp_lt_u32 s{sWAVE}, 4\ns_cbranch_scc1 {ly}\ns_setprio {opt.get("prio", 1)}\ns_and_b32 s{sT+3}, s{sWAVE}, 3\ns_waitcnt vmcnt({opt.get("kw", 6)})')

    def xtest():
        for i in range(4): g(f's_xor_b64 {p(4+2*i)}, {p(4+2*i)}, {p(sXCC)}')
        g(f's_or_b64 s[4:5], s[4:5], s[6:7]\ns_or_b64 s[8:9], s[8:9], s[10:11]\ns_or_b64 s[4:5], s[4:5], s[8:9]\ns_or_b32 s{sLOC}, s4, s5')
        if not LOCAL: g(f's_mov_b32 s{sLOC}, 1')
        if opt.get('mixed'): g(f's_and_b32 s{sXCC}, s2, {opt["mixed"]}\ns_or_b32 s{sLOC}, s{sLOC}, s{sXCC}')
    if VY != 3: g(xl)
    base(sT + 1, H2_G, H2 + 1024)
    g(f"""
    s_lshl_b32 s{sT}, s{sT+3}, 8
    s_lshl3_add_u32 s{sT+2}, s{sT}, s{sT+1}
    s_add_u32 s{sT}, s{sT}, s{sT+1}
    s_add_u32 s{sT+1}, s{sT+2}, {64 * int(opt.get('nc', 31))}
    s_add_u32 s{sDBG}, s{sWS}, s{sT}
    s_addc_u32 s{sDBG+1}, s{sWS+1}, 0
    v_lshl_add_u32 v7, v1, 2, s{sT+3}
    v_lshlrev_b32 v7, 4, v7
    s_mov_b64 exec, 1
    {r2}:
    s_cmp_lt_u32 s{sT+2}, s{sT+1}
    s_cbranch_scc0 Lfglc
    s_load_dwordx2 s[12:13], {p(sWS)}, s{sT+2}
    s_add_u32 s{sT+2}, s{sT+2}, 64
    {lp}:
    s_waitcnt lgkmcnt(0)
    s_cmp_lg_u32 s12, s{sTAG}
    s_cbranch_scc1 {r2}
    s_cmp_lg_u32 s13, s{sTAG}
    s_cbranch_scc1 {r2}
    """)
    g.stamp(3)
    g(f"""
    s_load_dwordx16 s[44:59], {p(sDBG)}, -1024
    s_load_dwordx16 s[80:95], {p(sDBG)}, {-1024 + 64}
    s_load_dwordx16 s[12:27], {p(sDBG)}, {-1024 + 128}
    s_load_dwordx4 s[60:63], {p(sDBG)}, {-1024 + 192}
    s_load_dwordx4 s[96:99], {p(sDBG)}, {-1024 + 208}
    """)
    if VY != 3: xtest()
    g(f's_load_dwordx8 s[4:11], {p(sDBG)}, {-1024 + 224}\ns_waitcnt lgkmcnt(0)')
    g.stamp(1)
    for c, sr in enumerate([44, 48, 52, 56, 80, 84, 88, 92, 12, 16, 20, 24, 60, 96, 4, 8]):
        g(f'v_mov_b64 {v2(vVT)}, {p(sr)}\nv_mov_b64 {v2(vVT+2)}, {p(sr+2)}')
        g('s_lshl_b32 exec_lo, exec_lo, 1' if c != 15 else 's_mov_b32 exec_lo, 0xffff')
    g(f"""
    ds_write_b128 v7, {v4(vVT)} offset:{L_Q}
    s_mov_b64 exec, -1
    {'' if VY == 3 else 's_waitcnt vmcnt(0)'}
    s_branch {lsp}
    PA1:
    s_branch LAres
    Lfglc:
    s_sub_u32 s{sTO}, s{sTO}, 1
    s_cbranch_scc1 Lexit
    s_load_dwordx2 s[12:13], {p(sWS)}, s{sT+2} glc
    s_branch {lp}
    {ly}:
    """)
    AH = opt.get('ah', '')
    if AH and VY != 3:
        l = g.lab('ah')
        if AH == 'H':
            g(f's_cmp_lg_u32 s{sWAVE}, 3\ns_cbranch_scc1 {l}\ns_mul_i32 s{sT}, s{sJ}, {H3A_S}')
            base(sT + 1, H3A_G, H3A, sT)
            g(f'v_min_u32 v4, 16, v1\nv_lshl_add_u32 v4, v4, 7, s{sT+1}\nglobal_load_dword v{vVT+9}, v4, {p(sWS)} sc1\n{l}:')
        elif AH == 'w':
            g(f's_cmp_lg_u32 s{sWAVE}, 3\ns_cbranch_scc1 {l}\ns_lshr_b32 s{sT}, s{sJ}, 2\ns_lshl2_add_u32 s{sT}, s{sG}, s{sT}\ns_lshl_b32 s{sT}, s{sT}, 4\ns_and_b32 s{sT+1}, s{sJ}, 3\ns_add_u32 s{sT}, s{sT}, s{sT+1}\ns_lshl_b32 s{sT}, s{sT}, 13')
            g(f'v_lshl_add_u32 v4, v1, 7, s{sT}\nglobal_load_dword v{vVT+9}, v4, {p(sWP)} {NTW}\n{l}:')
        else:
            g(f's_cmp_ge_u32 s{sWAVE}, 2\ns_cbranch_scc1 {l}\ns_and_b32 s{sT}, s{sJ}, 12\ns_add_u32 s{sT}, s{sT}, s{sJ}\ns_lshl_b32 s{sT+1}, s{sG}, 5\ns_add_u32 s{sT}, s{sT}, s{sT+1}\ns_lshl_b32 s{sT}, s{sT}, 14')
            g(f'v_lshl_add_u32 v4, v0, 7, s{sT}\nglobal_load_dword v{vVT+9}, v4, {p(sWP)} {NTW}\n{l}:')
    if VY == 3: g(f's_setprio {opt.get("prio", 1)}')
    else: loadkv(sVP, 2, vV)
    g.stamp(3)
    g(f"""
    {lsp}:
    s_waitcnt lgkmcnt(0)
    s_barrier
    ds_read_b128 {v4(vQ)}, v124 offset:{L_Q}
    s_mov_b32 s{sT+4}, 0x000f000f
    s_mov_b32 s{sT+5}, 0x000f000f
    """)

    def vyoung(k):
        if VY == k:
            l = g.lab('vy')
            g(f's_cmp_lt_u32 s{sWAVE}, 4\ns_cbranch_scc1 {l}')
            loadkv(sVP, 2, vV)
            g(f'{l}:')
    vyoung(0)
    g('s_waitcnt vmcnt(8) lgkmcnt(0)')
    g.stamp(4)
    for n in range(8):
        g(f'v_mfma_f32_16x16x32_bf16 {v4(vK - 4 + 4 * n)}, {v4(vK + 4 * n)}, {v4(vQ)}, 0')
    vS0 = 36
    g('s_nop 0')
    for half in range(2):
        for t in range(3):
            for beta in (2 * half, 2 * half + 1):
                for m in range(2):
                    n = 2 * beta + m
                    D = vK - 4 + 4 * n
                    pi = (beta + 1 + t) % 4
                    T = vS0 + m + 2 * (beta & 1)
                    g.dpp('v_add_f32', T, D + pi, D + beta if t == 0 else T, f'row_ror:{4 * ((beta - pi) % 4)}', 1 << beta)
    g('s_nop 0')
    g.dpp('v_mov_b32', vS0, vS0 + 2, None, 'quad_perm:[0,1,2,3]', 0xa)
    g.dpp('v_mov_b32', vS0 + 1, vS0 + 3, None, 'quad_perm:[0,1,2,3]', 0xa)
    g.rb2(vS0)
    g(f'v_mul_f32 v{vS0}, {SCALE:#x}, v{vS0}\nv_mul_f32 v{vS0+1}, {SCALE:#x}, v{vS0+1}')
    g.rb2(vS0)
    g(f'v_max_f32 v4, v{vS0}, v{vS0+1}\ns_lshl_b32 s{sT}, s{sWAVE}, 11\nv_add_u32 v6, s{sT}, v124')
    g.dpp('v_max_f32', 4, 4, 4, 'row_ror:8')
    g(f'v_lshlrev_b32 v7, 2, v0\nv_add_u32 v7, {L_O - 1024}, v7')
    g.dpp('v_max_f32', 4, 4, 4, 'row_ror:4')
    g(f"""
    s_mov_b64 exec, {p(sT+4)}
    ds_max_f32 v125, v4 offset:{L_MX}
    s_mov_b64 exec, -1
    s_mul_i32 s{sT}, s{sJ}, {H3A_S}
    """)
    base(sT + 6, H3A_G, H3A)
    g(f"""
    s_add_u32 s{sT}, s{sT}, s{sT+6}
    v_and_b32 v5, 0xf8, v0
    v_lshl_add_u32 v5, v5, 1, v125
    v_lshl_add_u32 v5, v5, 2, s{sT}
    v_mov_b32 v19, s{sTAG}
    s_branch Lpa6
    PA6:
    s_branch LAres
    Lpa6:
    s_waitcnt lgkmcnt(0)
    s_barrier
    ds_read_b32 v4, v125 offset:{L_MX}
    """)
    g.stamp(5)
    if 'U' in SM1 + SM2 + SQ:
        l = g.lab('mk')
        g(f's_cmp_lg_u32 s{sWAVE}, 4\ns_cbranch_scc1 {l}\ns_lshl_b32 s{sT}, s{sJ}, 2')
        base(sT + 1, 128, MARK, sT)
        g(f'v_mov_b32 v126, s{sT+1}\ns_mov_b64 exec, 1')
        g.store_local([f'global_store_dword v126, v19, {p(sWS)}'])
        g(f's_mov_b64 exec, -1\n{l}:')
    vyoung(1)
    if VY == 3: xtest()
    g(f"""
    s_mov_b32 s{sM8}, 0x0f0f0f0f
    s_mov_b32 s{sM8+1}, 0x0f0f0f0f
    s_mov_b32 s{sM4}, 0x00010001
    s_mov_b32 s{sM4+1}, 0x00010001
    s_cmp_eq_u32 s{sLOC}, 0
    s_cselect_b64 {p(sML)}, {p(sM8)}, 0
    s_cselect_b64 {p(sML4)}, {p(sM4)}, 0
    s_waitcnt lgkmcnt(0)
    v_sub_f32 v{vS0}, v{vS0}, v4
    v_sub_f32 v{vS0+1}, v{vS0+1}, v4
    v_mul_f32 v{vS0}, {LOG2E:#x}, v{vS0}
    v_mul_f32 v{vS0+1}, {LOG2E:#x}, v{vS0+1}
    v_exp_f32 v{vS0}, v{vS0}
    v_exp_f32 v{vS0+1}, v{vS0+1}
    v_mul_f32 v4, {LOG2E:#x}, v4
    v_cvt_pk_bf16_f32 v{vS0+2}, v{vS0}, v{vS0+1}
    v_add_f32 v{vS0}, v{vS0}, v{vS0+1}
    s_nop 0
    """)
    for c in range(4):
        for m in range(4):
            rot = 4 * ((c - m) % 4)
            g.dpp('v_mov_b32', vP + 4 * c + m, vS0 + 2, None, f'row_ror:{rot}' if rot else 'quad_perm:[0,1,2,3]', 1 << c)
        if c < 2: g.dpp('v_add_f32', vS0, vS0, vS0, ROT[c])
    g(f's_mov_b64 exec, {p(sT+4)}\nds_add_f32 v125, v{vS0} offset:{L_SM}\ns_mov_b64 exec, -1')
    l = g.lab('yy')
    g(f's_cmp_lt_u32 s{sWAVE}, 4\ns_cbranch_scc1 {l}')
    if VY == 2: loadkv(sVP, 2, vV)
    g(f"""
    s_lshl2_add_u32 s{sT}, s{sJ}, s{sWAVE}
    s_sub_u32 s{sT}, s{sT}, 4
    s_and_b32 s{sT+1}, s{sT}, 1
    s_mul_i32 s{sT+1}, s{sT+1}, 0x04040000
    s_add_u32 s{sT+7}, s{sT+1}, 0x01000c0c
    s_add_u32 s{sT+13}, s{sT+1}, 0x03020c0c
    s_lshr_b32 s{sT+1}, s{sT}, 1
    s_lshl_b32 s{sT+1}, s{sT+1}, 6
    s_add_u32 s{sT+1}, s{sT+1}, s{sT+6}
    v_and_b32 v126, 15, v1
    v_mul_u32_u24 v126, {H3A_S}, v126
    v_and_b32 v127, 48, v1
    v_add3_u32 v126, v126, v127, s{sT+1}
    s_lshr_b32 s{sT+1}, s{sJ}, 2
    """)
    if WH: g(f's_and_b32 s{sT+2}, s{sT}, 8\ns_add_u32 s{sT+1}, s{sT+1}, s{sT+2}\nv_and_b32 v127, 16, v1\nv_and_b32 v38, 32, v1')
    g(f"""
    s_mul_i32 s{sT+1}, s{sT+1}, {H3A_S}
    s_and_b32 s{sT}, s{sT}, {7 if WH else 15}
    s_lshl3_add_u32 s{sT}, s{sT}, s{sT+1}
    s_add_u32 s{sT}, s{sT}, s{sT+6}
    s_addk_i32 s{sT}, 2048
    v_mul_u32_u24 v127, {H3A_S // 4}, v127
    {'v_lshl_add_u32 v127, v38, 1, v127' if WH else ''}
    v_add_u32 v127, s{sT}, v127
    v_mov_b32 v39, s{sTAG}
    s_branch {l}
    PA2:
    s_branch LAres
    {l}:
    s_cmp_lt_u32 s{sWAVE}, 4
    """)
    for m in range(4):
        g(f's_waitcnt vmcnt({6 - 2 * m})')
        if m == 3: g.stamp(6)
        for c in (0, 4, 1, 5, 2, 6, 3, 7):
            g(f'v_perm_b32 v{vVT + 4 * c + m}, v{vV + 8 * m + 4 + c // 2}, v{vV + 8 * m + c // 2}, s{sSHI if c & 1 else sSLO}')
    for c in range(4):
        for a in range(2):
            g(f'v_mfma_f32_16x16x32_bf16 {v4(8 + 4 * a)}, {v4(vP + 4 * c)}, {v4(vVT + 16 * a + 4 * c)}, {v4(8 + 4 * a) if c else 0}')
    PG = int(opt.get('pg', 0))
    vG = 40
    ld = f'global_load_dwordx4 {v4(vG)}, v126, {p(sWS)} sc1'
    g(f"""
    s_nop 6
    ds_write_b128 v6, v[8:11] offset:{L_O}
    ds_write_b128 v6, v[12:15] offset:{L_O + 1024}
    s_cbranch_scc1 LNW
    {ld if PG else ''}
    {ka(2, 3, 108)}
    s_waitcnt lgkmcnt(0)
    s_barrier
    {ka(2, 1, 108)}
    ds_read_b32 v18, v125 offset:{L_SM}
    """)
    regs = [16, 20, 22, 24, 26, 28, 30, 32]
    for w in range(8): g(f'ds_read2st64_b32 {v2(regs[w])}, v7 offset0:{8 * w} offset1:{8 * w + 4}')
    g(ka(2, 1, 108))
    lgkm(8)
    g('v_rcp_f32 v34, v18\nv_log_f32 v18, v18')
    for a, b, wt in ((0, 1, 6), (2, 3, 4), (0, 2, None), (4, 5, 2), (0, 4, None), (6, 7, 0), (0, 6, None)):
        if wt is not None: lgkm(wt)
        g(f'v_pk_add_f32 {v2(regs[a])}, {v2(regs[a])}, {v2(regs[b])}')
        if wt == 6: g('v_add_f32 v18, v18, v4')
    g('v_pk_mul_f32 v[16:17], v[16:17], v[34:35] op_sel_hi:[1,0]')
    g('v_cvt_pk_bf16_f32 v16, v16, v17\ns_nop 1')
    g.dpp('v_mov_b32', 17, 16, None, 'row_shl:4')
    g.store_masked(f'global_store_dwordx4 v5, v[16:19], {p(sWS)}', sML, p(sM8))
    g('s_mov_b64 exec, -1')
    WO = [int(x) for x in opt.get('wo', '16.0.16').split('.')]
    assert sum(WO) == 32
    if WO[1]: g('s_barrier')
    g.stamp(7)
    if PG: g(f's_waitcnt vmcnt(1)\nv_cmp_ne_u32 vcc, s{sTAG}, v{vG+3}\ns_or_b32 vcc_lo, vcc_lo, 1\ns_mov_b64 exec, vcc')
    g(ld)
    if PG: g('s_mov_b64 exec, -1')
    fp24_consts(sT + 8)
    g(f's_lshl_b32 s{sT}, s{sJ}, 7')
    base(sT + 1, 2048, H4, sT)
    g(f"""
    v_and_b32 v2, 7, v1
    v_lshlrev_b32 v2, 4, v2
    v_lshrrev_b32 v3, 3, v1
    v_mul_u32_u24 v3, {H4_REP}, v3
    v_add3_u32 v3, v3, v2, s{sT+1}
    v_mov_b32 v27, s{sTAG}
    """)


    def sentinel(k, wave, restore):
        if SE4 == k:
            l = g.lab('se')
            g(f's_cmp_lg_u32 s{sJ}, 5\ns_cbranch_scc1 {l}\ns_cmp_lg_u32 s{sWAVE}, {wave}\ns_cbranch_scc1 {l}')
            g(f's_mov_b64 exec, 0xff\ns_lshl2_add_u32 s{sT}, s{sG}, {S4}\nv_lshl_add_u32 v36, v1, 8, s{sT}\nv_mov_b32 v37, s{sTAG}\nglobal_store_dword v36, v37, {p(sWS)} sc1\ns_mov_b64 exec, -1\n{l}:')

    own_masks(4, sT, 8, -1)

    def cmid():
        for i in range(2):
            g.dpp('v_max_f32', 12, vG + 2 if i == 0 else 12, vG + 2 if i == 0 else 12, ROT[i])
            g(f'v_perm_b32 v8, v{vG+1}, v{vG}, s{sT+7}\nv_perm_b32 v9, v{vG+1}, v{vG}, s{sT+13}' if i == 0 else 's_nop 0')
    g.poll(lambda: g(ld), [vG + 3], None, issued=True, mid=cmid, mask=1, pad='PA3:\ns_branch PA4')
    g.stamp(9)
    g.dpp('v_max_f32', 12, 12, 12, ROT[2])
    g('s_nop 1')
    g.dpp('v_max_f32', 12, 12, 12, ROT[3])
    g(f'v_sub_f32 v10, v{vG+2}, v12\nv_exp_f32 v10, v10\ns_nop 0\nv_pk_mul_f32 v[8:9], v[8:9], v[10:11] op_sel_hi:[1,0]')
    for i, s_ in enumerate(ROT):
        g.dpp('v_add_f32', 10, 10, 10, s_)
        if i == 0: g('s_nop 0')
        if i == 3: g('v_rcp_f32 v10, v10')
        g.dpp('v_add_f32', 8, 8, 8, s_)
        g.dpp('v_add_f32', 9, 9, 9, s_)
    g('v_pk_mul_f32 v[8:9], v[8:9], v[10:11] op_sel_hi:[1,0]\nv_cvt_pk_bf16_f32 v38, v8, v9')
    g.store_masked(f'global_store_dwordx2 v127, v[38:39], {p(sWS)}', sML4, p(sM4))
    sentinel(1, 5, 1)
    if WO[2]: g('s_barrier')
    g.stamp(10)
    g(f's_mov_b64 exec, -1\ns_cmp_lg_u32 s{sWAVE}, 4')
    if STAMPS: g(f's_barrier\ns_cbranch_scc1 {"LAe2" if DPF else "Lexit"}')
    else: g('s_cbranch_scc1 LAend\ns_barrier')
    for w in range(4): g(f'ds_read_b128 {v4(8 + 4 * w)}, v2 offset:{L_W + 128 * w}')
    lgkm(2)
    g('v_pk_add_f32 v[8:9], v[8:9], v[12:13]\nv_pk_add_f32 v[10:11], v[10:11], v[14:15]')
    lgkm(1)
    g('v_pk_add_f32 v[8:9], v[8:9], v[16:17]\nv_pk_add_f32 v[10:11], v[10:11], v[18:19]')
    lgkm(0)
    g('v_pk_add_f32 v[10:11], v[10:11], v[22:23]\nv_pk_add_f32 v[8:9], v[8:9], v[20:21]')
    fp24_pack(24, 8, sT + 8)
    own_store(4, f'global_store_dwordx4 v3, v[24:27], {p(sWS)}', sT)
    g.stamp(12)
    if DPF: g('LAe2:\ns_barrier')
    g('LAend:')
    g.end()
    g.flush_tail()
    vW, vWP, vA = 40, 72, 16
    g('.p2align 12\nPA4:\ns_branch LAres')
    g(f"""
    LNW:
    """)
    if WH: g(f's_and_b32 s{sT}, s{sWAVE}, 1\ns_lshr_b32 s{sT+1}, s{sWAVE}, 1\ns_lshl1_add_u32 s{sT}, s{sT}, s{sT+1}\ns_lshl3_add_u32 s{sT}, s{sG}, s{sT}\ns_lshl_b32 s{sT}, s{sT}, 16')
    else: g(f's_lshl2_add_u32 s{sT}, s{sG}, s{sWAVE}\ns_lshl_b32 s{sT}, s{sT}, 17')
    g(f"""
    s_lshl_b32 s{sT+1}, s{sJ}, 6
    s_add_u32 s{sT}, s{sT}, s{sT+1}
    s_addk_i32 s{sT}, 4096
    v_and_b32 v4, 15, v1
    v_lshrrev_b32 v5, 4, v1
    v_lshlrev_b32 v3, 10, v5
    v_lshl_add_u32 v3, v4, 2, v3
    v_add_u32 v3, s{sT}, v3
    s_movk_i32 s{sT+2}, 0x2000
    """)

    def wo_issue(a=0, b=32):
        for n in range(a, b):
            g(f'global_load_dword v{vW + n}, v3, {p(sWP)} offset:{-4096 if n % 2 == 0 else 0} {NTO}')
            if n % 2 == 1 and n != 31: g(f'v_add_u32 v3, {200 * 1024 if WH and n == 15 else "s%d" % (sT+2)}, v3')
    wo_issue(0, WO[0])
    g('s_waitcnt lgkmcnt(0)\ns_barrier')
    g(f"""
    v_bfe_u32 v2, v1, 3, 2
    v_lshl_add_u32 v2, s{sWAVE}, 2, v2
    v_mul_u32_u24 v2, {H3A_S}, v2
    v_and_b32 v5, 7, v1
    v_lshl_add_u32 v2, v5, 3, v2
    v_and_b32 v5, 32, v1
    v_lshl_add_u32 v2, v5, 1, v2
    s_add_u32 s{sT}, s{sT+6}, 2048
    v_add_u32 v2, s{sT}, v2
    s_lshr_b32 s{sT}, s{sG}, 2
    v_xor_b32 v6, s{sT}, v4
    s_lshl_b32 s{sT}, s{sWAVE}, 7
    v_lshl_add_u32 v6, v6, 3, s{sT}
    v_and_b32 v7, 1, v0
    v_mul_u32_u24 v7, 0xaaaa, v7
    v_add_u32 v7, 0x4444, v7
    """)
    wl = f'global_load_dwordx2 v[8:9], v2, {p(sWS)} sc1'
    for i in range(8): g(f'v_mov_b64 {v2(vA+2*i)}, 0')

    def wo_pair(a, b, extra):
        ks = list(range(a // 2, b // 2))
        while ks:
            n = 4 if len(ks) > 4 else 2
            g(f's_waitcnt vmcnt({b - 2 * ks[:n][-1] - 2 + extra})')
            for k in ks[:n]: g(f'v_perm_b32 v{vWP+bslot(k)}, v{vW+2*k+1}, v{vW+2*k}, s{sSLO}\nv_perm_b32 v{vWP+16+bslot(k)}, v{vW+2*k+1}, v{vW+2*k}, s{sSHI}')
            ks = ks[n:]
    if WO[1]:
        g('s_barrier')
        wo_issue(WO[0], WO[0] + WO[1])
    wo_pair(0, WO[0] + WO[1], 0)
    if WO[2]:
        g('s_barrier')
        wo_issue(32 - WO[2], 32)
        g(wl)
        wo_pair(32 - WO[2], 32, 1)
    g.stamp(8)

    def wmid():
        for m in (1, 2, 3): g.dpp('v_mov_b32', 12 + m, 8, None, f'row_shl:{4 * m}')
        g('v_mov_b32 v12, v8\ns_nop 0')
    g.poll(lambda: g(wl), [9], None, mask=1, issued=WO[2] > 0, mid=wmid)
    g.stamp(11)
    for a in range(4):
        g(f'v_smfmac_f32_16x16x64_bf16 {v4(vA + 4 * a)}, v[12:15], v[{vWP+8*a}:{vWP+8*a+7}], v7')
    g(f"""
    s_mov_b64 exec, 0xffff
    s_nop 4
    v_pk_add_f32 {v2(vA)}, {v2(vA)}, {v2(vA+6)}
    v_add_f32 v{vA}, v{vA}, v{vA+1}
    v_pk_add_f32 {v2(vA+8)}, {v2(vA+8)}, {v2(vA+14)}
    v_add_f32 v{vA+1}, v{vA+8}, v{vA+9}
    ds_write_b64 v6, {v2(vA)} offset:{L_W}
    s_mov_b64 exec, -1
    """)
    sentinel(3, 0, 1)
    g(f"""
    s_waitcnt lgkmcnt(0)
    s_barrier
    """)
    g.stamp(10)
    if opt.get('dirty'):
        g(f's_lshl_b32 s{sT}, s2, 14\ns_add_u32 s{sT}, s{sT}, 0x400000\nv_lshl_add_u32 v2, v0, 4, s{sT}\ns_barrier')
        for i in range(int(opt['dirty'])): g(f'global_store_dwordx4 v2, v[16:19], {p(sWS)}\nv_add_u32 v2, 4096, v2')
    if DPF:
        g(f"""
        s_lshl2_add_u32 s{sT}, s{sJ}, s{sWAVE}
        s_mul_i32 s{sT}, s{sT}, 28
        v_add_lshl_u32 v2, v1, s{sT}, 3
        s_xor_b32 s{sT}, s{sG}, {DX}
        v_add_lshl_u32 v2, v2, s{sT}, 7
        s_mov_b64 exec, 0xfffffff
        s_barrier
        global_load_dword v8, v2, s[40:41] {NTD}
        """)
    g.end()
    vA, sST, sBS = 76, sT + 8, (10, 14, 26, 6)
    LAG = int(opt.get('lag', 24))

    def wdst(m, c, k):
        return 72 + m if k == 16 else 8 + 32 * m + 16 * c + bslot(k)

    def wpair(u):
        k, m = u >> 1, u & 1
        g(f'v_perm_b32 v{wdst(m, 0, k)}, v{wdst(m, 1, k)}, v{wdst(m, 0, k + 1)}, s{sSLO}\nv_perm_b32 v{wdst(m, 1, k)}, v{wdst(m, 1, k)}, v{wdst(m, 0, k + 1)}, s{sSHI}')
    g.pad('PQ5', 'Lexit1')
    g('Lload64:')
    for n in range(64):
        k, m, e = n >> 2, (n >> 1) & 1, n & 1
        g(f'global_load_dword v{wdst(m, 1, k) if e else wdst(m, 0, k + 1)}, v4, {p(sBS[n & 3])} {opt.get("nt64", NT)}')
        if n % 4 == 3 and n != 63: g(f'v_add_u32 v4, s{sST + (n == 31)}, v4')
        if n == 31:
            for i in range(8): g(f'v_mov_b64 {v2(vA+2*i)}, 0')
            g(f's_swappc_b64 {p(sRET)}, {p(sRET)}')
        if n >= LAG + 7 and n % 8 == 7 and n != 63:
            g(f's_waitcnt vmcnt({LAG})')
            for u in range((n - LAG - 7) // 2, (n - LAG - 7) // 2 + 4): wpair(u)
    g(f's_setpc_b64 {p(sRET)}')

    def pair_tail(extra):
        for us in [range(u, u + 4) for u in range(28 - LAG // 2, 28, 4)] + [range(28, 30), range(30, 32)]:
            g(f's_waitcnt vmcnt({min(63, 62 - 2 * us[-1] + extra)})')
            for u in us: wpair(u)

    def f_setup():
        consts()
        g(f's_and_b32 s{sJ}, s{sJ}, 7\ns_lshl3_add_u32 s{sPM}, s{sG}, s{sJ}\ns_lshl_b32 s{sW8}, s{sWAVE}, 3')
    SMB = [x for x in opt.get('smb', 'G1').split('.') if x]
    DB = int(opt.get('db', 1))
    if DIAG >= 0: g('LFH:\ns_endpgm')
    g(f'LFH{"x" if DIAG >= 0 else ""}:\ns_mov_b64 exec, -1\ns_waitcnt lgkmcnt(0)\ns_load_dword s{sTAG}, {p(sWS)}, 0')
    f_setup()
    g(f"""
    s_xor_b32 s{sPM}, s{sPM}, {DX * 8}
    v_bfe_u32 v2, v1, 3, 1
    v_bfe_u32 v3, v1, 4, 1
    v_lshl_add_u32 v5, v2, 1, v3
    v_and_b32 v6, 3, v1
    v_lshl_add_u32 v6, v5, 2, v6
    v_lshlrev_b32 v6, 5, v6
    v_lshl_add_u32 v5, s{sPM}, 2, v5
    v_lshlrev_b32 v7, 2, v5
    v_bfe_u32 v4, v1, 2, 1
    v_cmp_ne_u32 {p(sT+4)}, v4, v3
    """)
    base(sT, MOD_REP, MOD + 4096 + 3072)
    g(f'v_lshl_add_u32 v3, v5, 3, s{sT}')
    base(sT, H4_REP, H4)
    g(f"""
    v_lshl_add_u32 v2, s{sPM}, 1, v2
    v_lshl_add_u32 v2, v2, 4, s{sT}
    v_and_b32 v4, 7, v1
    v_lshl_add_u32 v4, v4, 11, v2
    s_waitcnt lgkmcnt(0)
    """)
    mk_tag()
    fp24_consts(sT + 8)
    g('s_barrier\n' * ((6 if SMB else 5) + DB))
    g(f'global_load_dword v8, v7, {p(sX)}')
    g.poll(lambda: g(f"""
        global_load_dwordx2 v[10:11], v3, {p(sWS)} offset:-3072 sc1
        global_load_dwordx2 v[12:13], v3, {p(sWS)} offset:3072 sc1
        global_load_dwordx4 v[16:19], v4, {p(sWS)} sc1"""), [11, 13, 19], 14)
    g.stamp(8)
    for r in (8, 10, 12): g.unpack(r, r)
    fp24_unpack(16, sT + 8)
    g(f'v_cndmask_b32 v14, v16, v18, {p(sT+4)}\nv_cndmask_b32 v15, v17, v19, {p(sT+4)}')
    for s in ('quad_perm:[1,0,3,2]', 'quad_perm:[2,3,0,1]', 'row_half_mirror'):
        g('s_nop 0')
        g.dpp('v_add_f32', 14, 14, 14, s)
        g.dpp('v_add_f32', 15, 15, 15, s)
    g.rb2(14)
    g('v_pk_mul_f32 v[14:15], v[14:15], v[10:11]')
    g.rb2(14)
    g('v_pk_add_f32 v[14:15], v[14:15], v[8:9]')
    g.rb2(14)
    g('s_mov_b64 exec, 0x0f0f0f0f')

    def epoch():
        g(f"""
        s_cmp_lg_u32 s{sPM}, 0
        s_cbranch_scc1 Ldend
        v_mov_b32 v2, 0
        v_mov_b32 v3, s{sTAG}
        global_store_dword v2, v3, {p(sWS)} sc1
        Ldend:
        """)
    if not opt.get('eplate'): epoch()
    g(f"""
    s_barrier
    ds_read_b128 v[16:19], v6 offset:{L_D}
    ds_read_b128 v[20:23], v6 offset:{L_D+16}
    s_waitcnt lgkmcnt(0)
    """)
    g.sum4(16)
    g('s_nop 0')
    for s_ in ('quad_perm:[1,0,3,2]', 'quad_perm:[2,3,0,1]'):
        g('s_nop 0')
        g.dpp('v_add_f32', 16, 16, 16, s_)
        g.dpp('v_add_f32', 17, 17, 17, s_)
    g('v_pk_fma_f32 v[16:17], v[16:17], v[12:13], v[14:15]')
    if opt.get('perturb'):
        import struct
        kind, val = opt['perturb'].split(':')
        u = struct.unpack('<I', struct.pack('<f', float(val)))[0]
        if kind == 'one':
            g(f'v_cmp_eq_u32 vcc, 4, v7\nv_add_f32 v18, {u:#x}, v16\ns_nop 0\nv_cndmask_b32 v16, v16, v18, vcc')
        elif kind == 'all':
            g(f'v_add_f32 v16, {u:#x}, v16\nv_subrev_f32 v17, {u:#x}, v17')
        else:
            g(f'v_mul_f32 v16, {u:#x}, v16\nv_mul_f32 v17, {u:#x}, v17')
    g(f"""
    v_cvt_pk_bf16_f32 v16, v16, v17
    global_store_dword v7, v16, {p(sOUT)} {opt.get('outf', '').replace('_', ' ')}
    """)
    g.stamp(10)
    if opt.get('eplate'): epoch()
    g.end()
    g('.p2align 12\nLM:')
    if DIAG == 0: g('s_waitcnt lgkmcnt(0)\ns_branch Lexit')
    f_setup()
    vW, vA, vT, vS = 8, 40, 48, 80
    vLW, vLR, vPA = 81, 82, 83
    g(f"""
    v_lshrrev_b32 v4, 1, v0
    v_and_b32 v5, 1, v0
    v_mul_u32_u24 v4, {4*6144}, v4
    v_lshl_add_u32 v4, v5, 4, v4
    s_lshl_b32 s{sT}, s{sPM}, 5
    s_addk_i32 s{sT}, 3072
    v_add_u32 v4, s{sT}, v4
    v_add_u32 v3, 12288, v4
    v_lshlrev_b32 v6, 2, v0
    s_lshl_b32 s{sT}, s{sJ}, 6
    v_lshrrev_b32 v120, 2, v0
    v_add_u32 v120, s{sT}, v120
    v_bfe_u32 v122, v0, 1, 1
    v_mad_u32_u24 v120, v120, 48, v122
    s_lshl_b32 s{sT}, s{sG}, 1
    v_add_lshl_u32 v120, v120, s{sT}, 7
    s_waitcnt lgkmcnt(0)
    """)
    g.stamp(1)
    if int(opt.get('mpf', 0)): g(f'global_load_dword v121, v120, {p(sWM)} {NT}')
    g(f"""
    global_load_dword v6, v6, {p(sC)}
    global_load_dwordx4 {v4(vW)}, v4, {p(sWM)} offset:-3072 {NT}
    global_load_dwordx4 {v4(vW+4)}, v4, {p(sWM)} offset:3072 {NT}
    global_load_dwordx4 {v4(vW+8)}, v3, {p(sWM)} offset:-3072 {NT}
    global_load_dwordx4 {v4(vW+12)}, v3, {p(sWM)} offset:3072 {NT}
    s_load_dword s{sTAG}, {p(sWS)}, 0
    """)
    XM = 1 if OWN & 3 else 0
    if XM:
        xcc_addr()
        g('v_or_b32 v126, 16, v126' + XLD)
    for i in range(8): g(f'v_mov_b32 v{vA+i}, 0')
    g(f"""
    v_lshrrev_b32 v{vT}, 4, v1
    v_lshl_add_u32 v{vT}, v{vT}, 1, v5
    v_lshl_add_u32 v{vLW}, v{vT}, 5, s{sW8}
    """)
    if H1X4:
        g(f"""
        v_and_b32 v{vT}, 1, v1
        v_bfe_u32 v{vT+1}, v1, 1, 1
        v_lshl_add_u32 v{vT}, v{vT}, 2, v{vT+1}
        v_lshlrev_b32 v{vLR}, 5, v{vT}
        v_and_b32 v{vT}, 3, v1
        v_bfe_u32 v{vT+1}, v1, 2, 3
        v_mul_u32_u24 v{vT+1}, {H1_REP}, v{vT+1}
        v_lshl_add_u32 v{vPA}, v{vT}, 4, v{vT+1}
        """)
    else:
        g(f"""
        v_and_b32 v{vT}, 3, v1
        v_bfe_u32 v{vT+1}, v1, 2, 1
        v_lshl_add_u32 v{vT}, v{vT}, 1, v{vT+1}
        v_lshlrev_b32 v{vLR}, 5, v{vT}
        v_and_b32 v{vT}, 7, v1
        v_lshrrev_b32 v{vT+1}, 3, v1
        v_mul_u32_u24 v{vT+1}, {H1_REP}, v{vT+1}
        v_lshl_add_u32 v{vPA}, v{vT}, 3, v{vT+1}
        """)
    g(f"""
    s_mul_i32 s{sT}, s{sPM}, {PS}
    s_add_u32 s{sT}, s{sT}, {H1}
    v_add_u32 v{vPA}, s{sT}, v{vPA}
    s_waitcnt vmcnt({4 + XM})
    """)
    g.unpack(vT, 6)
    g.silu2(vT, vT + 2)
    g(f'v_cvt_pk_bf16_f32 v{vS}, v{vT}, v{vT+1}')
    g('s_waitcnt lgkmcnt(0)')
    mk_tag()
    g(f'v_mov_b32 v85, s{sTAG}\nv_mov_b32 v87, s{sTAG}')
    for k in range(2):
        g(f's_waitcnt vmcnt({2 - 2 * k + XM})')
        if k: g.stamp(2)
        g.pair(vT + 8 * k, vW + 8 * k, vW + 8 * k + 4, 4)
        for c in range(8): g.dpp('v_dot2c_f32_bf16', vA + c, vS, vT + 8 * k + c, f'quad_perm:[{k},{k},{k+2},{k+2}]')
    g.red8(vA, 2)

    def fin_pairs(lds, nw, x4=0):
        l = g.lab('nm')
        g(f"""
        ds_write_b64 v{vLW}, {v2(vA)} offset:{lds}
        """)
        if nw == 1 and XM:
            g('s_waitcnt vmcnt(0)')
            xcc_test()
            g(f's_mov_b32 s{sT+6}, -1\ns_mov_b32 s{sT+7}, {0 if x4 else -1}')
            own_masks(1, sT + 2, 4 if x4 else 8, p(sT + 6))
        if nw == 2 and OWN & 2:
            own_masks(2, sT + 2, 16, -1, f's_and_b32 s{sT+2}, s{sG}, 3\ns_lshl_b32 s{sT+2}, s{sT+2}, 4\ns_lshr_b32 s{sT}, s{sG}, 2\ns_xor_b32 s{sT}, s{sT}, s{sWAVE}\ns_or_b32 s{sLOC}, s{sLOC}, s{sT}')
        g(f"""
        s_waitcnt lgkmcnt(0)
        s_barrier
        s_cmp_ge_u32 s{sWAVE}, {nw}
        s_cbranch_scc1 {l}
        ds_read_b128 {v4(vT)}, v{vLR} offset:{lds}
        ds_read_b128 {v4(vT+4)}, v{vLR} offset:{lds+16}
        """)
        if x4:
            g(f'ds_read_b128 {v4(vT+8)}, v{vLR} offset:{lds+64}\nds_read_b128 {v4(vT+12)}, v{vLR} offset:{lds+80}\ns_mov_b32 exec_hi, 0')
        lgkm(2 if x4 else 0)
        g.sum4(vT)
        g(f'v_cvt_pk_bf16_f32 v84, v{vT}, v{vT+1}')
        if x4:
            lgkm(0)
            g.sum4(vT + 8)
            g(f'v_cvt_pk_bf16_f32 v86, v{vT+8}, v{vT+9}')
            own_store(1, f'global_store_dwordx4 v{vPA}, v[84:87], {p(sWS)}', sT + 2)
            g('s_mov_b32 exec_hi, -1')
        else:
            own_store(nw, f'global_store_dwordx2 v{vPA}, v[84:85], {p(sWS)}', sT + 2)
        g(f"""
        {l}:
        s_barrier
        """)
    fin_pairs(L_MP, 1, H1X4)
    g.stamp(3)
    if 0 <= DIAG <= 2: g.end()
    stream(SM1 + ('' if 'R' in opt.get('sq0', '') else '.R'))
    g.pad('PM1', 'Lexit1')
    g(f"""
    v_lshrrev_b32 v4, 2, v0
    v_and_b32 v5, 3, v0
    v_mul_u32_u24 v4, {8*6144}, v4
    v_lshl_add_u32 v4, v5, 4, v4
    s_lshl_b32 s{sT}, s{sPM}, 6
    s_addk_i32 s{sT}, {2048 + 3072}
    v_add_u32 v4, s{sT}, v4
    s_movk_i32 s{sT}, 12288
    """)
    for k in range(4):
        g(f'global_load_dwordx4 {v4(vW+8*k)}, v4, {p(sWM)} offset:-3072 {NT}\nglobal_load_dwordx4 {v4(vW+8*k+4)}, v4, {p(sWM)} offset:3072 {NT}')
        if k != 3: g(f'v_add_u32 v4, s{sT}, v4')
    SMB = [x for x in opt.get('smb', 'G1').split('.') if x]
    if SMB:
        g('s_barrier')
        stream('.'.join(SMB), True)
    for i in range(8): g(f'v_mov_b32 v{vA+i}, 0')
    g(f"""
    v_lshrrev_b32 v{vT}, 4, v1
    v_lshl_add_u32 v{vT}, v{vT}, 2, v5
    v_lshl_add_u32 v{vLW}, v{vT}, 5, s{sW8}
    v_bfe_u32 v{vT}, v1, 2, 2
    v_lshl_add_u32 v{vT}, v5, 2, v{vT}
    v_lshlrev_b32 v{vLR}, 5, v{vT}
    v_and_b32 v{vT}, 15, v1
    v_bfe_u32 v{vT+1}, v0, 4, 3
    v_mul_u32_u24 v{vT+1}, {MOD_REP}, v{vT+1}
    v_lshl_add_u32 v{vPA}, v{vT}, 3, v{vT+1}
    s_lshl_b32 s{sT}, s{sPM}, 7
    s_add_u32 s{sT}, s{sT}, {MOD + 4096}
    v_add_u32 v{vPA}, s{sT}, v{vPA}
    """)
    for k in range(4):
        g(f's_waitcnt vmcnt({6 - 2 * k + len(SMB)})')
        if k == 3: g.stamp(4)
        g.pair(vT + 8 * k, vW + 8 * k, vW + 8 * k + 4, 4)
        for c in range(8): g.dpp('v_dot2c_f32_bf16', vA + c, vS, vT + 8 * k + c, f'quad_perm:[{k},{k},{k},{k}]')
    g.red8(vA, 4)
    g.pad('PM2', 'Lexit1')
    fin_pairs(L_RP, 2)
    g.stamp(5)
    stream(SM2)
    if DIAG >= 0: g.end()
    vW, vWP, vA, vT = 16, 48, 80, 96
    g(f"""
    v_and_b32 v4, 16, v1
    v_and_b32 v5, 32, v1
    v_lshlrev_b32 v4, 6, v4
    v_lshl_add_u32 v4, v5, 1, v4
    v_and_b32 v5, 12, v1
    v_lshl_add_u32 v4, v5, 2, v4
    v_lshl_add_u32 v4, s{sWAVE}, 8, v4
    v_and_b32 v6, 3, v1
    v_lshlrev_b32 v4, {4 if 'D' in opt.get('skip', '') else 10}, v4
    v_lshl_add_u32 v4, v6, 2, v4
    s_xor_b32 s{sT}, s{sPM}, {DX * 8}
    s_lshl4_add_u32 s{sT}, s{sT}, 4096
    v_add_u32 v4, s{sT}, v4
    v_lshlrev_b32 v6, 7, v6
    v_lshl_add_u32 v6, v5, 1, v6
    v_lshl_add_u32 v6, s{sWAVE}, 5, v6
    v_and_b32 v7, 1, v0
    v_mul_u32_u24 v7, 0xaaaa, v7
    v_add_u32 v7, 0x4444, v7
    s_mov_b32 s{sT+4}, 0x00f0000f
    s_mov_b32 s{sT+5}, 0xf0000f00
    """)
    for i in range(16): g(f'v_mov_b64 {v2(vW+2*i)}, 0')
    for i in range(8): g(f'v_mov_b64 {v2(vA+2*i)}, 0')
    base(sT, H5_REP, H5)
    g(f"""
    v_lshl_add_u32 v2, v0, 4, s{sT}
    s_cmp_eq_u32 s{sWAVE}, 3
    s_cselect_b32 s{sT}, 0, 4096
    v_add_u32 v3, s{sT}, v2
    s_cselect_b32 exec_lo, 0xffff, -1
    s_mov_b32 exec_hi, exec_lo
    s_barrier
    """)
    g.stamp(6)
    for n in range(32):
        g(f'global_load_dword v{vW + n}, v4, {p(sDOWN)} offset:{1024 * (n & 7) - 4096} {opt.get("ntdr", NTD)}')
        if n % 8 == 7 and n != 31: g(f'v_add_u32 v4, {(120 if n == 15 else 8) * 1024}, v4')
    g('s_mov_b64 exec, -1\ns_branch Lpm3\nPM3:\ns_endpgm\nLpm3:')
    h5 = lambda: g(f'global_load_dwordx4 {v4(vT)}, v2, {p(sWS)} sc1\nglobal_load_dwordx4 {v4(vT+4)}, v3, {p(sWS)} sc1')
    DB = int(opt.get('db', 1))
    if DB: g('s_barrier')
    h5()
    for q in range(4):
        g(f's_waitcnt vmcnt({26 - 8 * q})')
        for u in range(4 * q, 4 * q + 4):
            d = 8 * ((u >> 2) & 1) + 4 * (u >> 3) + 2 * (u & 1) + ((u >> 1) & 1)
            g(f'v_perm_b32 v{vWP+d}, v{vW+2*u+1}, v{vW+2*u}, s{sSLO}\nv_perm_b32 v{vWP+16+d}, v{vW+2*u+1}, v{vW+2*u}, s{sSHI}')
    g.stamp(8)
    g.poll(h5, [vT + 3, vT + 7], vT + 8, mask=2, issued=True, mid=lambda: g(f'v_mov_b64 {v2(vT+2)}, {v2(vT+4)}'))
    g.stamp(9)
    for a in range(4):
        g(f'v_smfmac_f32_16x16x64_bf16 {v4(vA + 4 * a)}, {v4(vT)}, v[{vWP+8*a}:{vWP+8*a+7}], v7')
    g(f"""
    s_mov_b64 exec, {p(sT+4)}
    s_nop 4
    v_pk_add_f32 {v2(vA)}, {v2(vA)}, {v2(vA+6)}
    v_add_f32 v{vA}, v{vA}, v{vA+1}
    v_pk_add_f32 {v2(vA+8)}, {v2(vA+8)}, {v2(vA+14)}
    v_add_f32 v{vA+1}, v{vA+8}, v{vA+9}
    ds_write_b64 v6, {v2(vA)} offset:{L_D}
    s_waitcnt lgkmcnt(0)
    s_barrier
    """)
    g.stamp(10)
    g.end()
    vA, vT, vIX, vLW, vLR, vPA, vSS = 76, 92, 74, 75, 109, 124, 125
    vX, vGA, vSB, vCB, vY = 110, 112, 114, 116, 118
    g('.p2align 12\nLQ:')
    if 0 <= DIAG <= 1: g('s_waitcnt lgkmcnt(0)\ns_branch Lexit')
    f_setup()
    g(f"""
    v_and_b32 v5, 32, v0
    v_bfe_u32 v6, v0, 4, 1
    v_lshl_add_u32 v5, v6, 1, v5
    v_lshl_add_u32 v5, s{sWAVE}, 7, v5
    v_and_b32 v6, 15, v0
    v_lshlrev_b32 v4, 13, v5
    v_lshl_add_u32 v4, v6, 2, v4
    s_lshl_b32 s{sT}, s{sPM}, 7
    v_add_u32 v4, s{sT}, v4
    v_and_b32 v7, 7, v0
    v_bfe_u32 v{vT+1}, v0, 3, 1
    v_lshl_add_u32 v{vT}, v7, 1, v{vT+1}
    v_and_or_b32 v3, v0, -16, v{vT}
    v_lshlrev_b32 v7, 2, v3
    v_lshlrev_b32 v2, 4, v1
    s_mov_b32 s{sST}, {4 * 8192}
    s_mov_b32 s{sST+1}, {36 * 8192}
    s_waitcnt lgkmcnt(0)
    """)
    g.stamp(1)
    g(f'global_load_dword v{vY}, v7, {p(sX)}\nglobal_load_dwordx4 {v4(vX)}, v2, {p(sX)}')
    SQ0 = [x for x in opt.get('sq0', '').split('.') if x]
    if SQ0: stream(opt['sq0'])
    for b, o in zip(sBS[1:], (8192, 64, 8256)): g(f's_add_u32 s{b}, s{sWQ}, {o}\ns_addc_u32 s{b+1}, s{sWQ+1}, 0')
    g(f"""
    {'s_waitcnt lgkmcnt(0)' if STAMPS else ''}
    s_call_b64 {p(sRET)}, Lload64
    s_load_dword s{sTAG}, {p(sWS)}, 0
    """)
    xcc_addr()
    g(f's_lshl_b32 s{sT}, s{sJ}, 7')
    base(sT + 1, H2_G, H2, sT)
    g(f'v_lshl_add_u32 v{vPA}, v1, 2, s{sT+1}')
    g(f's_lshr_b32 s{sT}, s{sJ}, 1\ns_lshl_b32 s{sT}, s{sT}, 11\ns_and_b32 s{sT+1}, s{sJ}, 1\ns_lshl2_add_u32 s{sT}, s{sT+1}, s{sT}')
    base(sT + 1, H2_G, H2 + 1024, sT)
    g(f'v_lshl_add_u32 v{vSS}, v1, 6, s{sT+1}')
    base(sT, H1_REP, H1 + 16 * PS)
    g(f'v_lshrrev_b32 v2, 3, v3\nv_mul_u32_u24 v2, {PS - 64}, v2\nv_lshl_add_u32 v2, v3, 3, v2\nv_add_u32 v2, s{sT}, v2')
    h1 = lambda: g(f'global_load_dwordx2 {v2(vSB)}, v2, {p(sWS)} offset:{-16 * PS} sc1\nglobal_load_dwordx2 {v2(vCB)}, v2, {p(sWS)} offset:{16 * PS} sc1' + XLD)
    g(f"""
    s_lshl_b32 s{sT}, s{sWAVE}, 8
    s_addk_i32 s{sT}, {L_QP}
    v_lshl_add_u32 v{vLW}, v6, 4, s{sT}
    v_bfe_u32 v{vLR}, v1, 4, 1
    v_lshl_add_u32 v{vLR}, v6, 2, v{vLR}
    v_lshlrev_b32 v{vLR}, 2, v{vLR}
    v_add_u32 v{vLR}, {L_QP}, v{vLR}
    v_and_b32 v{vIX}, 1, v0
    v_mul_u32_u24 v{vIX}, 0xaaaa, v{vIX}
    v_add_u32 v{vIX}, 0x4444, v{vIX}
    v_mov_b32 v7, 0
    v_mov_b32 v{vT}, 0
    v_mov_b32 v{vT+1}, 0
    s_mov_b32 s{sT}, 0x3f803f80
    s_waitcnt vmcnt({32 + len(SQ0)})
    """)
    for i in range(4): g(f'v_dot2c_f32_bf16 v{vT}, s{sT}, v{vX+i}\nv_dot2c_f32_bf16 v{vT+1}, v{vX+i}, v{vX+i}')
    g.unpack(vY, vY)
    g(f's_nop 0\nv_permlane32_swap_b32 v{vT}, v{vT+1}\nv_add_f32 v{vT}, v{vT}, v{vT+1}')
    for s_ in ROT:
        g('s_nop 1')
        g.dpp('v_add_f32', vT, vT, vT, s_)
    g(f"""
    s_nop 1
    v_add_f32_dpp v{vT}, v{vT}, v{vT} row_bcast:15 row_mask:0xa bank_mask:0xf
    s_nop 0
    v_readlane_b32 s{sT}, v{vT}, 31
    v_readlane_b32 s{sT+1}, v{vT}, 63
    s_nop 0
    v_mov_b32 v{vT}, s{sT}
    v_mov_b32 v{vT+1}, s{sT+1}
    """)
    g.stats_fin(vT)
    g.ln_apply(vY, vT)
    g('s_waitcnt lgkmcnt(0)')
    mk_tag()
    g(f'v_mov_b32 v123, s{sTAG}\ns_swappc_b64 {p(sRET)}, {p(sRET)}')
    g.stamp(2)
    h1()
    pair_tail(3)
    g.stamp(4)
    g.poll(h1, [vSB + 1, vCB + 1], vT, issued=True, mask=1, pad='.p2align 6\nPQ3:\ns_endpgm')
    g.stamp(5)
    g.unpack(vCB, vCB)
    g(f'v_add_f32 v{vCB}, 1.0, v{vCB}\nv_add_f32 v{vCB+1}, 1.0, v{vCB+1}')
    xcc_test()
    g.rb2(vCB)
    g(f'v_pk_mul_f32 {v2(vY)}, {v2(vY)}, {v2(vCB)}')
    g.rb2(vY)
    g.unpack(vSB, vSB)
    g(f'v_pk_add_f32 {v2(vT)}, {v2(vY)}, {v2(vSB)}')

    def smf(a, st, A):
        b = 8 + 32 * (a & 1) + 16 * (a >> 1) + 8 * st
        g(f'v_smfmac_f32_16x16x64_bf16 {v4(vA + 4 * a)}, {v4(A)}, v[{b}:{b+7}], v{vIX}')
    A0, A1 = vT + 4, vT + 8
    g(f'v_cvt_pk_bf16_f32 v{A0}, v{vT}, v{vT+1}\ns_cmp_lg_u32 s{sWAVE}, 0\ns_nop 0')
    for m in (1, 2, 3): g.dpp('v_mov_b32', A0 + m, A0, None, f'row_shl:{4 * m}')
    for m in (0, 1): g.dpp('v_mov_b32', A1 + m, A0, None, f'row_shl:{4 * m + 2}')
    for st in range(2):
        for a in range(4):
            smf(a, st, A1 if st else A0)
            if st == 0 and a < 2: g.dpp('v_mov_b32', A1 + 2 + a, A0, None, f'row_shl:{4 * a + 10}')
    g('s_mov_b64 exec, 0xffff\ns_nop 3')
    for a in range(4): g(f'v_add_f32 v{vT+a}, v{vA+4*a}, v{vA+4*a+1}')
    g(f'ds_write_b128 v{vLW}, {v4(vT)}\ns_mov_b64 exec, -1\ns_waitcnt lgkmcnt(0)\ns_barrier\ns_cbranch_scc1 LQ3')
    for w in range(4): g(f'ds_read2_b32 {v2(vT+2*w)}, v{vLR} offset0:{64*w} offset1:{64*w+2}')
    g('s_mov_b32 exec_hi, 0\ns_waitcnt lgkmcnt(0)')
    g.sum4(vT)
    g(f'v_cvt_pk_bf16_f32 v122, v{vT}, v{vT+1}')
    g.store_local([f'global_store_dword v{vPA}, v122, {p(sWS)}'])
    g('s_waitcnt vmcnt(0)')
    g.store_local([f'global_store_dword v{vSS}, v123, {p(sWS)}'])
    g(f's_mov_b64 exec, -1\nLQ3:\ns_barrier')
    g.stamp(6)
    stream(SQ)
    if DIAG >= 0: g.end()
    g(f's_cmp_eq_u32 s{sG}, 7\ns_cbranch_scc1 Lexit\nv_lshlrev_b32 v2, 2, v3\nglobal_load_dword v{vX}, v2, {p(sX)}')
    base(sT, MOD_REP, MOD + 4096 + 2048)
    g(f'v_lshl_add_u32 v2, v3, 3, s{sT}')
    base(sT, H4_REP, H4 + 4096)
    g(f"""
    v_and_b32 v{vLR}, 15, v3
    v_bfe_u32 v{vT+1}, v1, 4, 1
    v_lshl_add_u32 v{vLR}, v{vLR}, 1, v{vT+1}
    v_lshrrev_b32 v{vT}, 5, v1
    v_lshl_add_u32 v{vLR}, v{vLR}, 1, v{vT}
    v_lshlrev_b32 v{vLR}, 2, v{vLR}
    v_add_u32 v{vLR}, {L_GP}, v{vLR}
    v_lshlrev_b32 v{vLW}, 4, v0
    v_lshl_add_u32 v{vSS}, v{vT+1}, 1, v{vT}
    v_lshlrev_b32 v{vSS}, 2, v{vSS}
    v_lshl_add_u32 v{vSS}, s{sWAVE}, 10, v{vSS}
    v_lshrrev_b32 v{vT}, 1, v3
    v_and_b32 v{vT+1}, 1, v3
    v_lshl_add_u32 v{vT}, v{vT}, 4, s{sT}
    v_lshl_add_u32 v3, v{vT+1}, 13, v{vT}
    v_mul_u32_u24 v4, 3584, v5
    v_lshl_add_u32 v4, v6, 2, v4
    s_lshl_b32 s{sT}, s{sPM}, 6
    v_add_u32 v4, s{sT}, v4
    s_movk_i32 s{sST}, {4 * 3584}
    s_mov_b32 s{sST+1}, {36 * 3584}
    s_mov_b64 {p(sBS[0])}, {p(sGATE)}
    s_add_u32 s{sBS[1]}, s{sGATE}, 3584
    s_addc_u32 s{sBS[1]+1}, s{sGATE+1}, 0
    s_mov_b64 {p(sBS[2])}, {p(sUP)}
    s_add_u32 s{sBS[3]}, s{sUP}, 3584
    s_addc_u32 s{sBS[3]+1}, s{sUP+1}, 0
    v_lshrrev_b32 v{vT}, 3, v1
    v_mul_u32_u24 v{vT}, {H5_REP}, v{vT}
    v_and_b32 v{vT+1}, 7, v1
    v_lshl_add_u32 v{vPA}, v{vT+1}, 4, v{vT}
    s_mov_b32 s{sT+4}, {INV512:#x}
    s_mov_b32 s{sT+5}, {INV512:#x}
    v_mov_b32 v126, 0
    v_mov_b32 v127, {EPS:#x}
    s_lshl_b32 s{sT}, s{sPM}, 7
    s_add_u32 s{sT}, s{sT}, {H5}
    v_add_u32 v{vPA}, s{sT}, v{vPA}
    """)
    fp24_consts(sT + 12)
    own_masks(8, 20, 8, -1)
    g('s_barrier')
    g.stamp(8)

    hr = lambda: g(f"""
        global_load_dwordx2 {v2(vGA)}, v2, {p(sWS)} offset:-2048 sc1
        global_load_dwordx2 {v2(vSB)}, v2, {p(sWS)} sc1
        global_load_dwordx2 {v2(vCB)}, v2, {p(sWS)} offset:2048 sc1""")

    def h4loads():
        for i in range(4):
            g(f'global_load_dwordx4 {v4(vT + 4 * i)}, v3, {p(sWS)} offset:{i * 2048 - 4096} sc1')
    g(f's_branch LG2\nPQ2:\ns_endpgm\nLG2:')
    if STAMPS: g('s_waitcnt lgkmcnt(0)')
    if 'G' not in opt.get('skip', ''): g(f's_call_b64 {p(sRET)}, Lload64\ns_swappc_b64 {p(sRET)}, {p(sRET)}')
    hr()
    h4loads()
    pair_tail(7)
    g.stamp(9)
    g.poll(hr, [vGA + 1, vSB + 1, vCB + 1], vT + 16, issued=True, first=4)
    g.stamp(7)
    AG = (4, 120)

    def arows(src, bank, ms):
        for st, m in ms:
            rot = (4 * bank - 4 * m - 2 * st) % 16
            g.dpp('v_mov_b32', AG[st] + m, src, None, f'row_ror:{rot}' if rot else 'quad_perm:[0,1,2,3]', 1 << bank)
    ALL = [(st, m) for st in range(2) for m in range(4)]
    g.unpack(vCB, vCB)
    g(f'v_add_f32 v{vCB}, 1.0, v{vCB}\nv_add_f32 v{vCB+1}, 1.0, v{vCB+1}\nv_cvt_pk_bf16_f32 v{vSB+1}, v{vCB}, v{vCB+1}')
    arows(vSB, 2, ALL)
    arows(vSB + 1, 1, ALL)
    for r in (vX, vGA): g.unpack(r, r)
    g.unpack(vCB, vSB + 1)
    g(f'v_mov_b32 v72, {L_GP + 768 + 8}')
    g.poll(h4loads, [vT + 4 * i + 3 for i in range(4)], vT + 16, issued=True, mid=lambda: [fp24_unpack(vT + 4 * i, sT + 12) for i in range(2)], mask=2, pad='PQ4:\ns_endpgm')
    g.stamp(11)
    for i in range(2, 4): fp24_unpack(vT + 4 * i, sT + 12)
    for a, b in ((2, 6), (10, 14), (0, 4), (2, 10), (8, 12)):
        g(f'v_pk_add_f32 {v2(vT+a)}, {v2(vT+a)}, {v2(vT+b)}')
    g(f'v_pk_fma_f32 {v2(vX)}, {v2(vT+8)}, {v2(vGA)}, {v2(vX)}')
    g.dpp('v_add_f32', vY, vT + 2, vT, 'row_ror:8')
    g.dpp('v_add_f32', vY + 1, vT + 3, vT + 1, 'row_ror:8')
    g(f'v_pk_fma_f32 {v2(vY)}, {v2(vY)}, {v2(vGA)}, {v2(vX)}')
    g(f"""
    v_pk_mul_f32 {v2(vT+4)}, {v2(vY)}, {v2(vCB)}
    v_cvt_pk_bf16_f32 v{vT+4}, v{vT+4}, v{vT+5}
    v_mul_f32 v{vT+1}, v{vY}, v{vY}
    v_add_f32 v{vT}, v{vY}, v{vY+1}
    """)
    arows(vT + 4, 0, ALL[:4])
    g(f'v_fmac_f32 v{vT+1}, v{vY+1}, v{vY+1}')
    arows(vT + 4, 0, ALL[4:5])
    g.stamp(12)
    red = lambda c: g.dpp('v_add_f32', vT, vT, vT, c)
    smf(0, 0, AG[0])
    g(f'v_permlane32_swap_b32 v{vT}, v{vT+1}')
    smf(1, 0, AG[0])
    g(f'v_add_f32 v{vT}, v{vT}, v{vT+1}')
    arows(vT + 4, 0, ALL[5:6])
    smf(2, 0, AG[0])
    arows(vT + 4, 0, ALL[6:8])
    smf(3, 0, AG[0])
    red(ROT[0])
    smf(0, 1, AG[1])
    g(f's_cmp_lg_u32 s{sWAVE}, 0')
    red(ROT[1])
    smf(1, 1, AG[1])
    g(f'v_mov_b32 v{vT+11}, s{sTAG}')
    red(ROT[2])
    smf(2, 1, AG[1])
    g('s_nop 0')
    red(ROT[3])
    smf(3, 1, AG[1])
    g(f"""
    v_add_f32 v{vT+4}, v{vA}, v{vA+1}
    v_add_f32_dpp v{vT}, v{vT}, v{vT} row_bcast:15 row_mask:0xa bank_mask:0xf
    v_add_f32 v{vT+5}, v{vA+4}, v{vA+5}
    ds_write_b32 v{vSS}, v{vT} offset:{L_GP + 768}
    s_mov_b32 exec_hi, 0xffff
    v_add_f32 v{vT+6}, v{vA+8}, v{vA+9}
    s_nop 1
    v_add_f32 v{vT+7}, v{vA+12}, v{vA+13}
    ds_write_b128 v{vLW}, {v4(vT+4)} offset:{L_GP}
    s_mov_b32 exec_hi, -1
    s_cbranch_scc1 LGw
    s_waitcnt lgkmcnt(0)
    s_barrier
    ds_read2st64_b64 v[8:11], v72 offset0:0 offset1:2
    ds_read2st64_b64 v[12:15], v72 offset0:4 offset1:6
    """)
    for w in range(4): g(f'ds_read2st64_b32 {v2(16 + 2 * w)}, v{vLR} offset0:{4 * w} offset1:{4 * w + 1}')
    for w in range(2): g(f'ds_read2st64_b32 {v2(24 + 2 * w)}, v{vLR} offset0:{8 * w + 2} offset1:{8 * w + 6}')
    lgkm(6)
    g.sum4(8)
    g(f"""
    v_pk_fma_f32 v[8:9], v[8:9], {p(sT+4)}, v[126:127]
    v_fma_f32 v9, -v8, v8, v9
    v_max_f32 v9, v9, v127
    v_rsq_f32 v10, v9
    s_waitcnt lgkmcnt(0)
    """)
    g.sum4(16)
    g(f"""
    v_pk_add_f32 v[24:25], v[24:25], v[26:27]
    v_fma_f32 v16, -v8, v17, v16
    v_add_f32 v24, v24, v25
    v_pk_fma_f32 {v2(vT)}, v[16:17], v[10:11], v[24:25] op_sel_hi:[0,0,0]
    s_nop 1
    v_permlane32_swap_b32 v{vT}, v{vT+1}
    v_mul_f32 v{vT+2}, 0xbfb8aa3b, v{vT}
    v_exp_f32 v{vT+2}, v{vT+2}
    v_mul_f32 v{vT}, v{vT}, v{vT+1}
    v_add_f32 v{vT+2}, 1.0, v{vT+2}
    v_rcp_f32 v{vT+1}, v{vT+2}
    s_nop 0
    v_pk_mul_f32 {v2(vT)}, {v2(vT)}, {v2(vT)} op_sel:[0,1] op_sel_hi:[0,1]
    s_nop 1
    v_permlane16_swap_b32 v{vT}, v{vT+1}
    v_cvt_pk_bf16_f32 v{vT+8}, v{vT}, v{vT+1}
    v_cvt_pk_bf16_f32 v{vT+9}, v{vT}, v{vT+1}
    s_nop 0
    """)
    g.dpp('v_mov_b32', vT + 8, vT + 8, None, 'row_ror:8', 0xc)
    g.dpp('v_mov_b32', vT + 9, vT + 9, None, 'row_ror:8', 0x3)
    own_store(8, f'global_store_dwordx4 v{vPA}, {v4(vT+8)}, {p(sWS)}', 20)
    g.stamp(13)
    g.end()
    g(f'LGw:\ns_waitcnt lgkmcnt(0)\ns_barrier')
    g.end()
    g.flush_tail()
    if opt.get('stamps'):
        g(f"""
        Lexit1:
        s_endpgm
        Lexit:
        Lfin:
        s_memrealtime {p(sSTAMP + 28)}
        s_sleep 127
        s_sleep 127
        s_sleep 127
        s_mov_b32 s{sSTAMP + 30}, s{sLOC}
        s_mov_b64 exec, 1
        s_lshl3_add_u32 s{sT}, s2, s{sWAVE}
        s_lshl_b32 s{sT}, s{sT}, 6
        s_add_u32 s{sT}, s{sT}, {STAMP_OFF}
        v_mov_b32 v2, s{sT}
        s_waitcnt lgkmcnt(0)
        """)
        if opt.get('probe'):
            wg, wv, st, T0, mult = map(int, opt['probe'].split(':'))
            g(f"""
            s_cmp_lg_u32 s2, {wg}
            s_cbranch_scc1 Lexit0
            s_cmp_lg_u32 s{sWAVE}, {wv}
            s_cbranch_scc1 Lexit0
            s_sub_u32 s{sT}, s{sSTAMP + 2 * st}, s{sSTAMP}
            s_mul_i32 s{sT}, s{sT}, {mult}
            s_add_u32 s{sT}, s{sT}, {T0}
            s_min_u32 s{sT}, s{sT}, 100000
            Lpad:
            s_memrealtime {p(sT + 2)}
            s_waitcnt lgkmcnt(0)
            s_sub_u32 s{sT+2}, s{sT+2}, s{sSTAMP}
            s_cmp_lt_u32 s{sT+2}, s{sT}
            s_cbranch_scc1 Lpad
            """)
        else:
            for i in range(16):
                g(f'v_mov_b32 v3, s{sSTAMP + 2 * i}\nglobal_store_dword v2, v3, {p(sWS)} offset:{4 * i}')
    else:
        g('Lexit1:\nLexit:')
    g('Lexit0:\ns_endpgm')
    g(f"""
    .section .rodata,"a"
    .p2align 6
    .amdhsa_kernel {K}
    """)
    for d in ('next_free_vgpr 128', 'next_free_sgpr 102', 'accum_offset 128', 'group_segment_fixed_size 0', 'kernarg_size 112',
              'user_sgpr_count 2', 'user_sgpr_kernarg_segment_ptr 1', 'system_sgpr_workgroup_id_x 1', 'float_denorm_mode_32 3'):
        g.L.append('  .amdhsa_' + d)
    g('.end_amdhsa_kernel')
    return '\n'.join(g.L) + '\n'


if __name__ == '__main__':
    opt = {}
    out = sys.argv[1]
    for a in sys.argv[2:]:
        k, _, v = a.partition('=')
        opt[k] = v if _ else True
    open(out, 'w').write(gen(opt))
```

```python
import sys

NAME = 'adaLN_cond__sliding_block_cached__swiglu_ffn__decode'
K = NAME + '_kernel'

MARK = 0x1f000
MOD = 0x01000
MOD_REP = 0x3100
H2 = 0xd4000
H2_G = 73 * 128
H3A = 0x20000
H3A_S = 2176
H3A_G = 16 * H3A_S
H4 = 0xa4000
H4_REP = 0x4100
H5 = 0xc5000
H5_REP = 0x1d00
H1 = 0xe8000
H1_REP = 0x2100
S4 = 0xfa000
STAMP_OFF = 0x1000000
assert MOD + 8 * MOD_REP <= MARK and H5 + 8 * H5_REP <= H2 and H3A + 8 * H3A_G <= H4 and H4 + 8 * H4_REP <= H5

L_FLAG = 0
L_MX = 16
L_SM = 32
L_LOC = 48
L_Q = 64
L_O = 1536
L_W = L_O + 16384
L_MP = 0
L_RP = 256
L_D = 768
L_XS = 0
L_GS = 64
L_QP = 256
L_GP = 2048
LDS_BYTES = L_W + 512

sX, sK, sV, sWQ, sWO, sGATE, sUP, sDOWN, sC, sWM, sOUT, sDBG, sWS = 4, 6, 8, 10, 12, 16, 18, 20, 22, 24, 26, 28, 30
sWAVE = 3
sTAG, sG, sJ, sTO, sSLO, sSHI, sXCC, sLOC, sPM, sROLE = 32, 33, 34, 35, 36, 37, 38, 39, 40, 41
sT = 42
sRET = 60
sW8 = 62
sSTAMP = 64

LOG2E = 0x3fb8aa3b
SCALE = 0x3db504f3
EPS = 0x3727c5ac
INV512 = 0x3b000000


def p(r): return f's[{r}:{r+1}]'
def v2(r): return f'v[{r}:{r+1}]'
def v4(r): return f'v[{r}:{r+3}]'


class G:
    def __init__(self, opt):
        self.L = []
        self.o = opt
        self.nlab = 0

    def __call__(self, s):
        for line in s.strip('\n').split('\n'):
            line = line.strip()
            if line:
                self.L.append(line if line.endswith(':') or line.startswith('.') else '    ' + line)

    def lab(self, n):
        self.nlab += 1
        return f'L{n}{self.nlab}'

    def stamp(self, i):
        if self.o.get('stamps'):
            self(f's_memrealtime {p(sSTAMP + 2 * i)}')

    def dpp(self, op, d, s0, s1, ctrl, bank=0xf):
        if s1 is None:
            self(f'{op}_dpp v{d}, v{s0} {ctrl} row_mask:0xf bank_mask:{bank:#x}')
        else:
            self(f'{op}_dpp v{d}, v{s0}, v{s1} {ctrl} row_mask:0xf bank_mask:{bank:#x}')

    def poll(self, loads, tags, tmp, issued=False, tag=sTAG, mid=None, pad='', mask=0, pre=None, first=0, fill=''):
        r, l = self.lab('retry'), self.lab('poll')
        if first: self(f's_waitcnt vmcnt({first})')
        TO = f's_sub_u32 s{sTO}, s{sTO}, 1\ns_cbranch_scc1 Lexit'
        self(f's_branch {l}\n{pad}\n{r}:')
        if self.o.get('toe'): self(TO)
        if self.o.get('nomask'): mask = 0
        if pre: pre()
        if mask: self('s_mov_b64 exec, vcc')
        if not issued: self(f'{l}:')
        loads()
        if mask == 1: self('s_mov_b64 exec, -1')
        if not self.o.get('toe'): self(TO)
        self(fill)
        if issued and not first: self(f'{l}:')
        self('s_waitcnt vmcnt(0)')
        if first: self(f'{l}:')
        if len(tags) == 1:
            self(f'v_cmp_ne_u32 vcc, s{tag}, v{tags[0]}')
        else:
            self(f'v_bitop3_b32 v{tmp}, v{tags[0]}, s{sTAG}, v{tags[1]} bitop3:0x7e')
            for t in tags[2:]:
                self(f'v_bitop3_b32 v{tmp}, v{t}, s{sTAG}, v{tmp} bitop3:0xbe')
            self(f'v_cmp_ne_u32 vcc, 0, v{tmp}')
        if mid: mid()
        if mask == 2: self('s_mov_b64 exec, -1')
        self(f's_cbranch_vccnz {r}')

    def pair(self, dst, a, b, W):
        for c in range(2 * W):
            self(f'v_perm_b32 v{dst + c}, v{b + c // 2}, v{a + c // 2}, s{sSHI if c & 1 else sSLO}')

    def red8(self, a, lpr):
        self('s_nop 1')
        for i in range(4): self(f'v_permlane32_swap_b32 v{a+i}, v{a+4+i}')
        for i in (0, 2, 1, 3): self(f'v_add_f32 v{a+i}, v{a+i}, v{a+4+i}')
        self(f'v_permlane16_swap_b32 v{a}, v{a+2}')
        self('s_nop 0')
        self(f'v_permlane16_swap_b32 v{a+1}, v{a+3}')
        self(f'v_add_f32 v{a}, v{a}, v{a+2}\nv_add_f32 v{a+1}, v{a+1}, v{a+3}')
        steps = ['row_ror:8', 'row_ror:4']
        if lpr <= 2: steps.append('quad_perm:[2,3,0,1]')
        if lpr == 1: steps.append('quad_perm:[1,0,3,2]')
        for s in steps:
            self('s_nop 0')
            self.dpp('v_add_f32', a, a, a, s)
            self.dpp('v_add_f32', a + 1, a + 1, a + 1, s)

    def red4(self, a):
        self('s_nop 1')
        self(f'v_permlane32_swap_b32 v{a}, v{a+2}\nv_permlane32_swap_b32 v{a+1}, v{a+3}')
        self(f'v_add_f32 v{a}, v{a}, v{a+2}\nv_add_f32 v{a+1}, v{a+1}, v{a+3}')
        self('s_nop 1')
        self(f'v_permlane16_swap_b32 v{a}, v{a+1}')
        self(f'v_add_f32 v{a}, v{a}, v{a+1}')

    def sum4(self, r):
        self(f'v_pk_add_f32 {v2(r)}, {v2(r)}, {v2(r+2)}\nv_pk_add_f32 {v2(r+4)}, {v2(r+4)}, {v2(r+6)}\nv_pk_add_f32 {v2(r)}, {v2(r)}, {v2(r+4)}')

    def unpack(self, d, s):
        self(f'v_and_b32 v{d+1}, 0xffff0000, v{s}\nv_lshlrev_b32 v{d}, 16, v{s}')

    def rb2(self, d):
        self(f'v_cvt_pk_bf16_f32 v{d}, v{d}, v{d+1}')
        self.unpack(d, d)

    def rb1(self, d):
        self(f'v_cvt_pk_bf16_f32 v{d}, v{d}, v{d}\nv_lshlrev_b32 v{d}, 16, v{d}')

    def silu2(self, x, t):
        self(f'v_mul_f32 v{t}, 0xbfb8aa3b, v{x}\nv_mul_f32 v{t+1}, 0xbfb8aa3b, v{x+1}')
        self(f'v_exp_f32 v{t}, v{t}\nv_exp_f32 v{t+1}, v{t+1}')
        self(f'v_add_f32 v{t}, 1.0, v{t}\nv_add_f32 v{t+1}, 1.0, v{t+1}')
        self(f'v_rcp_f32 v{t}, v{t}\nv_rcp_f32 v{t+1}, v{t+1}')
        self(f'v_mul_f32 v{x}, v{x}, v{t}\nv_mul_f32 v{x+1}, v{x+1}, v{t+1}')

    def stats_wave(self, x, t):
        self(f'v_mul_f32 v{t+1}, v{x}, v{x}\nv_add_f32 v{t}, v{x}, v{x+1}\nv_fmac_f32 v{t+1}, v{x+1}, v{x+1}')
        self('s_nop 1')
        self(f'v_permlane32_swap_b32 v{t}, v{t+1}\nv_add_f32 v{t}, v{t}, v{t+1}')
        for s in ('row_ror:8', 'row_ror:4', 'row_ror:2', 'row_ror:1'):
            self('s_nop 1')
            self.dpp('v_add_f32', t, t, t, s)

    def stats_fin(self, r):
        self(f'v_mul_f32 v{r}, {INV512:#x}, v{r}\nv_mul_f32 v{r+1}, {INV512:#x}, v{r+1}')
        self(f'v_fma_f32 v{r+1}, -v{r}, v{r}, v{r+1}\nv_max_f32 v{r+1}, 0, v{r+1}')
        self.rb2(r)
        self(f'v_add_f32 v{r+1}, {EPS:#x}, v{r+1}')
        self.rb1(r + 1)
        self(f'v_sqrt_f32 v{r+1}, v{r+1}\ns_nop 0')
        self.rb1(r + 1)
        self(f'v_rcp_f32 v{r+1}, v{r+1}')

    def ln_apply(self, x, m):
        self(f'v_sub_f32 v{x}, v{x}, v{m}\nv_sub_f32 v{x+1}, v{x+1}, v{m}')
        self.rb2(x)
        self(f'v_mul_f32 v{x}, v{x}, v{m+1}\nv_mul_f32 v{x+1}, v{x+1}, v{m+1}')
        self.rb2(x)

    def store_local(self, insts):
        a, b = self.lab('far'), self.lab('sd')
        if self.o.get('nolocal'):
            for i in insts: self(i + ' sc1')
            return
        self(f's_cmp_eq_u32 s{sLOC}, 0\ns_cbranch_scc0 {a}')
        for i in insts: self(i)
        self(f'{b}:')
        self.tail.append((a, [i + ' sc1' for i in insts], b))

    def store_masked(self, inst, ml, full):
        a, b = self.lab('far'), self.lab('sd')
        self(f's_mov_b64 exec, {p(ml)}\n{inst}\ns_cbranch_execz {a}\n{b}:')
        self.tail.append((a, [f's_mov_b64 exec, {full}', inst + ' sc1'], b))

    def flush_tail(self):
        for a, insts, b in self.tail:
            self(f'{a}:')
            for i in insts: self(i)
            self(f's_branch {b}')
        self.tail = []

    def pad(self, name, target):
        if self.o.get('warm', '1') != '0':
            self(f'{name}:\ns_cbranch_execz {target}')

    def end(self):
        self('s_branch Lfin' if self.o.get('stamps') else 's_endpgm')


def gen(opt):
    g = G(opt)
    g.tail = []
    NT = opt.get('nt', '')
    NTK = opt.get('ntk', 'nt')
    NTO = opt.get('nto', '')
    LOCAL = not opt.get('nolocal')
    NTG, NTD, NTW, NTV = (opt.get(k, d).replace('_', ' ') for k, d in (('ntg', ''), ('ntd', ''), ('ntw', ''), ('ntv', '')))
    PF = int(opt.get('pf', 271))
    VA = int(opt.get('va', 3))
    WARM = opt.get('warm', '1') != '0'
    STAMPS = opt.get('stamps')
    PS = int(opt.get('ps', 128))
    H1X4 = int(opt.get('h1x4', 1))
    PT = int(opt.get('pt', 3))
    KA = int(opt.get('ka', 0))
    SE4 = int(opt.get('se4', 0))
    OWN = int(opt.get('own', 15)) if LOCAL else 0
    PAT = int(opt.get('pat', 2))
    WH = int(opt.get('wh', 0))
    M0 = int(opt.get('m0', 1))
    GK = int(opt.get('gk', 1))
    DX = int(opt.get('dx', 4))
    RF = int(opt.get('rf', 0))
    HB = int(opt.get('hb', 19))
    DIAG = int(opt.get('diag', -1))
    DPF = int(opt.get('dpf', 0))
    SM1 = opt.get('sm1', 'N.F.v5.Vd'); SM2 = opt.get('sm2', 'D'); SQ = opt.get('sq', 'P.H.W0.W1.G0')
    hdr = open('cdna_kernels/' + NAME + '.s.ref').read().split('; Override launch')[0] if opt.get('hdr', True) else ''
    g.L.append(hdr.rstrip('\n'))
    g.L.append(f'; @launch grid=(256,1,1) block=(512,1,1) lds={LDS_BYTES}')
    g(f'.amdgcn_target "amdgcn-amd-amdhsa--gfx950"\n.text\n.globl {K}\n.p2align 12\n.fill 832, 4, 0xbf810000\n.p2align 8\n.type {K},@function\n{K}:')
    ROT = ('row_ror:8', 'row_ror:4', 'row_ror:2', 'row_ror:1')

    def ka(bit, n, r=120):
        return '\n'.join([f'v_mfma_f32_16x16x32_bf16 {v4(r)}, {v4(r+4)}, {v4(r+4)}, 0'] * n) if KA & bit else ''

    def own_masks(bit, m, width, full, sh=None):
        if OWN & bit:
            if sh is None: g(f's_mul_i32 s{m}, s{sG}, {width}')
            else: g(sh)
            g(f's_bfm_b64 {p(m+2)}, {width}, s{m}\ns_cmp_eq_u32 s{sLOC}, 0\ns_cselect_b64 {p(m+2)}, {p(m+2)}, 0\ns_andn2_b64 {p(m)}, {full}, {p(m+2)}')

    def own_store(bit, inst, m):
        if OWN & bit:
            l = g.lab('ow')
            g(f's_mov_b64 exec, {p(m)}\n{inst} sc1\ns_mov_b64 exec, {p(m+2)}\ns_cbranch_execz {l}\n{inst}\n{l}:\ns_mov_b64 exec, -1')
        else: g(inst + ' sc1')

    def bslot(k):
        return 8 * ((k >> 1) & 1) + 4 * (k >> 3) + 2 * ((k >> 2) & 1) + (k & 1)

    def lgkm(n):
        g(f's_waitcnt lgkmcnt({0 if STAMPS else n})')

    def consts():
        g(f's_mov_b32 s{sTO}, 0x100000\ns_mov_b32 s{sSLO}, 0x05040100\ns_mov_b32 s{sSHI}, 0x07060302')

    def mk_tag():
        g(f's_mul_i32 s{sTAG}, s{sTAG}, 0x9e3779b1\ns_add_u32 s{sTAG}, s{sTAG}, 0x7f4a7c15')

    def xcc_val():
        g(f's_getreg_b32 s{sXCC}, hwreg(HW_REG_XCC_ID, 0, 4)\ns_or_b32 s{sXCC}, s{sXCC}, 0x80\ns_mul_i32 s{sXCC}, s{sXCC}, 0x01010101')

    def xcc_addr():
        xcc_val()
        g(f'v_and_b32 v126, 7, v0\nv_lshlrev_b32 v126, 2, v126\nv_lshl_add_u32 v126, s{sG}, 5, v126')

    def xcc_test():
        g(f'v_cmp_ne_u32 vcc, s{sXCC}, v127\ns_mov_b32 s{sLOC}, vcc_lo')
        if opt.get('mixed'): g(f's_and_b32 s{sXCC}, s2, {opt["mixed"]}\ns_or_b32 s{sLOC}, s{sLOC}, s{sXCC}')
    XLD = f'\nglobal_load_dword v127, v126, {p(sDBG)} sc1'

    def base(dst, mul, off, extra=None):
        g(f's_mul_i32 s{dst}, s{sG}, {mul}\ns_add_u32 s{dst}, s{dst}, {off}')
        if extra is not None: g(f's_add_u32 s{dst}, s{dst}, s{extra}')

    def fp24_consts(a):
        g(f's_mov_b32 s{a}, 0x0c04000c\ns_mov_b32 s{a+1}, 0x0402010c\ns_mov_b32 s{a+2}, 0x07060501\ns_mov_b32 s{a+3}, 0x07060502\ns_mov_b32 s{a+4}, 0x07060503')

    def fp24_unpack(r, a):
        g(f'v_perm_b32 v{r+3}, v{r+1}, v{r}, s{a}\nv_perm_b32 v{r+3}, v{r+2}, v{r+3}, s{a+1}')

    def fp24_pack(d, r, a):
        for i in range(3): g(f'v_perm_b32 v{d+i}, v{r+i}, v{r+3}, s{a+2+i}')

    def stream(spec, counted=False):
        g(f's_lshl_b32 s{sT}, s{sJ}, 5\nv_xor_b32 v123, s{sT}, v0' if int(opt.get('rot', 1)) else 'v_mov_b32 v123, v0')
        for it in spec.split('.'):
            if not it: continue
            if it[0] == 'V':
                off = {'a': 0, 'b': 65536, 'c': 32768, 'd': 98304, 'x': 32768, 'y': 49152}[it[1]]
                if HB != 15: off = {'a': 0, 'b': 1 << 18, 'c': 2 << 18, 'd': 3 << 18}[it[1]]
                g(f's_lshl_b32 s{sT}, s{sG}, 24\ns_lshl_b32 s{sT+1}, s{sJ}, {17 if HB == 15 else 15}\ns_add_u32 s{sT}, s{sT}, s{sT+1}\ns_add_u32 s{sT}, s{sT}, {(15 << 20) + off}')
                if int(opt.get('hs', 0)): g(f's_bfe_u32 s{sT+1}, s{sG}, {0x10000 + int(opt["hs"]) - 1}\ns_lshl_b32 s{sT+1}, s{sT+1}, 19\ns_xor_b32 s{sT}, s{sT}, s{sT+1}')
                if it[1] in 'xy':
                    g(f's_lshr_b32 s{sT+1}, s{sWAVE}, 1\ns_mul_i32 s{sT+1}, s{sT+1}, 49152\ns_add_u32 s{sT}, s{sT}, s{sT+1}')
                g(f'v_lshl_add_u32 v120, v{0 if it[1] in "xy" else 123}, 7, s{sT}\nglobal_load_dword v121, v120, {p(sV)} {NTV}')
            elif it[0] == 'v':
                g(f's_lshl_b32 s{sT}, s{sG}, 24\ns_lshl_b32 s{sT+1}, s{sJ}, 14\ns_add_u32 s{sT}, s{sT}, s{sT+1}\ns_add_u32 s{sT}, s{sT}, {(15 << 20) + (int(it[1]) << 17)}')
                g(f'v_lshrrev_b32 v120, 1, v123\nv_lshl_add_u32 v120, v120, 7, s{sT}\nglobal_load_dword v121, v120, {p(sV)} {NTV}')
            elif it[0] == 'w':
                g(f's_lshr_b32 s{sT}, s{sJ}, 1\ns_lshl2_add_u32 s{sT}, s{sG}, s{sT}\ns_lshl_b32 s{sT}, s{sT}, 3\ns_and_b32 s{sT+1}, s{sJ}, 1\ns_add_u32 s{sT}, s{sT}, s{sT+1}\ns_add_u32 s{sT}, s{sT}, {2 * int(it[1])}\ns_lshl_b32 s{sT}, s{sT}, 14')
                g(f'v_lshrrev_b32 v120, 1, v123\nv_lshl_add_u32 v120, v120, 7, s{sT}\nglobal_load_dword v121, v120, {p(sWO)} {NTW}')
            elif it[0] == 'W':
                if WH: g(f's_lshl4_add_u32 s{sT}, s{sG}, s{sJ}\ns_add_u32 s{sT}, s{sT}, {8 * int(it[1])}\ns_lshl_b32 s{sT}, s{sT}, 15')
                else: g(f's_and_b32 s{sT}, s{sJ}, 6\ns_add_u32 s{sT}, s{sT}, s{sJ}\ns_lshl4_add_u32 s{sT}, s{sG}, s{sT}\ns_add_u32 s{sT}, s{sT}, {2 * int(it[1])}\ns_lshl_b32 s{sT}, s{sT}, 15')
                g(f'v_lshl_add_u32 v120, v123, 7, s{sT}\nglobal_load_dword v121, v120, {p(sWO)} {NTW}')
            elif it[0] in 'Gg':
                l = g.lab('ng')
                hf = it[0] == 'g'
                g(f"""
                s_cmp_eq_u32 s{sG}, 7
                {f's_cselect_b64 exec, 1, -1' if counted else f's_cbranch_scc1 {l}'}
                s_lshr_b32 s{sT}, s{sWAVE}, 1
                s_lshl1_add_u32 s{sT}, s{sJ}, s{sT}
                {f's_and_b32 s{sT+1}, s{sT}, 12' + chr(10) + f's_add_u32 s{sT}, s{sT}, s{sT+1}' if GK and not hf else ''}
                s_lshl_b32 s{sT}, s{sT}, {3 if hf else 4}
                s_addk_i32 s{sT}, {(128 if hf else 64 if GK else 256) * int(it[1])}
                v_lshrrev_b32 v120, {3 if hf else 2}, v1
                v_add_u32 v120, s{sT}, v120
                v_bfe_u32 v122, v1, {1 if hf else 0}, 2
                v_mad_u32_u24 v120, v120, 28, v122
                s_min_u32 s{sT}, s{sG}, 6
                s_lshl_b32 s{sT}, s{sT}, 2
                v_add_lshl_u32 v120, v120, s{sT}, 7
                s_bitcmp1_b32 s{sWAVE}, 0
                s_cselect_b64 {p(sT)}, {p(sUP)}, {p(sGATE)}
                global_load_dword v121, v120, {p(sT)} {NTG}
                {'s_mov_b64 exec, -1' if counted else ''}
                {l}:
                """)
            elif it == 'D':
                g(f"""
                s_mul_i32 s{sT}, s{sJ}, 224
                v_min_u32 v120, 223, v0
                v_add_lshl_u32 v120, v120, s{sT}, 3
                s_xor_b32 s{sT}, s{sG}, {DX}
                v_add_lshl_u32 v120, v120, s{sT}, 7
                global_load_dword v121, v120, {p(sDOWN)} {NTD}
                """)
            elif it == 'R':
                g(f"""
                s_lshl_b32 s{sT}, s{sJ}, 6
                v_lshrrev_b32 v120, 2, v0
                v_add_u32 v120, s{sT}, v120
                v_and_b32 v122, 3, v0
                v_mad_u32_u24 v120, v120, 48, v122
                s_lshl2_add_u32 s{sT}, s{sG}, 16
                v_add_lshl_u32 v120, v120, s{sT}, 7
                global_load_dword v121, v120, {p(sWM)} {NT}
                """)
            elif it == 'H':
                g(f's_lshr_b32 s{sT}, s{sWAVE}, 1\ns_lshl1_add_u32 s{sT}, s{sJ}, s{sT}\ns_mul_i32 s{sT}, s{sT}, {H3A_S}')
                base(sT + 1, H3A_G, H3A, sT)
                g(f's_and_b32 s{sT}, s{sWAVE}, 1\nv_min_u32 v120, 8, v1\nv_lshl_add_u32 v120, s{sT}, 3, v120\nv_lshl_add_u32 v120, v120, 7, s{sT+1}\nglobal_load_dword v121, v120, {p(sWS)} sc1')
            elif it[0] in 'TU':
                if it[0] == 'T':
                    base(sT, H3A_G, H3A + 128 + 12)
                    g(f'v_mul_u32_u24 v120, {H3A_S}, v1\nv_add_u32 v120, s{sT}, v120')
                else:
                    base(sT, 128, MARK)
                    g(f'v_lshl_add_u32 v120, v1, 2, s{sT}')
                r, l = g.lab('retry'), g.lab('trig')
                g(f"""
                s_mov_b64 exec, 0xffff
                s_branch {l}
                {r}:
                s_sub_u32 s{sTO}, s{sTO}, 1
                s_cbranch_scc1 Lexit
                {l}:
                global_load_dword v121, v120, {p(sWS)} sc1
                s_waitcnt vmcnt(0)
                v_cmp_eq_u32 vcc, s{sTAG}, v121
                s_bcnt1_i32_b32 s{sT}, vcc_lo
                s_cmp_lt_u32 s{sT}, {int(it[1:])}
                s_cbranch_scc1 {r}
                s_mov_b64 exec, -1
                """)
            elif it == 'F':
                g(f's_mul_i32 s{sT}, s{sJ}, 896')
                base(sT + 1, H5_REP, H5, sT)
                g(f'v_lshrrev_b32 v120, 5, v0\nv_min_u32 v120, 6, v120\nv_lshl_add_u32 v120, v120, 7, s{sT+1}\nglobal_load_dword v121, v120, {p(sWS)} sc1')
            elif it == 'N':
                g(f's_lshl_b32 s{sT}, s{sPM}, 7')
                base(sT + 1, MOD_REP, MOD + 4096, sT)
                g(f'v_mov_b32 v120, s{sT+1}\nglobal_load_dword v121, v120, {p(sWS)} sc1')
            elif it == 'P':
                g(f's_lshl_b32 s{sT}, s{sJ}, 11')
                base(sT + 1, H4_REP, H4, sT)
                g(f'v_lshrrev_b32 v120, 4, v0\nv_lshl_add_u32 v120, v120, 7, s{sT+1}\nglobal_load_dword v121, v120, {p(sWS)} sc1')
            else:
                raise ValueError(it)

    vK, vV, vVT, vQ, vP = 8, 40, 72, 104, 108
    g.stamp(0)
    g(f"""
    s_load_dwordx16 s[4:19], s[0:1], 0
    s_load_dwordx8 s[20:27], s[0:1], 64
    s_load_dwordx4 s[28:31], s[0:1], 96
    v_readfirstlane_b32 s{sWAVE}, v0
    s_and_b32 s{sG}, s2, 7
    s_lshr_b32 s{sJ}, s2, 3
    v_and_b32 v1, 63, v0
    s_lshr_b32 s{sWAVE}, s{sWAVE}, 6
    s_lshr_b32 s{sT}, s2, 5
    s_or_b32 s{sT}, s{sT}, s{sWAVE}
    s_cmp_ge_u32 s{sT}, 4
    s_cbranch_scc1 Ldisp
    """)
    g(f"""
    s_getreg_b32 s{sXCC}, hwreg(HW_REG_XCC_ID, 0, 4)
    v_lshrrev_b32 v4, 3, v0
    v_bfe_u32 v5, v0, {0 if M0 else 2}, 1
    v_lshl_add_u32 v4, s{sJ}, 5, v4
    s_lshl_b32 s{sT}, s{sG}, 1
    {f'v_lshrrev_b32 v7, 1, v1' if M0 else ''}
    {f'v_lshl_add_u32 v7, s{sJ}, 5, v7' if M0 else ''}
    v_mad_u32_u24 v5, v{7 if M0 else 4}, 48, v5
    v_add_lshl_u32 v5, v5, s{sT}, 7
    s_lshl4_add_u32 s{sT+1}, s{sT}, s{sJ}
    s_bitset1_b32 s{sXCC}, 7
    v_mov_b32 v126, s{sT+1}
    v_mov_b32 v127, s{sXCC}
    v_and_b32 v6, 7, v0
    v_lshl_add_u32 v6, v4, 6, v6
    s_lshl_b32 s{sT}, s{sG}, 3
    v_add_lshl_u32 v6, v6, s{sT}, 7
    s_cmp_lg_u32 s{sWAVE}, 0
    s_cbranch_scc1 LA0
    s_mov_b64 exec, 1
    s_waitcnt lgkmcnt(0)
    {f'global_store_byte v126, v127, {p(sDBG)}' if LOCAL else ''}
    s_mov_b64 exec, -1
    {f'global_load_dword v{vVT+8}, v5, {p(sWM)} {NT}' if M0 else ''}
    LA0:
    s_waitcnt lgkmcnt(0)
    """)
    g.stamp(1)
    g(f"""
    {'' if M0 else f'global_load_dword v{vVT+8}, v5, {p(sWM)} {NT}'}
    global_load_dword v{vVT+9}, v6, {p(sWQ)} {NT}
    LA:
    s_lshl_b32 s{sT}, s{sG}, 12
    s_add_u32 s{sT}, s{sT}, s{sJ}
    s_lshl2_add_u32 s{sT}, s{sT}, s{sWAVE}
    s_and_b32 s{sT+1}, s{sWAVE}, 4
    s_mulk_i32 s{sT+1}, 127
    s_add_u32 s{sT}, s{sT}, s{sT+1}
    s_addk_i32 s{sT}, {15 << 10}
    s_lshl_b32 s{sT}, s{sT}, 10
    v_lshl_add_u32 v2, v1, 4, s{sT}
    v_and_b32 v5, 12, v0
    v_and_b32 v6, 48, v0
    v_mad_u32_u24 v3, v5, 48, v2
    v_mad_i32_i24 v3, v6, -12, v3
    """)
    g(f's_load_dword s{sTAG}, {p(sWS)}, 0')

    def loadkv(b, va, vd, n0=0, n1=8):
        for n in range(n0, n1):
            g(f'global_load_dwordx4 {v4(vd + 4 * n)}, v{va}, {p(b)} {NTK}')
            if n != 7: g(f'v_add_u32 v{va}, 0x10000, v{va}')
    loadkv(sK, 3, vK)
    g(f"""
    s_branch LA2
    Ldisp:
    s_cmpk_ge_u32 s2, 256
    s_cbranch_scc1 Lexit0
    s_cmp_lt_u32 s{sWAVE}, 4
    s_cbranch_scc0 LH
    s_cmp_ge_u32 s{sJ}, 24
    s_cbranch_scc1 LM
    s_branch LQ
    LH:
    """)
    if LOCAL:
        l = g.lab('h')
        g(f's_cmp_lg_u32 s{sWAVE}, 7\ns_cbranch_scc1 {l}\ns_cmp_lt_u32 s{sJ}, 16\ns_cbranch_scc1 {l}')
        xcc_val()
        g(f"""
        s_lshl_b32 s{sT}, s{sG}, 5
        s_add_u32 s{sT}, s{sT}, s{sJ}
        v_mov_b32 v126, s{sT}
        v_mov_b32 v127, s{sXCC}
        s_mov_b64 exec, 1
        s_waitcnt lgkmcnt(0)
        global_store_byte v126, v127, {p(sDBG)}
        global_load_ubyte v127, v126, {p(sDBG)} sc1
        """)
        if PT:
            m = (((1 << (PS // 16)) - 1) if PT & 1 else 0) | (0x1ff00 if PT & 2 else 0)
            g(f's_cmp_ge_u32 s{sJ}, 24\ns_cbranch_scc1 {l}\ns_mov_b64 exec, {m:#x}\ns_mul_i32 s{sT}, s{sJ}, {8 * PS}')
            base(sT + 1, H1_REP, H1 - 16 * 8 * PS, sT)
            g(f's_mul_i32 s{sT}, s{sJ}, 1152')
            base(sT + 2, H2_G, H2 - 16 * 1152 - 8 * 128, sT)
            g(f"""
            v_mov_b32 v2, s{sT+1}
            v_mov_b32 v3, s{sT+2}
            v_cmp_lt_u32 vcc, 7, v1
            s_nop 1
            v_cndmask_b32 v2, v2, v3, vcc
            v_lshl_add_u32 v2, v1, 7, v2
            global_load_dword v3, v2, {p(sWS)} sc1
            """)
        g(f'{l}:')
    lq, lm = g.lab('hq'), g.lab('hm')

    def hop(targets):
        for w, t in zip((4, 5, 6), targets):
            g(f's_cmp_eq_u32 s{sWAVE}, {w}\ns_cbranch_scc1 {t}')
        g(f's_branch {targets[3]}')
    g(f's_mov_b64 exec, 0\ns_cmp_ge_u32 s{sJ}, 24\ns_cbranch_scc0 {lq}')
    hop(['LFH'] + opt.get('hm', 'PM3.PM2.PM1').split('.') if WARM else ['LFH'] + ['Lexit1'] * 3)
    g(f'{lq}:\ns_cmp_ge_u32 s{sJ}, 16\ns_cbranch_scc0 {lm}')
    hop(opt.get('hq', 'PQ5.PQ4.PQ2.PQ3').split('.') if WARM else ['Lexit1'] * 4)
    g(f'{lm}:')
    if WARM: hop(opt.get('ha', 'PA3.PA2.PA6.PA1').split('.'))
    g('LAres:\ns_mov_b64 exec, -1')
    xcc_val()
    g('v_mov_b32 v126, 0\nv_mov_b32 v127, 0\ns_waitcnt lgkmcnt(0)\ns_branch LA\nLA2:')
    g.stamp(2)
    VY = int(opt.get('vy', 3))
    NV1, VP = int(opt.get('nv1', 2)), int(opt.get('vp', 2))
    sVP, sWP, sML, sML4, sM4, sM8 = 100, 0, 60, 62, 58, 56
    consts()
    for i in range(16): g(f'v_mov_b32 v{vP+i}, 0')
    ly, lsp, r, r2, lp = g.lab('y'), g.lab('sp'), g.lab('retry'), g.lab('retry'), g.lab('fl')
    g(f"""
    v_lshlrev_b32 v124, 4, v1
    v_and_b32 v125, 3, v1
    v_lshlrev_b32 v125, 2, v125
    v_mov_b32 v3, 0
    v_mov_b32 v4, 0xff800000
    ds_write2_b32 v125, v4, v3 offset0:{L_MX // 4} offset1:{L_SM // 4}
    s_mov_b64 {p(sWP)}, {p(sWO)}
    s_mov_b64 {p(sVP)}, {p(sV)}
    s_mov_b64 s[40:41], {p(sDOWN)}
    s_waitcnt lgkmcnt(0)
    s_barrier
    """)
    mk_tag()
    if DIAG >= 0:
        loadkv(sVP, 2, vV)
        g('s_waitcnt vmcnt(0)')
        g.stamp(6)
        g.end()
    xl = f's_lshl_b32 s{sT}, s{sG}, 5\ns_load_dwordx8 s[4:11], {p(sDBG)}, s{sT}\ns_mov_b32 s{sXCC+1}, s{sXCC}'
    if VY == 3:
        l = g.lab('xo')
        g(f's_cmp_lt_u32 s{sWAVE}, 4\ns_cbranch_scc1 {l}\n{xl}\n{l}:')
        loadkv(sVP, 2, vV, 0, NV1)
        g(f's_cmp_ge_u32 s{sWAVE}, 4\ns_cbranch_scc1 {ly}\ns_mov_b32 s{sT+3}, s{sWAVE}')
        loadkv(sVP, 2, vV, NV1)
    else:
        g(f's_cmp_lt_u32 s{sWAVE}, 4\ns_cbranch_scc1 {ly}\ns_setprio {opt.get("prio", 1)}\ns_and_b32 s{sT+3}, s{sWAVE}, 3\ns_waitcnt vmcnt({opt.get("kw", 6)})')

    def xtest():
        for i in range(4): g(f's_xor_b64 {p(4+2*i)}, {p(4+2*i)}, {p(sXCC)}')
        g(f's_or_b64 s[4:5], s[4:5], s[6:7]\ns_or_b64 s[8:9], s[8:9], s[10:11]\ns_or_b64 s[4:5], s[4:5], s[8:9]\ns_or_b32 s{sLOC}, s4, s5')
        if not LOCAL: g(f's_mov_b32 s{sLOC}, 1')
        if opt.get('mixed'): g(f's_and_b32 s{sXCC}, s2, {opt["mixed"]}\ns_or_b32 s{sLOC}, s{sLOC}, s{sXCC}')
    if VY != 3: g(xl)
    base(sT + 1, H2_G, H2 + 1024)
    g(f"""
    s_lshl_b32 s{sT}, s{sT+3}, 8
    s_lshl3_add_u32 s{sT+2}, s{sT}, s{sT+1}
    s_add_u32 s{sT}, s{sT}, s{sT+1}
    s_add_u32 s{sT+1}, s{sT+2}, {64 * int(opt.get('nc', 31))}
    s_add_u32 s{sDBG}, s{sWS}, s{sT}
    s_addc_u32 s{sDBG+1}, s{sWS+1}, 0
    v_lshl_add_u32 v7, v1, 2, s{sT+3}
    v_lshlrev_b32 v7, 4, v7
    s_mov_b64 exec, 1
    {r2}:
    s_cmp_lt_u32 s{sT+2}, s{sT+1}
    s_cbranch_scc0 Lfglc
    s_load_dwordx2 s[12:13], {p(sWS)}, s{sT+2}
    s_add_u32 s{sT+2}, s{sT+2}, 64
    {lp}:
    s_waitcnt lgkmcnt(0)
    s_cmp_lg_u32 s12, s{sTAG}
    s_cbranch_scc1 {r2}
    s_cmp_lg_u32 s13, s{sTAG}
    s_cbranch_scc1 {r2}
    """)
    g.stamp(3)
    g(f"""
    s_load_dwordx16 s[44:59], {p(sDBG)}, -1024
    s_load_dwordx16 s[80:95], {p(sDBG)}, {-1024 + 64}
    s_load_dwordx16 s[12:27], {p(sDBG)}, {-1024 + 128}
    s_load_dwordx4 s[60:63], {p(sDBG)}, {-1024 + 192}
    s_load_dwordx4 s[96:99], {p(sDBG)}, {-1024 + 208}
    """)
    if VY != 3: xtest()
    g(f's_load_dwordx8 s[4:11], {p(sDBG)}, {-1024 + 224}\ns_waitcnt lgkmcnt(0)')
    g.stamp(1)
    for c, sr in enumerate([44, 48, 52, 56, 80, 84, 88, 92, 12, 16, 20, 24, 60, 96, 4, 8]):
        g(f'v_mov_b64 {v2(vVT)}, {p(sr)}\nv_mov_b64 {v2(vVT+2)}, {p(sr+2)}')
        g('s_lshl_b32 exec_lo, exec_lo, 1' if c != 15 else 's_mov_b32 exec_lo, 0xffff')
    g(f"""
    ds_write_b128 v7, {v4(vVT)} offset:{L_Q}
    s_mov_b64 exec, -1
    {'' if VY == 3 else 's_waitcnt vmcnt(0)'}
    s_branch {lsp}
    PA1:
    s_branch LAres
    Lfglc:
    s_sub_u32 s{sTO}, s{sTO}, 1
    s_cbranch_scc1 Lexit
    s_load_dwordx2 s[12:13], {p(sWS)}, s{sT+2} glc
    s_branch {lp}
    {ly}:
    """)
    AH = opt.get('ah', '')
    if AH and VY != 3:
        l = g.lab('ah')
        if AH == 'H':
            g(f's_cmp_lg_u32 s{sWAVE}, 3\ns_cbranch_scc1 {l}\ns_mul_i32 s{sT}, s{sJ}, {H3A_S}')
            base(sT + 1, H3A_G, H3A, sT)
            g(f'v_min_u32 v4, 16, v1\nv_lshl_add_u32 v4, v4, 7, s{sT+1}\nglobal_load_dword v{vVT+9}, v4, {p(sWS)} sc1\n{l}:')
        elif AH == 'w':
            g(f's_cmp_lg_u32 s{sWAVE}, 3\ns_cbranch_scc1 {l}\ns_lshr_b32 s{sT}, s{sJ}, 2\ns_lshl2_add_u32 s{sT}, s{sG}, s{sT}\ns_lshl_b32 s{sT}, s{sT}, 4\ns_and_b32 s{sT+1}, s{sJ}, 3\ns_add_u32 s{sT}, s{sT}, s{sT+1}\ns_lshl_b32 s{sT}, s{sT}, 13')
            g(f'v_lshl_add_u32 v4, v1, 7, s{sT}\nglobal_load_dword v{vVT+9}, v4, {p(sWP)} {NTW}\n{l}:')
        else:
            g(f's_cmp_ge_u32 s{sWAVE}, 2\ns_cbranch_scc1 {l}\ns_and_b32 s{sT}, s{sJ}, 12\ns_add_u32 s{sT}, s{sT}, s{sJ}\ns_lshl_b32 s{sT+1}, s{sG}, 5\ns_add_u32 s{sT}, s{sT}, s{sT+1}\ns_lshl_b32 s{sT}, s{sT}, 14')
            g(f'v_lshl_add_u32 v4, v0, 7, s{sT}\nglobal_load_dword v{vVT+9}, v4, {p(sWP)} {NTW}\n{l}:')
    if VY == 3: g(f's_setprio {opt.get("prio", 1)}\ns_waitcnt vmcnt({NV1})')
    else: loadkv(sVP, 2, vV)
    g.stamp(3)
    g(f"""
    {lsp}:
    s_waitcnt lgkmcnt(0)
    s_barrier
    ds_read_b128 {v4(vQ)}, v124 offset:{L_Q}
    s_mov_b32 s{sT+4}, 0x000f000f
    s_mov_b32 s{sT+5}, 0x000f000f
    """)

    def vyoung(k):
        if VY == k or (VY == 3 and k == VP and NV1 < 8):
            l = g.lab('vy')
            g(f's_cmp_lt_u32 s{sWAVE}, 4\ns_cbranch_scc1 {l}')
            loadkv(sVP, 2, vV, NV1 if VY == 3 else 0)
            g(f'{l}:')
    vyoung(0)
    g('s_waitcnt vmcnt(8) lgkmcnt(0)')
    g.stamp(4)
    for n in range(8):
        g(f'v_mfma_f32_16x16x32_bf16 {v4(vK - 4 + 4 * n)}, {v4(vK + 4 * n)}, {v4(vQ)}, 0')
    vS0 = 36
    g('s_nop 0')
    for half in range(2):
        for t in range(3):
            for beta in (2 * half, 2 * half + 1):
                for m in range(2):
                    n = 2 * beta + m
                    D = vK - 4 + 4 * n
                    pi = (beta + 1 + t) % 4
                    T = vS0 + m + 2 * (beta & 1)
                    g.dpp('v_add_f32', T, D + pi, D + beta if t == 0 else T, f'row_ror:{4 * ((beta - pi) % 4)}', 1 << beta)
    g('s_nop 0')
    g.dpp('v_mov_b32', vS0, vS0 + 2, None, 'quad_perm:[0,1,2,3]', 0xa)
    g.dpp('v_mov_b32', vS0 + 1, vS0 + 3, None, 'quad_perm:[0,1,2,3]', 0xa)
    g.rb2(vS0)
    g(f'v_mul_f32 v{vS0}, {SCALE:#x}, v{vS0}\nv_mul_f32 v{vS0+1}, {SCALE:#x}, v{vS0+1}')
    g.rb2(vS0)
    g(f'v_max_f32 v4, v{vS0}, v{vS0+1}\ns_lshl_b32 s{sT}, s{sWAVE}, 11\nv_add_u32 v6, s{sT}, v124')
    g.dpp('v_max_f32', 4, 4, 4, 'row_ror:8')
    g(f'v_lshlrev_b32 v7, 2, v0\nv_add_u32 v7, {L_O - 1024}, v7')
    g.dpp('v_max_f32', 4, 4, 4, 'row_ror:4')
    g(f"""
    s_mov_b64 exec, {p(sT+4)}
    ds_max_f32 v125, v4 offset:{L_MX}
    s_mov_b64 exec, -1
    s_mul_i32 s{sT}, s{sJ}, {H3A_S}
    """)
    base(sT + 6, H3A_G, H3A)
    g(f"""
    s_add_u32 s{sT}, s{sT}, s{sT+6}
    v_and_b32 v5, 0xf8, v0
    v_lshl_add_u32 v5, v5, 1, v125
    v_lshl_add_u32 v5, v5, 2, s{sT}
    v_mov_b32 v19, s{sTAG}
    s_branch Lpa6
    PA6:
    s_branch LAres
    Lpa6:
    s_waitcnt lgkmcnt(0)
    s_barrier
    ds_read_b32 v4, v125 offset:{L_MX}
    """)
    g.stamp(5)
    if 'U' in SM1 + SM2 + SQ:
        l = g.lab('mk')
        g(f's_cmp_lg_u32 s{sWAVE}, 4\ns_cbranch_scc1 {l}\ns_lshl_b32 s{sT}, s{sJ}, 2')
        base(sT + 1, 128, MARK, sT)
        g(f'v_mov_b32 v126, s{sT+1}\ns_mov_b64 exec, 1')
        g.store_local([f'global_store_dword v126, v19, {p(sWS)}'])
        g(f's_mov_b64 exec, -1\n{l}:')
    vyoung(1)
    if VY == 3: xtest()
    g(f"""
    s_mov_b32 s{sM8}, 0x0f0f0f0f
    s_mov_b32 s{sM8+1}, 0x0f0f0f0f
    s_mov_b32 s{sM4}, 0x00010001
    s_mov_b32 s{sM4+1}, 0x00010001
    s_cmp_eq_u32 s{sLOC}, 0
    s_cselect_b64 {p(sML)}, {p(sM8)}, 0
    s_cselect_b64 {p(sML4)}, {p(sM4)}, 0
    s_waitcnt lgkmcnt(0)
    v_sub_f32 v{vS0}, v{vS0}, v4
    v_sub_f32 v{vS0+1}, v{vS0+1}, v4
    v_mul_f32 v{vS0}, {LOG2E:#x}, v{vS0}
    v_mul_f32 v{vS0+1}, {LOG2E:#x}, v{vS0+1}
    v_exp_f32 v{vS0}, v{vS0}
    v_exp_f32 v{vS0+1}, v{vS0+1}
    v_mul_f32 v4, {LOG2E:#x}, v4
    v_cvt_pk_bf16_f32 v{vS0+2}, v{vS0}, v{vS0+1}
    v_add_f32 v{vS0}, v{vS0}, v{vS0+1}
    s_nop 0
    """)
    for c in range(4):
        for m in range(4):
            rot = 4 * ((c - m) % 4)
            g.dpp('v_mov_b32', vP + 4 * c + m, vS0 + 2, None, f'row_ror:{rot}' if rot else 'quad_perm:[0,1,2,3]', 1 << c)
        if c < 2: g.dpp('v_add_f32', vS0, vS0, vS0, ROT[c])
    g(f's_mov_b64 exec, {p(sT+4)}\nds_add_f32 v125, v{vS0} offset:{L_SM}\ns_mov_b64 exec, -1')
    l = g.lab('yy')
    g(f's_cmp_lt_u32 s{sWAVE}, 4\ns_cbranch_scc1 {l}')
    if VY == 2: loadkv(sVP, 2, vV)
    if VY == 3 and VP == 2: loadkv(sVP, 2, vV, NV1)
    g(f"""
    s_lshl2_add_u32 s{sT}, s{sJ}, s{sWAVE}
    s_sub_u32 s{sT}, s{sT}, 4
    s_and_b32 s{sT+1}, s{sT}, 1
    s_mul_i32 s{sT+1}, s{sT+1}, 0x04040000
    s_add_u32 s{sT+7}, s{sT+1}, 0x01000c0c
    s_add_u32 s{sT+13}, s{sT+1}, 0x03020c0c
    s_lshr_b32 s{sT+1}, s{sT}, 1
    s_lshl_b32 s{sT+1}, s{sT+1}, 6
    s_add_u32 s{sT+1}, s{sT+1}, s{sT+6}
    v_and_b32 v126, 15, v1
    v_mul_u32_u24 v126, {H3A_S}, v126
    v_and_b32 v127, 48, v1
    v_add3_u32 v126, v126, v127, s{sT+1}
    s_lshr_b32 s{sT+1}, s{sJ}, 2
    """)
    if WH: g(f's_and_b32 s{sT+2}, s{sT}, 8\ns_add_u32 s{sT+1}, s{sT+1}, s{sT+2}\nv_and_b32 v127, 16, v1\nv_and_b32 v38, 32, v1')
    g(f"""
    s_mul_i32 s{sT+1}, s{sT+1}, {H3A_S}
    s_and_b32 s{sT}, s{sT}, {7 if WH else 15}
    s_lshl3_add_u32 s{sT}, s{sT}, s{sT+1}
    s_add_u32 s{sT}, s{sT}, s{sT+6}
    s_addk_i32 s{sT}, 2048
    v_mul_u32_u24 v127, {H3A_S // 4}, v127
    {'v_lshl_add_u32 v127, v38, 1, v127' if WH else ''}
    v_add_u32 v127, s{sT}, v127
    v_mov_b32 v39, s{sTAG}
    s_branch {l}
    PA2:
    s_branch LAres
    {l}:
    s_cmp_lt_u32 s{sWAVE}, 4
    """)
    for m in range(4):
        g(f's_waitcnt vmcnt({6 - 2 * m})')
        if m == 3: g.stamp(6)
        for c in (0, 4, 1, 5, 2, 6, 3, 7):
            g(f'v_perm_b32 v{vVT + 4 * c + m}, v{vV + 8 * m + 4 + c // 2}, v{vV + 8 * m + c // 2}, s{sSHI if c & 1 else sSLO}')
    for c in range(4):
        for a in range(2):
            g(f'v_mfma_f32_16x16x32_bf16 {v4(8 + 4 * a)}, {v4(vP + 4 * c)}, {v4(vVT + 16 * a + 4 * c)}, {v4(8 + 4 * a) if c else 0}')
    PG = int(opt.get('pg', 0))
    vG = 40
    ld = f'global_load_dwordx4 {v4(vG)}, v126, {p(sWS)} sc1'
    g(f"""
    s_nop 6
    ds_write_b128 v6, v[8:11] offset:{L_O}
    ds_write_b128 v6, v[12:15] offset:{L_O + 1024}
    s_cbranch_scc1 LNW
    {'s_setprio 1' if int(opt.get('prio2', 1)) else ''}
    {ld if PG else ''}
    {ka(2, 3, 108)}
    s_waitcnt lgkmcnt(0)
    s_barrier
    {ka(2, 1, 108)}
    ds_read_b32 v18, v125 offset:{L_SM}
    """)
    regs = [16, 20, 22, 24, 26, 28, 30, 32]
    for w in range(8): g(f'ds_read2st64_b32 {v2(regs[w])}, v7 offset0:{8 * w} offset1:{8 * w + 4}')
    g(ka(2, 1, 108))
    lgkm(8)
    g('v_rcp_f32 v34, v18\nv_log_f32 v18, v18')
    for a, b, wt in ((0, 1, 6), (2, 3, 4), (0, 2, None), (4, 5, 2), (0, 4, None), (6, 7, 0), (0, 6, None)):
        if wt is not None: lgkm(wt)
        g(f'v_pk_add_f32 {v2(regs[a])}, {v2(regs[a])}, {v2(regs[b])}')
        if wt == 6: g('v_add_f32 v18, v18, v4')
    g('v_pk_mul_f32 v[16:17], v[16:17], v[34:35] op_sel_hi:[1,0]')
    g('v_cvt_pk_bf16_f32 v16, v16, v17\ns_nop 1')
    g.dpp('v_mov_b32', 17, 16, None, 'row_shl:4')
    g.store_masked(f'global_store_dwordx4 v5, v[16:19], {p(sWS)}', sML, p(sM8))
    g('s_mov_b64 exec, -1')
    WO = [int(x) for x in opt.get('wo', '16.0.16').split('.')]
    assert sum(WO) == 32
    if WO[1]: g('s_barrier')
    g.stamp(7)
    if PG: g(f's_waitcnt vmcnt(1)\nv_cmp_ne_u32 vcc, s{sTAG}, v{vG+3}\ns_or_b32 vcc_lo, vcc_lo, 1\ns_mov_b64 exec, vcc')
    g(ld)
    if PG: g('s_mov_b64 exec, -1')
    fp24_consts(sT + 8)
    g(f's_lshl_b32 s{sT}, s{sJ}, 7')
    base(sT + 1, 2048, H4, sT)
    g(f"""
    v_and_b32 v2, 7, v1
    v_lshlrev_b32 v2, 4, v2
    v_lshrrev_b32 v3, 3, v1
    v_mul_u32_u24 v3, {H4_REP}, v3
    v_add3_u32 v3, v3, v2, s{sT+1}
    v_mov_b32 v27, s{sTAG}
    """)


    def sentinel(k, wave, restore):
        if SE4 == k:
            l = g.lab('se')
            g(f's_cmp_lg_u32 s{sJ}, 5\ns_cbranch_scc1 {l}\ns_cmp_lg_u32 s{sWAVE}, {wave}\ns_cbranch_scc1 {l}')
            g(f's_mov_b64 exec, 0xff\ns_lshl2_add_u32 s{sT}, s{sG}, {S4}\nv_lshl_add_u32 v36, v1, 8, s{sT}\nv_mov_b32 v37, s{sTAG}\nglobal_store_dword v36, v37, {p(sWS)} sc1\ns_mov_b64 exec, -1\n{l}:')

    own_masks(4, sT, 8, -1)

    def cmid():
        for i in range(2):
            g.dpp('v_max_f32', 12, vG + 2 if i == 0 else 12, vG + 2 if i == 0 else 12, ROT[i])
            g(f'v_perm_b32 v8, v{vG+1}, v{vG}, s{sT+7}\nv_perm_b32 v9, v{vG+1}, v{vG}, s{sT+13}' if i == 0 else 's_nop 0')
    g.poll(lambda: g(ld), [vG + 3], None, issued=True, mid=cmid, mask=1, pad='PA3:\ns_branch PA4')
    g.stamp(9)
    g.dpp('v_max_f32', 12, 12, 12, ROT[2])
    g('s_nop 1')
    g.dpp('v_max_f32', 12, 12, 12, ROT[3])
    g(f'v_sub_f32 v10, v{vG+2}, v12\nv_exp_f32 v10, v10\ns_nop 0\nv_pk_mul_f32 v[8:9], v[8:9], v[10:11] op_sel_hi:[1,0]')
    for i, s_ in enumerate(ROT):
        g.dpp('v_add_f32', 10, 10, 10, s_)
        if i == 0: g('s_nop 0')
        if i == 3: g('v_rcp_f32 v10, v10')
        g.dpp('v_add_f32', 8, 8, 8, s_)
        g.dpp('v_add_f32', 9, 9, 9, s_)
    g('v_pk_mul_f32 v[8:9], v[8:9], v[10:11] op_sel_hi:[1,0]\nv_cvt_pk_bf16_f32 v38, v8, v9')
    g.store_masked(f'global_store_dwordx2 v127, v[38:39], {p(sWS)}', sML4, p(sM4))
    sentinel(1, 5, 1)
    if WO[2]: g('s_barrier')
    g.stamp(10)
    g(f's_mov_b64 exec, -1\ns_cmp_lg_u32 s{sWAVE}, 4')
    if STAMPS: g(f's_barrier\ns_cbranch_scc1 {"LAe2" if DPF else "Lexit"}')
    else: g('s_cbranch_scc1 LAend\ns_barrier')
    for w in range(4): g(f'ds_read_b128 {v4(8 + 4 * w)}, v2 offset:{L_W + 128 * w}')
    lgkm(2)
    g('v_pk_add_f32 v[8:9], v[8:9], v[12:13]\nv_pk_add_f32 v[10:11], v[10:11], v[14:15]')
    lgkm(1)
    g('v_pk_add_f32 v[8:9], v[8:9], v[16:17]\nv_pk_add_f32 v[10:11], v[10:11], v[18:19]')
    lgkm(0)
    g('v_pk_add_f32 v[10:11], v[10:11], v[22:23]\nv_pk_add_f32 v[8:9], v[8:9], v[20:21]')
    fp24_pack(24, 8, sT + 8)
    own_store(4, f'global_store_dwordx4 v3, v[24:27], {p(sWS)}', sT)
    g.stamp(12)
    if DPF: g('LAe2:\ns_barrier')
    g('LAend:')
    g.end()
    g.flush_tail()
    vW, vWP, vA = 40, 72, 16
    g('.p2align 12\nPA4:\ns_branch LAres')
    g(f"""
    LNW:
    """)
    if WH: g(f's_and_b32 s{sT}, s{sWAVE}, 1\ns_lshr_b32 s{sT+1}, s{sWAVE}, 1\ns_lshl1_add_u32 s{sT}, s{sT}, s{sT+1}\ns_lshl3_add_u32 s{sT}, s{sG}, s{sT}\ns_lshl_b32 s{sT}, s{sT}, 16')
    else: g(f's_lshl2_add_u32 s{sT}, s{sG}, s{sWAVE}\ns_lshl_b32 s{sT}, s{sT}, 17')
    g(f"""
    s_lshl_b32 s{sT+1}, s{sJ}, 6
    s_add_u32 s{sT}, s{sT}, s{sT+1}
    s_addk_i32 s{sT}, 4096
    v_and_b32 v4, 15, v1
    v_lshrrev_b32 v5, 4, v1
    v_lshlrev_b32 v3, 10, v5
    v_lshl_add_u32 v3, v4, 2, v3
    v_add_u32 v3, s{sT}, v3
    s_movk_i32 s{sT+2}, 0x2000
    """)

    def wo_issue(a=0, b=32):
        for n in range(a, b):
            g(f'global_load_dword v{vW + n}, v3, {p(sWP)} offset:{-4096 if n % 2 == 0 else 0} {NTO}')
            if n % 2 == 1 and n != 31: g(f'v_add_u32 v3, {200 * 1024 if WH and n == 15 else "s%d" % (sT+2)}, v3')
    wo_issue(0, WO[0])
    g('s_waitcnt lgkmcnt(0)\ns_barrier')
    g(f"""
    v_bfe_u32 v2, v1, 3, 2
    v_lshl_add_u32 v2, s{sWAVE}, 2, v2
    v_mul_u32_u24 v2, {H3A_S}, v2
    v_and_b32 v5, 7, v1
    v_lshl_add_u32 v2, v5, 3, v2
    v_and_b32 v5, 32, v1
    v_lshl_add_u32 v2, v5, 1, v2
    s_add_u32 s{sT}, s{sT+6}, 2048
    v_add_u32 v2, s{sT}, v2
    s_lshr_b32 s{sT}, s{sG}, 2
    v_xor_b32 v6, s{sT}, v4
    s_lshl_b32 s{sT}, s{sWAVE}, 7
    v_lshl_add_u32 v6, v6, 3, s{sT}
    v_and_b32 v7, 1, v0
    v_mul_u32_u24 v7, 0xaaaa, v7
    v_add_u32 v7, 0x4444, v7
    """)
    wl = f'global_load_dwordx2 v[8:9], v2, {p(sWS)} sc1'
    for i in range(8): g(f'v_mov_b64 {v2(vA+2*i)}, 0')

    def wo_pair(a, b, extra):
        ks = list(range(a // 2, b // 2))
        while ks:
            n = 4 if len(ks) > 4 else 2
            g(f's_waitcnt vmcnt({b - 2 * ks[:n][-1] - 2 + extra})')
            for k in ks[:n]: g(f'v_perm_b32 v{vWP+bslot(k)}, v{vW+2*k+1}, v{vW+2*k}, s{sSLO}\nv_perm_b32 v{vWP+16+bslot(k)}, v{vW+2*k+1}, v{vW+2*k}, s{sSHI}')
            ks = ks[n:]
    if WO[1]:
        g('s_barrier')
        wo_issue(WO[0], WO[0] + WO[1])
    wo_pair(0, WO[0] + WO[1], 0)
    if WO[2]:
        g('s_barrier')
        wo_issue(32 - WO[2], 32)
        g(wl)
        wo_pair(32 - WO[2], 32, 1)
    g.stamp(8)

    def wmid():
        for m in (1, 2, 3): g.dpp('v_mov_b32', 12 + m, 8, None, f'row_shl:{4 * m}')
        g('v_mov_b32 v12, v8\ns_nop 0')
    g.poll(lambda: g(wl), [9], None, mask=1, issued=WO[2] > 0, mid=wmid)
    g.stamp(11)
    for a in range(4):
        g(f'v_smfmac_f32_16x16x64_bf16 {v4(vA + 4 * a)}, v[12:15], v[{vWP+8*a}:{vWP+8*a+7}], v7')
    g(f"""
    s_mov_b64 exec, 0xffff
    s_nop 4
    v_pk_add_f32 {v2(vA)}, {v2(vA)}, {v2(vA+6)}
    v_add_f32 v{vA}, v{vA}, v{vA+1}
    v_pk_add_f32 {v2(vA+8)}, {v2(vA+8)}, {v2(vA+14)}
    v_add_f32 v{vA+1}, v{vA+8}, v{vA+9}
    ds_write_b64 v6, {v2(vA)} offset:{L_W}
    s_mov_b64 exec, -1
    """)
    sentinel(3, 0, 1)
    g(f"""
    s_waitcnt lgkmcnt(0)
    s_barrier
    """)
    g.stamp(10)
    if opt.get('dirty'):
        g(f's_lshl_b32 s{sT}, s2, 14\ns_add_u32 s{sT}, s{sT}, 0x400000\nv_lshl_add_u32 v2, v0, 4, s{sT}\ns_barrier')
        for i in range(int(opt['dirty'])): g(f'global_store_dwordx4 v2, v[16:19], {p(sWS)}\nv_add_u32 v2, 4096, v2')
    if DPF:
        g(f"""
        s_lshl2_add_u32 s{sT}, s{sJ}, s{sWAVE}
        s_mul_i32 s{sT}, s{sT}, 28
        v_add_lshl_u32 v2, v1, s{sT}, 3
        s_xor_b32 s{sT}, s{sG}, {DX}
        v_add_lshl_u32 v2, v2, s{sT}, 7
        s_mov_b64 exec, 0xfffffff
        s_barrier
        global_load_dword v8, v2, s[40:41] {NTD}
        """)
    g.end()
    vA, sST, sBS = 76, sT + 8, (10, 14, 26, 6)
    LAG = int(opt.get('lag', 24))

    def wdst(m, c, k):
        return 72 + m if k == 16 else 8 + 32 * m + 16 * c + bslot(k)

    def wpair(u):
        k, m = u >> 1, u & 1
        g(f'v_perm_b32 v{wdst(m, 0, k)}, v{wdst(m, 1, k)}, v{wdst(m, 0, k + 1)}, s{sSLO}\nv_perm_b32 v{wdst(m, 1, k)}, v{wdst(m, 1, k)}, v{wdst(m, 0, k + 1)}, s{sSHI}')
    g.pad('PQ5', 'Lexit1')
    g('Lload64:')
    for n in range(64):
        k, m, e = n >> 2, (n >> 1) & 1, n & 1
        g(f'global_load_dword v{wdst(m, 1, k) if e else wdst(m, 0, k + 1)}, v4, {p(sBS[n & 3])} {opt.get("nt64", NT)}')
        if n % 4 == 3 and n != 63: g(f'v_add_u32 v4, s{sST + (n == 31)}, v4')
        if n == 31:
            for i in range(8): g(f'v_mov_b64 {v2(vA+2*i)}, 0')
            g(f's_swappc_b64 {p(sRET)}, {p(sRET)}')
        if n >= LAG + 7 and n % 8 == 7 and n != 63:
            g(f's_waitcnt vmcnt({LAG})')
            for u in range((n - LAG - 7) // 2, (n - LAG - 7) // 2 + 4): wpair(u)
    g(f's_setpc_b64 {p(sRET)}')

    def pair_tail(extra):
        for us in [range(u, u + 4) for u in range(28 - LAG // 2, 28, 4)] + [range(28, 30), range(30, 32)]:
            g(f's_waitcnt vmcnt({min(63, 62 - 2 * us[-1] + extra)})')
            for u in us: wpair(u)

    def f_setup():
        consts()
        g(f's_and_b32 s{sJ}, s{sJ}, 7\ns_lshl3_add_u32 s{sPM}, s{sG}, s{sJ}\ns_lshl_b32 s{sW8}, s{sWAVE}, 3')
    SMB = [x for x in opt.get('smb', 'G1').split('.') if x]
    DB = int(opt.get('db', 1))
    if DIAG >= 0: g('LFH:\ns_endpgm')
    g(f'LFH{"x" if DIAG >= 0 else ""}:\ns_mov_b64 exec, -1\ns_waitcnt lgkmcnt(0)\ns_load_dword s{sTAG}, {p(sWS)}, 0')
    f_setup()
    g(f"""
    s_xor_b32 s{sPM}, s{sPM}, {DX * 8}
    v_bfe_u32 v2, v1, 3, 1
    v_bfe_u32 v3, v1, 4, 1
    v_lshl_add_u32 v5, v2, 1, v3
    v_and_b32 v6, 3, v1
    v_lshl_add_u32 v6, v5, 2, v6
    v_lshlrev_b32 v6, 5, v6
    v_lshl_add_u32 v5, s{sPM}, 2, v5
    v_lshlrev_b32 v7, 2, v5
    v_bfe_u32 v4, v1, 2, 1
    v_cmp_ne_u32 {p(sT+4)}, v4, v3
    """)
    base(sT, MOD_REP, MOD + 4096 + 3072)
    g(f'v_lshl_add_u32 v3, v5, 3, s{sT}')
    base(sT, H4_REP, H4)
    g(f"""
    v_lshl_add_u32 v2, s{sPM}, 1, v2
    v_lshl_add_u32 v2, v2, 4, s{sT}
    v_and_b32 v4, 7, v1
    v_lshl_add_u32 v4, v4, 11, v2
    s_waitcnt lgkmcnt(0)
    """)
    mk_tag()
    fp24_consts(sT + 8)
    g('s_barrier\n' * ((6 if SMB else 5) + DB))
    g(f'global_load_dword v8, v7, {p(sX)}')
    g.poll(lambda: g(f"""
        global_load_dwordx2 v[10:11], v3, {p(sWS)} offset:-3072 sc1
        global_load_dwordx2 v[12:13], v3, {p(sWS)} offset:3072 sc1
        global_load_dwordx4 v[16:19], v4, {p(sWS)} sc1"""), [11, 13, 19], 14)
    g.stamp(8)
    for r in (8, 10, 12): g.unpack(r, r)
    fp24_unpack(16, sT + 8)
    g(f'v_cndmask_b32 v14, v16, v18, {p(sT+4)}\nv_cndmask_b32 v15, v17, v19, {p(sT+4)}')
    for s in ('quad_perm:[1,0,3,2]', 'quad_perm:[2,3,0,1]', 'row_half_mirror'):
        g('s_nop 0')
        g.dpp('v_add_f32', 14, 14, 14, s)
        g.dpp('v_add_f32', 15, 15, 15, s)
    g.rb2(14)
    g('v_pk_mul_f32 v[14:15], v[14:15], v[10:11]')
    g.rb2(14)
    g('v_pk_add_f32 v[14:15], v[14:15], v[8:9]')
    g.rb2(14)
    g('s_mov_b64 exec, 0x0f0f0f0f')

    def epoch():
        g(f"""
        s_cmp_lg_u32 s{sPM}, 0
        s_cbranch_scc1 Ldend
        v_mov_b32 v2, 0
        v_mov_b32 v3, s{sTAG}
        global_store_dword v2, v3, {p(sWS)} sc1
        Ldend:
        """)
    if not opt.get('eplate'): epoch()
    g(f"""
    s_barrier
    ds_read_b128 v[16:19], v6 offset:{L_D}
    ds_read_b128 v[20:23], v6 offset:{L_D+16}
    s_waitcnt lgkmcnt(0)
    """)
    g.sum4(16)
    g('s_nop 0')
    for s_ in ('quad_perm:[1,0,3,2]', 'quad_perm:[2,3,0,1]'):
        g('s_nop 0')
        g.dpp('v_add_f32', 16, 16, 16, s_)
        g.dpp('v_add_f32', 17, 17, 17, s_)
    g('v_pk_fma_f32 v[16:17], v[16:17], v[12:13], v[14:15]')
    if opt.get('perturb'):
        import struct
        kind, val = opt['perturb'].split(':')
        u = struct.unpack('<I', struct.pack('<f', float(val)))[0]
        if kind == 'one':
            g(f'v_cmp_eq_u32 vcc, 4, v7\nv_add_f32 v18, {u:#x}, v16\ns_nop 0\nv_cndmask_b32 v16, v16, v18, vcc')
        elif kind == 'all':
            g(f'v_add_f32 v16, {u:#x}, v16\nv_subrev_f32 v17, {u:#x}, v17')
        else:
            g(f'v_mul_f32 v16, {u:#x}, v16\nv_mul_f32 v17, {u:#x}, v17')
    g(f"""
    v_cvt_pk_bf16_f32 v16, v16, v17
    global_store_dword v7, v16, {p(sOUT)} {opt.get('outf', '').replace('_', ' ')}
    """)
    g.stamp(10)
    if opt.get('eplate'): epoch()
    g.end()
    g('.p2align 12\nLM:')
    if DIAG == 0: g('s_waitcnt lgkmcnt(0)\ns_branch Lexit')
    f_setup()
    vW, vA, vT, vS = 8, 40, 48, 80
    vLW, vLR, vPA = 81, 82, 83
    g(f"""
    v_lshrrev_b32 v4, 1, v0
    v_and_b32 v5, 1, v0
    v_mul_u32_u24 v4, {4*6144}, v4
    v_lshl_add_u32 v4, v5, 4, v4
    s_lshl_b32 s{sT}, s{sPM}, 5
    s_addk_i32 s{sT}, 3072
    v_add_u32 v4, s{sT}, v4
    v_add_u32 v3, 12288, v4
    v_lshlrev_b32 v6, 2, v0
    s_lshl_b32 s{sT}, s{sJ}, 6
    v_lshrrev_b32 v120, 2, v0
    v_add_u32 v120, s{sT}, v120
    v_bfe_u32 v122, v0, 1, 1
    v_mad_u32_u24 v120, v120, 48, v122
    s_lshl_b32 s{sT}, s{sG}, 1
    v_add_lshl_u32 v120, v120, s{sT}, 7
    s_waitcnt lgkmcnt(0)
    """)
    g.stamp(1)
    if int(opt.get('mpf', 0)): g(f'global_load_dword v121, v120, {p(sWM)} {NT}')
    g(f"""
    global_load_dword v6, v6, {p(sC)}
    global_load_dwordx4 {v4(vW)}, v4, {p(sWM)} offset:-3072 {NT}
    global_load_dwordx4 {v4(vW+4)}, v4, {p(sWM)} offset:3072 {NT}
    global_load_dwordx4 {v4(vW+8)}, v3, {p(sWM)} offset:-3072 {NT}
    global_load_dwordx4 {v4(vW+12)}, v3, {p(sWM)} offset:3072 {NT}
    s_load_dword s{sTAG}, {p(sWS)}, 0
    """)
    XM = 1 if OWN & 3 else 0
    if XM:
        xcc_addr()
        g('v_or_b32 v126, 16, v126' + XLD)
    for i in range(8): g(f'v_mov_b32 v{vA+i}, 0')
    g(f"""
    v_lshrrev_b32 v{vT}, 4, v1
    v_lshl_add_u32 v{vT}, v{vT}, 1, v5
    v_lshl_add_u32 v{vLW}, v{vT}, 5, s{sW8}
    """)
    if H1X4:
        g(f"""
        v_and_b32 v{vT}, 1, v1
        v_bfe_u32 v{vT+1}, v1, 1, 1
        v_lshl_add_u32 v{vT}, v{vT}, 2, v{vT+1}
        v_lshlrev_b32 v{vLR}, 5, v{vT}
        v_and_b32 v{vT}, 3, v1
        v_bfe_u32 v{vT+1}, v1, 2, 3
        v_mul_u32_u24 v{vT+1}, {H1_REP}, v{vT+1}
        v_lshl_add_u32 v{vPA}, v{vT}, 4, v{vT+1}
        """)
    else:
        g(f"""
        v_and_b32 v{vT}, 3, v1
        v_bfe_u32 v{vT+1}, v1, 2, 1
        v_lshl_add_u32 v{vT}, v{vT}, 1, v{vT+1}
        v_lshlrev_b32 v{vLR}, 5, v{vT}
        v_and_b32 v{vT}, 7, v1
        v_lshrrev_b32 v{vT+1}, 3, v1
        v_mul_u32_u24 v{vT+1}, {H1_REP}, v{vT+1}
        v_lshl_add_u32 v{vPA}, v{vT}, 3, v{vT+1}
        """)
    g(f"""
    s_mul_i32 s{sT}, s{sPM}, {PS}
    s_add_u32 s{sT}, s{sT}, {H1}
    v_add_u32 v{vPA}, s{sT}, v{vPA}
    s_waitcnt vmcnt({4 + XM})
    """)
    g.unpack(vT, 6)
    g.silu2(vT, vT + 2)
    g(f'v_cvt_pk_bf16_f32 v{vS}, v{vT}, v{vT+1}')
    g('s_waitcnt lgkmcnt(0)')
    mk_tag()
    g(f'v_mov_b32 v85, s{sTAG}\nv_mov_b32 v87, s{sTAG}')
    for k in range(2):
        g(f's_waitcnt vmcnt({2 - 2 * k + XM})')
        if k: g.stamp(2)
        g.pair(vT + 8 * k, vW + 8 * k, vW + 8 * k + 4, 4)
        for c in range(8): g.dpp('v_dot2c_f32_bf16', vA + c, vS, vT + 8 * k + c, f'quad_perm:[{k},{k},{k+2},{k+2}]')
    g.red8(vA, 2)

    def fin_pairs(lds, nw, x4=0):
        l = g.lab('nm')
        g(f"""
        ds_write_b64 v{vLW}, {v2(vA)} offset:{lds}
        """)
        if nw == 1 and XM:
            g('s_waitcnt vmcnt(0)')
            xcc_test()
            g(f's_mov_b32 s{sT+6}, -1\ns_mov_b32 s{sT+7}, {0 if x4 else -1}')
            own_masks(1, sT + 2, 4 if x4 else 8, p(sT + 6))
        if nw == 2 and OWN & 2:
            own_masks(2, sT + 2, 16, -1, f's_and_b32 s{sT+2}, s{sG}, 3\ns_lshl_b32 s{sT+2}, s{sT+2}, 4\ns_lshr_b32 s{sT}, s{sG}, 2\ns_xor_b32 s{sT}, s{sT}, s{sWAVE}\ns_or_b32 s{sLOC}, s{sLOC}, s{sT}')
        g(f"""
        s_waitcnt lgkmcnt(0)
        s_barrier
        s_cmp_ge_u32 s{sWAVE}, {nw}
        s_cbranch_scc1 {l}
        ds_read_b128 {v4(vT)}, v{vLR} offset:{lds}
        ds_read_b128 {v4(vT+4)}, v{vLR} offset:{lds+16}
        """)
        if x4:
            g(f'ds_read_b128 {v4(vT+8)}, v{vLR} offset:{lds+64}\nds_read_b128 {v4(vT+12)}, v{vLR} offset:{lds+80}\ns_mov_b32 exec_hi, 0')
        lgkm(2 if x4 else 0)
        g.sum4(vT)
        g(f'v_cvt_pk_bf16_f32 v84, v{vT}, v{vT+1}')
        if x4:
            lgkm(0)
            g.sum4(vT + 8)
            g(f'v_cvt_pk_bf16_f32 v86, v{vT+8}, v{vT+9}')
            own_store(1, f'global_store_dwordx4 v{vPA}, v[84:87], {p(sWS)}', sT + 2)
            g('s_mov_b32 exec_hi, -1')
        else:
            own_store(nw, f'global_store_dwordx2 v{vPA}, v[84:85], {p(sWS)}', sT + 2)
        g(f"""
        {l}:
        s_barrier
        """)
    fin_pairs(L_MP, 1, H1X4)
    g.stamp(3)
    if 0 <= DIAG <= 2: g.end()
    stream(SM1 + ('' if 'R' in opt.get('sq0', '') else '.R'))
    g.pad('PM1', 'Lexit1')
    g(f"""
    v_lshrrev_b32 v4, 2, v0
    v_and_b32 v5, 3, v0
    v_mul_u32_u24 v4, {8*6144}, v4
    v_lshl_add_u32 v4, v5, 4, v4
    s_lshl_b32 s{sT}, s{sPM}, 6
    s_addk_i32 s{sT}, {2048 + 3072}
    v_add_u32 v4, s{sT}, v4
    s_movk_i32 s{sT}, 12288
    """)
    for k in range(4):
        g(f'global_load_dwordx4 {v4(vW+8*k)}, v4, {p(sWM)} offset:-3072 {NT}\nglobal_load_dwordx4 {v4(vW+8*k+4)}, v4, {p(sWM)} offset:3072 {NT}')
        if k != 3: g(f'v_add_u32 v4, s{sT}, v4')
    SMB = [x for x in opt.get('smb', 'G1').split('.') if x]
    if SMB:
        g('s_barrier')
        stream('.'.join(SMB), True)
    for i in range(8): g(f'v_mov_b32 v{vA+i}, 0')
    g(f"""
    v_lshrrev_b32 v{vT}, 4, v1
    v_lshl_add_u32 v{vT}, v{vT}, 2, v5
    v_lshl_add_u32 v{vLW}, v{vT}, 5, s{sW8}
    v_bfe_u32 v{vT}, v1, 2, 2
    v_lshl_add_u32 v{vT}, v5, 2, v{vT}
    v_lshlrev_b32 v{vLR}, 5, v{vT}
    v_and_b32 v{vT}, 15, v1
    v_bfe_u32 v{vT+1}, v0, 4, 3
    v_mul_u32_u24 v{vT+1}, {MOD_REP}, v{vT+1}
    v_lshl_add_u32 v{vPA}, v{vT}, 3, v{vT+1}
    s_lshl_b32 s{sT}, s{sPM}, 7
    s_add_u32 s{sT}, s{sT}, {MOD + 4096}
    v_add_u32 v{vPA}, s{sT}, v{vPA}
    """)
    for k in range(4):
        g(f's_waitcnt vmcnt({6 - 2 * k + len(SMB)})')
        if k == 3: g.stamp(4)
        g.pair(vT + 8 * k, vW + 8 * k, vW + 8 * k + 4, 4)
        for c in range(8): g.dpp('v_dot2c_f32_bf16', vA + c, vS, vT + 8 * k + c, f'quad_perm:[{k},{k},{k},{k}]')
    g.red8(vA, 4)
    g.pad('PM2', 'Lexit1')
    fin_pairs(L_RP, 2)
    g.stamp(5)
    stream(SM2)
    if DIAG >= 0: g.end()
    vW, vWP, vA, vT = 16, 48, 80, 96
    g(f"""
    v_and_b32 v4, 16, v1
    v_and_b32 v5, 32, v1
    v_lshlrev_b32 v4, 6, v4
    v_lshl_add_u32 v4, v5, 1, v4
    v_and_b32 v5, 12, v1
    v_lshl_add_u32 v4, v5, 2, v4
    v_lshl_add_u32 v4, s{sWAVE}, 8, v4
    v_and_b32 v6, 3, v1
    v_lshlrev_b32 v4, {4 if 'D' in opt.get('skip', '') else 10}, v4
    v_lshl_add_u32 v4, v6, 2, v4
    s_xor_b32 s{sT}, s{sPM}, {DX * 8}
    s_lshl4_add_u32 s{sT}, s{sT}, 4096
    v_add_u32 v4, s{sT}, v4
    v_lshlrev_b32 v6, 7, v6
    v_lshl_add_u32 v6, v5, 1, v6
    v_lshl_add_u32 v6, s{sWAVE}, 5, v6
    v_and_b32 v7, 1, v0
    v_mul_u32_u24 v7, 0xaaaa, v7
    v_add_u32 v7, 0x4444, v7
    s_mov_b32 s{sT+4}, 0x00f0000f
    s_mov_b32 s{sT+5}, 0xf0000f00
    """)
    for i in range(16): g(f'v_mov_b64 {v2(vW+2*i)}, 0')
    for i in range(8): g(f'v_mov_b64 {v2(vA+2*i)}, 0')
    base(sT, H5_REP, H5)
    g(f"""
    v_lshl_add_u32 v2, v0, 4, s{sT}
    s_cmp_eq_u32 s{sWAVE}, 3
    s_cselect_b32 s{sT}, 0, 4096
    v_add_u32 v3, s{sT}, v2
    s_cselect_b32 exec_lo, 0xffff, -1
    s_mov_b32 exec_hi, exec_lo
    s_barrier
    """)
    g.stamp(6)
    for n in range(32):
        g(f'global_load_dword v{vW + n}, v4, {p(sDOWN)} offset:{1024 * (n & 7) - 4096} {opt.get("ntdr", NTD)}')
        if n % 8 == 7 and n != 31: g(f'v_add_u32 v4, {(120 if n == 15 else 8) * 1024}, v4')
    g('s_mov_b64 exec, -1\ns_branch Lpm3\nPM3:\ns_endpgm\nLpm3:')
    h5 = lambda: g(f'global_load_dwordx4 {v4(vT)}, v2, {p(sWS)} sc1\nglobal_load_dwordx4 {v4(vT+4)}, v3, {p(sWS)} sc1')
    DB = int(opt.get('db', 1))
    if DB: g('s_barrier')
    h5()
    for q in range(4):
        g(f's_waitcnt vmcnt({26 - 8 * q})')
        for u in range(4 * q, 4 * q + 4):
            d = 8 * ((u >> 2) & 1) + 4 * (u >> 3) + 2 * (u & 1) + ((u >> 1) & 1)
            g(f'v_perm_b32 v{vWP+d}, v{vW+2*u+1}, v{vW+2*u}, s{sSLO}\nv_perm_b32 v{vWP+16+d}, v{vW+2*u+1}, v{vW+2*u}, s{sSHI}')
    g.stamp(8)
    g.poll(h5, [vT + 3, vT + 7], vT + 8, mask=2, issued=True, mid=lambda: g(f'v_mov_b64 {v2(vT+2)}, {v2(vT+4)}'))
    g.stamp(9)
    for a in range(4):
        g(f'v_smfmac_f32_16x16x64_bf16 {v4(vA + 4 * a)}, {v4(vT)}, v[{vWP+8*a}:{vWP+8*a+7}], v7')
    g(f"""
    s_mov_b64 exec, {p(sT+4)}
    s_nop 4
    v_pk_add_f32 {v2(vA)}, {v2(vA)}, {v2(vA+6)}
    v_add_f32 v{vA}, v{vA}, v{vA+1}
    v_pk_add_f32 {v2(vA+8)}, {v2(vA+8)}, {v2(vA+14)}
    v_add_f32 v{vA+1}, v{vA+8}, v{vA+9}
    ds_write_b64 v6, {v2(vA)} offset:{L_D}
    s_waitcnt lgkmcnt(0)
    s_barrier
    """)
    g.stamp(10)
    g.end()
    vA, vT, vIX, vLW, vLR, vPA, vSS = 76, 92, 74, 75, 109, 124, 125
    vX, vGA, vSB, vCB, vY = 110, 112, 114, 116, 118
    g('.p2align 12\nLQ:')
    if 0 <= DIAG <= 1: g('s_waitcnt lgkmcnt(0)\ns_branch Lexit')
    f_setup()
    g(f"""
    v_and_b32 v5, 32, v0
    v_bfe_u32 v6, v0, 4, 1
    v_lshl_add_u32 v5, v6, 1, v5
    v_lshl_add_u32 v5, s{sWAVE}, 7, v5
    v_and_b32 v6, 15, v0
    v_lshlrev_b32 v4, 13, v5
    v_lshl_add_u32 v4, v6, 2, v4
    s_lshl_b32 s{sT}, s{sPM}, 7
    v_add_u32 v4, s{sT}, v4
    v_and_b32 v7, 7, v0
    v_bfe_u32 v{vT+1}, v0, 3, 1
    v_lshl_add_u32 v{vT}, v7, 1, v{vT+1}
    v_and_or_b32 v3, v0, -16, v{vT}
    v_lshlrev_b32 v7, 2, v3
    v_lshlrev_b32 v2, 4, v1
    s_mov_b32 s{sST}, {4 * 8192}
    s_mov_b32 s{sST+1}, {36 * 8192}
    s_waitcnt lgkmcnt(0)
    """)
    g.stamp(1)
    g(f'global_load_dword v{vY}, v7, {p(sX)}\nglobal_load_dwordx4 {v4(vX)}, v2, {p(sX)}')
    SQ0 = [x for x in opt.get('sq0', '').split('.') if x]
    if SQ0: stream(opt['sq0'])
    for b, o in zip(sBS[1:], (8192, 64, 8256)): g(f's_add_u32 s{b}, s{sWQ}, {o}\ns_addc_u32 s{b+1}, s{sWQ+1}, 0')
    g(f"""
    {'s_waitcnt lgkmcnt(0)' if STAMPS else ''}
    s_call_b64 {p(sRET)}, Lload64
    s_load_dword s{sTAG}, {p(sWS)}, 0
    """)
    xcc_addr()
    g(f's_lshl_b32 s{sT}, s{sJ}, 7')
    base(sT + 1, H2_G, H2, sT)
    g(f'v_lshl_add_u32 v{vPA}, v1, 2, s{sT+1}')
    g(f's_lshr_b32 s{sT}, s{sJ}, 1\ns_lshl_b32 s{sT}, s{sT}, 11\ns_and_b32 s{sT+1}, s{sJ}, 1\ns_lshl2_add_u32 s{sT}, s{sT+1}, s{sT}')
    base(sT + 1, H2_G, H2 + 1024, sT)
    g(f'v_lshl_add_u32 v{vSS}, v1, 6, s{sT+1}')
    base(sT, H1_REP, H1 + 16 * PS)
    g(f'v_lshrrev_b32 v2, 3, v3\nv_mul_u32_u24 v2, {PS - 64}, v2\nv_lshl_add_u32 v2, v3, 3, v2\nv_add_u32 v2, s{sT}, v2')
    h1 = lambda: g(f'global_load_dwordx2 {v2(vSB)}, v2, {p(sWS)} offset:{-16 * PS} sc1\nglobal_load_dwordx2 {v2(vCB)}, v2, {p(sWS)} offset:{16 * PS} sc1' + XLD)
    g(f"""
    s_lshl_b32 s{sT}, s{sWAVE}, 8
    s_addk_i32 s{sT}, {L_QP}
    v_lshl_add_u32 v{vLW}, v6, 4, s{sT}
    v_bfe_u32 v{vLR}, v1, 4, 1
    v_lshl_add_u32 v{vLR}, v6, 2, v{vLR}
    v_lshlrev_b32 v{vLR}, 2, v{vLR}
    v_add_u32 v{vLR}, {L_QP}, v{vLR}
    v_and_b32 v{vIX}, 1, v0
    v_mul_u32_u24 v{vIX}, 0xaaaa, v{vIX}
    v_add_u32 v{vIX}, 0x4444, v{vIX}
    v_mov_b32 v7, 0
    v_mov_b32 v{vT}, 0
    v_mov_b32 v{vT+1}, 0
    s_mov_b32 s{sT}, 0x3f803f80
    s_waitcnt vmcnt({32 + len(SQ0)})
    """)
    for i in range(4): g(f'v_dot2c_f32_bf16 v{vT}, s{sT}, v{vX+i}\nv_dot2c_f32_bf16 v{vT+1}, v{vX+i}, v{vX+i}')
    g.unpack(vY, vY)
    g(f's_nop 0\nv_permlane32_swap_b32 v{vT}, v{vT+1}\nv_add_f32 v{vT}, v{vT}, v{vT+1}')
    for s_ in ROT:
        g('s_nop 1')
        g.dpp('v_add_f32', vT, vT, vT, s_)
    g(f"""
    s_nop 1
    v_add_f32_dpp v{vT}, v{vT}, v{vT} row_bcast:15 row_mask:0xa bank_mask:0xf
    s_nop 0
    v_readlane_b32 s{sT}, v{vT}, 31
    v_readlane_b32 s{sT+1}, v{vT}, 63
    s_nop 0
    v_mov_b32 v{vT}, s{sT}
    v_mov_b32 v{vT+1}, s{sT+1}
    """)
    g.stats_fin(vT)
    g.ln_apply(vY, vT)
    g('s_waitcnt lgkmcnt(0)')
    mk_tag()
    g(f'v_mov_b32 v123, s{sTAG}\ns_swappc_b64 {p(sRET)}, {p(sRET)}')
    g.stamp(2)
    h1()
    pair_tail(3)
    g.stamp(4)
    g.poll(h1, [vSB + 1, vCB + 1], vT, issued=True, mask=1, pad='.p2align 6\nPQ3:\ns_endpgm')
    g.stamp(5)
    g.unpack(vCB, vCB)
    g(f'v_add_f32 v{vCB}, 1.0, v{vCB}\nv_add_f32 v{vCB+1}, 1.0, v{vCB+1}')
    xcc_test()
    g.rb2(vCB)
    g(f'v_pk_mul_f32 {v2(vY)}, {v2(vY)}, {v2(vCB)}')
    g.rb2(vY)
    g.unpack(vSB, vSB)
    g(f'v_pk_add_f32 {v2(vT)}, {v2(vY)}, {v2(vSB)}')

    def smf(a, st, A):
        b = 8 + 32 * (a & 1) + 16 * (a >> 1) + 8 * st
        g(f'v_smfmac_f32_16x16x64_bf16 {v4(vA + 4 * a)}, {v4(A)}, v[{b}:{b+7}], v{vIX}')
    A0, A1 = vT + 4, vT + 8
    g(f'v_cvt_pk_bf16_f32 v{A0}, v{vT}, v{vT+1}\ns_cmp_lg_u32 s{sWAVE}, 0\ns_nop 0')
    for m in (1, 2, 3): g.dpp('v_mov_b32', A0 + m, A0, None, f'row_shl:{4 * m}')
    for m in (0, 1): g.dpp('v_mov_b32', A1 + m, A0, None, f'row_shl:{4 * m + 2}')
    for st in range(2):
        for a in range(4):
            smf(a, st, A1 if st else A0)
            if st == 0 and a < 2: g.dpp('v_mov_b32', A1 + 2 + a, A0, None, f'row_shl:{4 * a + 10}')
    g('s_mov_b64 exec, 0xffff\ns_nop 3')
    for a in range(4): g(f'v_add_f32 v{vT+a}, v{vA+4*a}, v{vA+4*a+1}')
    g(f'ds_write_b128 v{vLW}, {v4(vT)}\ns_mov_b64 exec, -1\ns_waitcnt lgkmcnt(0)\ns_barrier\ns_cbranch_scc1 LQ3')
    for w in range(4): g(f'ds_read2_b32 {v2(vT+2*w)}, v{vLR} offset0:{64*w} offset1:{64*w+2}')
    g('s_mov_b32 exec_hi, 0\ns_waitcnt lgkmcnt(0)')
    g.sum4(vT)
    g(f'v_cvt_pk_bf16_f32 v122, v{vT}, v{vT+1}')
    g.store_local([f'global_store_dword v{vPA}, v122, {p(sWS)}'])
    g('s_waitcnt vmcnt(0)')
    g.store_local([f'global_store_dword v{vSS}, v123, {p(sWS)}'])
    g(f's_mov_b64 exec, -1\nLQ3:\ns_barrier')
    g.stamp(6)
    stream(SQ)
    if DIAG >= 0: g.end()
    g(f's_cmp_eq_u32 s{sG}, 7\ns_cbranch_scc1 Lexit\nv_lshlrev_b32 v2, 2, v3\nglobal_load_dword v{vX}, v2, {p(sX)}')
    base(sT, MOD_REP, MOD + 4096 + 2048)
    g(f'v_lshl_add_u32 v2, v3, 3, s{sT}')
    base(sT, H4_REP, H4 + 4096)
    g(f"""
    v_and_b32 v{vLR}, 15, v3
    v_bfe_u32 v{vT+1}, v1, 4, 1
    v_lshl_add_u32 v{vLR}, v{vLR}, 1, v{vT+1}
    v_lshrrev_b32 v{vT}, 5, v1
    v_lshl_add_u32 v{vLR}, v{vLR}, 1, v{vT}
    v_lshlrev_b32 v{vLR}, 2, v{vLR}
    v_add_u32 v{vLR}, {L_GP}, v{vLR}
    v_lshlrev_b32 v{vLW}, 4, v0
    v_lshl_add_u32 v{vSS}, v{vT+1}, 1, v{vT}
    v_lshlrev_b32 v{vSS}, 2, v{vSS}
    v_lshl_add_u32 v{vSS}, s{sWAVE}, 10, v{vSS}
    v_lshrrev_b32 v{vT}, 1, v3
    v_and_b32 v{vT+1}, 1, v3
    v_lshl_add_u32 v{vT}, v{vT}, 4, s{sT}
    v_lshl_add_u32 v3, v{vT+1}, 13, v{vT}
    v_mul_u32_u24 v4, 3584, v5
    v_lshl_add_u32 v4, v6, 2, v4
    s_lshl_b32 s{sT}, s{sPM}, 6
    v_add_u32 v4, s{sT}, v4
    s_movk_i32 s{sST}, {4 * 3584}
    s_mov_b32 s{sST+1}, {36 * 3584}
    s_mov_b64 {p(sBS[0])}, {p(sGATE)}
    s_add_u32 s{sBS[1]}, s{sGATE}, 3584
    s_addc_u32 s{sBS[1]+1}, s{sGATE+1}, 0
    s_mov_b64 {p(sBS[2])}, {p(sUP)}
    s_add_u32 s{sBS[3]}, s{sUP}, 3584
    s_addc_u32 s{sBS[3]+1}, s{sUP+1}, 0
    v_lshrrev_b32 v{vT}, 3, v1
    v_mul_u32_u24 v{vT}, {H5_REP}, v{vT}
    v_and_b32 v{vT+1}, 7, v1
    v_lshl_add_u32 v{vPA}, v{vT+1}, 4, v{vT}
    s_mov_b32 s{sT+4}, {INV512:#x}
    s_mov_b32 s{sT+5}, {INV512:#x}
    v_mov_b32 v126, 0
    v_mov_b32 v127, {EPS:#x}
    s_lshl_b32 s{sT}, s{sPM}, 7
    s_add_u32 s{sT}, s{sT}, {H5}
    v_add_u32 v{vPA}, s{sT}, v{vPA}
    """)
    fp24_consts(sT + 12)
    own_masks(8, 20, 8, -1)
    g('s_barrier')
    g.stamp(8)

    hr = lambda: g(f"""
        global_load_dwordx2 {v2(vGA)}, v2, {p(sWS)} offset:-2048 sc1
        global_load_dwordx2 {v2(vSB)}, v2, {p(sWS)} sc1
        global_load_dwordx2 {v2(vCB)}, v2, {p(sWS)} offset:2048 sc1""")

    def h4loads():
        for i in range(4):
            g(f'global_load_dwordx4 {v4(vT + 4 * i)}, v3, {p(sWS)} offset:{i * 2048 - 4096} sc1')
    g(f's_branch LG2\nPQ2:\ns_endpgm\nLG2:')
    if STAMPS: g('s_waitcnt lgkmcnt(0)')
    if 'G' not in opt.get('skip', ''): g(f's_call_b64 {p(sRET)}, Lload64\ns_swappc_b64 {p(sRET)}, {p(sRET)}')
    hr()
    h4loads()
    pair_tail(7)
    g.stamp(9)
    g.poll(hr, [vGA + 1, vSB + 1, vCB + 1], vT + 16, issued=True, first=4)
    g.stamp(7)
    AG = (4, 120)

    def arows(src, bank, ms):
        for st, m in ms:
            rot = (4 * bank - 4 * m - 2 * st) % 16
            g.dpp('v_mov_b32', AG[st] + m, src, None, f'row_ror:{rot}' if rot else 'quad_perm:[0,1,2,3]', 1 << bank)
    ALL = [(st, m) for st in range(2) for m in range(4)]
    g.unpack(vCB, vCB)
    g(f'v_add_f32 v{vCB}, 1.0, v{vCB}\nv_add_f32 v{vCB+1}, 1.0, v{vCB+1}\nv_cvt_pk_bf16_f32 v{vSB+1}, v{vCB}, v{vCB+1}')
    arows(vSB, 2, ALL)
    arows(vSB + 1, 1, ALL)
    for r in (vX, vGA): g.unpack(r, r)
    g.unpack(vCB, vSB + 1)
    g(f'v_mov_b32 v72, {L_GP + 768 + 8}')
    g.poll(h4loads, [vT + 4 * i + 3 for i in range(4)], vT + 16, issued=True, mid=lambda: [fp24_unpack(vT + 4 * i, sT + 12) for i in range(2)], mask=2, pad='PQ4:\ns_endpgm')
    g.stamp(11)
    for i in range(2, 4): fp24_unpack(vT + 4 * i, sT + 12)
    for a, b in ((2, 6), (10, 14), (0, 4), (2, 10), (8, 12)):
        g(f'v_pk_add_f32 {v2(vT+a)}, {v2(vT+a)}, {v2(vT+b)}')
    g(f'v_pk_fma_f32 {v2(vX)}, {v2(vT+8)}, {v2(vGA)}, {v2(vX)}')
    g.dpp('v_add_f32', vY, vT + 2, vT, 'row_ror:8')
    g.dpp('v_add_f32', vY + 1, vT + 3, vT + 1, 'row_ror:8')
    g(f'v_pk_fma_f32 {v2(vY)}, {v2(vY)}, {v2(vGA)}, {v2(vX)}')
    g(f"""
    v_pk_mul_f32 {v2(vT+4)}, {v2(vY)}, {v2(vCB)}
    v_cvt_pk_bf16_f32 v{vT+4}, v{vT+4}, v{vT+5}
    v_mul_f32 v{vT+1}, v{vY}, v{vY}
    v_add_f32 v{vT}, v{vY}, v{vY+1}
    """)
    arows(vT + 4, 0, ALL[:4])
    g(f'v_fmac_f32 v{vT+1}, v{vY+1}, v{vY+1}')
    arows(vT + 4, 0, ALL[4:5])
    g.stamp(12)
    red = lambda c: g.dpp('v_add_f32', vT, vT, vT, c)
    smf(0, 0, AG[0])
    g(f'v_permlane32_swap_b32 v{vT}, v{vT+1}')
    smf(1, 0, AG[0])
    g(f'v_add_f32 v{vT}, v{vT}, v{vT+1}')
    arows(vT + 4, 0, ALL[5:6])
    smf(2, 0, AG[0])
    arows(vT + 4, 0, ALL[6:8])
    smf(3, 0, AG[0])
    red(ROT[0])
    smf(0, 1, AG[1])
    g(f's_cmp_lg_u32 s{sWAVE}, 0')
    red(ROT[1])
    smf(1, 1, AG[1])
    g(f'v_mov_b32 v{vT+11}, s{sTAG}')
    red(ROT[2])
    smf(2, 1, AG[1])
    g('s_nop 0')
    red(ROT[3])
    smf(3, 1, AG[1])
    g(f"""
    v_add_f32 v{vT+4}, v{vA}, v{vA+1}
    v_add_f32_dpp v{vT}, v{vT}, v{vT} row_bcast:15 row_mask:0xa bank_mask:0xf
    v_add_f32 v{vT+5}, v{vA+4}, v{vA+5}
    ds_write_b32 v{vSS}, v{vT} offset:{L_GP + 768}
    s_mov_b32 exec_hi, 0xffff
    v_add_f32 v{vT+6}, v{vA+8}, v{vA+9}
    s_nop 1
    v_add_f32 v{vT+7}, v{vA+12}, v{vA+13}
    ds_write_b128 v{vLW}, {v4(vT+4)} offset:{L_GP}
    s_mov_b32 exec_hi, -1
    s_cbranch_scc1 LGw
    s_waitcnt lgkmcnt(0)
    s_barrier
    ds_read2st64_b64 v[8:11], v72 offset0:0 offset1:2
    ds_read2st64_b64 v[12:15], v72 offset0:4 offset1:6
    """)
    for w in range(4): g(f'ds_read2st64_b32 {v2(16 + 2 * w)}, v{vLR} offset0:{4 * w} offset1:{4 * w + 1}')
    for w in range(2): g(f'ds_read2st64_b32 {v2(24 + 2 * w)}, v{vLR} offset0:{8 * w + 2} offset1:{8 * w + 6}')
    lgkm(6)
    g.sum4(8)
    g(f"""
    v_pk_fma_f32 v[8:9], v[8:9], {p(sT+4)}, v[126:127]
    v_fma_f32 v9, -v8, v8, v9
    v_max_f32 v9, v9, v127
    v_rsq_f32 v10, v9
    s_waitcnt lgkmcnt(0)
    """)
    g.sum4(16)
    g(f"""
    v_pk_add_f32 v[24:25], v[24:25], v[26:27]
    v_fma_f32 v16, -v8, v17, v16
    v_add_f32 v24, v24, v25
    v_pk_fma_f32 {v2(vT)}, v[16:17], v[10:11], v[24:25] op_sel_hi:[0,0,0]
    s_nop 1
    v_permlane32_swap_b32 v{vT}, v{vT+1}
    v_mul_f32 v{vT+2}, 0xbfb8aa3b, v{vT}
    v_exp_f32 v{vT+2}, v{vT+2}
    v_mul_f32 v{vT}, v{vT}, v{vT+1}
    v_add_f32 v{vT+2}, 1.0, v{vT+2}
    v_rcp_f32 v{vT+1}, v{vT+2}
    s_nop 0
    v_pk_mul_f32 {v2(vT)}, {v2(vT)}, {v2(vT)} op_sel:[0,1] op_sel_hi:[0,1]
    s_nop 1
    v_permlane16_swap_b32 v{vT}, v{vT+1}
    v_cvt_pk_bf16_f32 v{vT+8}, v{vT}, v{vT+1}
    v_cvt_pk_bf16_f32 v{vT+9}, v{vT}, v{vT+1}
    s_nop 0
    """)
    g.dpp('v_mov_b32', vT + 8, vT + 8, None, 'row_ror:8', 0xc)
    g.dpp('v_mov_b32', vT + 9, vT + 9, None, 'row_ror:8', 0x3)
    own_store(8, f'global_store_dwordx4 v{vPA}, {v4(vT+8)}, {p(sWS)}', 20)
    g.stamp(13)
    g.end()
    g(f'LGw:\ns_waitcnt lgkmcnt(0)\ns_barrier')
    g.end()
    g.flush_tail()
    if opt.get('stamps'):
        g(f"""
        Lexit1:
        s_endpgm
        Lexit:
        Lfin:
        s_memrealtime {p(sSTAMP + 28)}
        s_sleep 127
        s_sleep 127
        s_sleep 127
        s_mov_b32 s{sSTAMP + 30}, s{sLOC}
        s_mov_b64 exec, 1
        s_lshl3_add_u32 s{sT}, s2, s{sWAVE}
        s_lshl_b32 s{sT}, s{sT}, 6
        s_add_u32 s{sT}, s{sT}, {STAMP_OFF}
        v_mov_b32 v2, s{sT}
        s_waitcnt lgkmcnt(0)
        """)
        if opt.get('probe'):
            wg, wv, st, T0, mult = map(int, opt['probe'].split(':'))
            g(f"""
            s_cmp_lg_u32 s2, {wg}
            s_cbranch_scc1 Lexit0
            s_cmp_lg_u32 s{sWAVE}, {wv}
            s_cbranch_scc1 Lexit0
            s_sub_u32 s{sT}, s{sSTAMP + 2 * st}, s{sSTAMP}
            s_mul_i32 s{sT}, s{sT}, {mult}
            s_add_u32 s{sT}, s{sT}, {T0}
            s_min_u32 s{sT}, s{sT}, 100000
            Lpad:
            s_memrealtime {p(sT + 2)}
            s_waitcnt lgkmcnt(0)
            s_sub_u32 s{sT+2}, s{sT+2}, s{sSTAMP}
            s_cmp_lt_u32 s{sT+2}, s{sT}
            s_cbranch_scc1 Lpad
            """)
        else:
            for i in range(16):
                g(f'v_mov_b32 v3, s{sSTAMP + 2 * i}\nglobal_store_dword v2, v3, {p(sWS)} offset:{4 * i}')
    else:
        g('Lexit1:\nLexit:')
    g('Lexit0:\ns_endpgm')
    g(f"""
    .section .rodata,"a"
    .p2align 6
    .amdhsa_kernel {K}
    """)
    for d in ('next_free_vgpr 128', 'next_free_sgpr 102', 'accum_offset 128', 'group_segment_fixed_size 0', 'kernarg_size 112',
              'user_sgpr_count 2', 'user_sgpr_kernarg_segment_ptr 1', 'system_sgpr_workgroup_id_x 1', 'float_denorm_mode_32 3'):
        g.L.append('  .amdhsa_' + d)
    g('.end_amdhsa_kernel')
    return '\n'.join(g.L) + '\n'


if __name__ == '__main__':
    opt = {}
    out = sys.argv[1]
    for a in sys.argv[2:]:
        k, _, v = a.partition('=')
        opt[k] = v if _ else True
    open(out, 'w').write(gen(opt))
```
